```python
import torch

def _softmax(x, axis=-1):
    return torch.softmax(x, dim=axis)
def _gelu(x):
    return torch.nn.functional.gelu(x, approximate="tanh")
def _silu(x):
    return torch.nn.functional.silu(x)
def _sigmoid(x):
    return torch.sigmoid(x)
def _layernorm(x, axis=-1, eps=1e-5):
    m = x.mean(dim=axis, keepdim=True)
    v = x.var(dim=axis, keepdim=True, unbiased=False)
    return (x - m) / torch.sqrt(v + eps)
def _scatter_add(tgt, idx, src, axis=0):
    return tgt.clone().index_add_(axis, idx, src)
def _segment_sum(src, seg, n):
    out = torch.zeros((n,) + src.shape[1:], dtype=src.dtype)
    return out.index_add_(0, seg, src)
def _pad(x, pw):
    flat = tuple(v for pair in reversed(pw) for v in pair)
    return torch.nn.functional.pad(x, flat)

kernel_name = 'concat_heads__ssm_conv_s5__grouped_kv_mqa__prompt'

def setup_inputs():

    _w = (lambda a: (lambda t: t.to(torch.bfloat16) if t.is_floating_point() else t)(torch.as_tensor(a)))
    def _A_setup():
        B, S, D = 1, 2048, 576
        P = D
        Lambda_re = -0.5 * (lambda _x: torch.exp(torch.as_tensor(_x)))((lambda *s: torch.randn(*s, dtype=torch.bfloat16) * 0.2)(P))
        Lambda_im = (lambda *s: torch.randn(*s, dtype=torch.bfloat16) * 0.4)(P) * 1.0
        B_re = (lambda *s: torch.randn(*s, dtype=torch.bfloat16) * 0.2)(P, D) * (D ** -0.5)
        B_im = (lambda *s: torch.randn(*s, dtype=torch.bfloat16) * 0.2)(P, D) * (D ** -0.5)
        C_re = (lambda *s: torch.randn(*s, dtype=torch.bfloat16) * 0.2)(D, P) * (P ** -0.5)
        C_im = (lambda *s: torch.randn(*s, dtype=torch.bfloat16) * 0.2)(D, P) * (P ** -0.5)
        log_dt = (lambda *s: torch.randn(*s, dtype=torch.bfloat16) * 0.2)(P) * 0.3 - 2.0
        Dskip = (lambda *s: torch.randn(*s, dtype=torch.bfloat16) * 0.05)(D)
        return {
            "x": _w((lambda *s: torch.randn(*s, dtype=torch.bfloat16) * 0.05)(B, S, D)),
            "Lambda_re": _w(Lambda_re),
            "Lambda_im": _w(Lambda_im),
            "B_re": _w(B_re),
            "B_im": _w(B_im),
            "C_re": _w(C_re),
            "C_im": _w(C_im),
            "log_dt": _w(log_dt),
            "Dskip": _w(Dskip),
        }
    _A_in = _A_setup()

    def _B_setup():
        B, S, D, H = 1, 2048, 576, 32
        Dh = D // H
        return {
            "x": _w((lambda *s: torch.randn(*s, dtype=torch.bfloat16) * 0.05)(B, S, D)),
            "wq": _w((lambda *s: torch.randn(*s, dtype=torch.bfloat16) * 0.8)(D, H * Dh)),
            "wk": _w((lambda *s: torch.randn(*s, dtype=torch.bfloat16) * 0.8)(D, Dh)),
            "wv": _w((lambda *s: torch.randn(*s, dtype=torch.bfloat16) * 0.05)(D, Dh)),
            "wo": _w((lambda *s: torch.randn(*s, dtype=torch.bfloat16) * 0.05)(H * Dh, D)),
        }
    _B_in = _B_setup()

    return {
        "A_x": _A_in["x"],
        "A_Lambda_re": _A_in["Lambda_re"],
        "A_Lambda_im": _A_in["Lambda_im"],
        "A_B_re": _A_in["B_re"],
        "A_B_im": _A_in["B_im"],
        "A_C_re": _A_in["C_re"],
        "A_C_im": _A_in["C_im"],
        "A_log_dt": _A_in["log_dt"],
        "A_Dskip": _A_in["Dskip"],
        "B_x": _B_in["x"],
        "B_wq": _B_in["wq"],
        "B_wk": _B_in["wk"],
        "B_wv": _B_in["wv"],
        "B_wo": _B_in["wo"],
    }

def reference(A_x, A_Lambda_re, A_Lambda_im, A_B_re, A_B_im, A_C_re, A_C_im, A_log_dt, A_Dskip, B_x, B_wq, B_wk, B_wv, B_wo):
    def _A_ref(x, Lambda_re, Lambda_im, B_re, B_im, C_re, C_im, log_dt, Dskip):
        Bsz, L, H = x.shape
        Lam = Lambda_re + 1j * Lambda_im
        Bmat = B_re + 1j * B_im
        Cmat = C_re + 1j * C_im
        dt = torch.exp(log_dt)
        Lam_bar = torch.exp(dt * Lam)
        B_bar = ((Lam_bar - 1.0) / Lam)[:, None] * Bmat
        Bu = torch.einsum("bld,pd->blp", x + 0j, B_bar)
        h = torch.zeros_like(Bu[:, 0, :])
        hs = []
        for t in range(L):
            h = Lam_bar[None, :] * h + Bu[:, t, :]
            hs.append(h)
        hseq = torch.stack(hs, 1)
        y = 2.0 * torch.einsum("blp,dp->bld", hseq, Cmat).real + x * Dskip[None, None, :]
        return y

    def _B_ref(x, wq, wk, wv, wo):
        B, S, D = x.shape
        H = 32
        Dh = D // H
        q = (lambda x, *d: x.permute(*d))((x @ wq).reshape(B, S, H, Dh), 0, 2, 1, 3)
        k = x @ wk
        v = x @ wv
        scores = torch.einsum("bhqd,bkd->bhqk", q, k) * (Dh ** -0.5)
        p = _softmax(scores, axis=-1)
        o = torch.einsum("bhqk,bkd->bhqd", p, v)
        return (lambda x, *d: x.permute(*d))(o, 0, 2, 1, 3).reshape(B, S, H * Dh) @ wo

    a = _A_ref(A_x, A_Lambda_re, A_Lambda_im, A_B_re, A_B_im, A_C_re, A_C_im, A_log_dt, A_Dskip)
    b = _B_ref(B_x, B_wq, B_wk, B_wv, B_wo)
    return torch.concatenate([a, b], axis=-1)
```

```python
import re

class Prog:
    def __init__(self):
        self.lines = []
    def I(self, s):
        for l in s.strip().split("\n"):
            l = l.strip()
            if l: self.lines.append(l)
    def L(self, name): self.lines.append(name + ":")
    def C(self, s): self.lines.append("; " + s)
    def ext(self, lst):
        for l in lst: self.I(l)

def vr(a, n=1): return f"v{a}" if n == 1 else f"v[{a}:{a+n-1}]"
def sr(a, n=1): return f"s{a}" if n == 1 else f"s[{a}:{a+n-1}]"

REG = re.compile(r"(?<![\w.])([vas])(?:(\d+)|\[(\d+):(\d+)\])(?![\w])")
def regs_of(op):
    out = set()
    op = op.strip()
    for m in REG.finditer(op):
        k = m.group(1)
        if m.group(2) is not None: out.add((k, int(m.group(2))))
        else:
            for i in range(int(m.group(3)), int(m.group(4)) + 1): out.add((k, i))
    if re.search(r"\bvcc\b", op): out |= {("s", 106), ("s", 107)}
    if re.search(r"\bvcc_lo\b", op): out.add(("s", 106))
    if re.search(r"\bvcc_hi\b", op): out.add(("s", 107))
    if re.search(r"\bexec\b", op): out |= {("s", 126), ("s", 127)}
    if re.search(r"\bm0\b", op): out.add(("s", 124))
    return out

TRANS = ("v_exp_", "v_log_", "v_rcp_", "v_rsq_", "v_sqrt_", "v_sin_", "v_cos_")
def mfma_passes(mn):
    if "32x32x16" in mn or "32x32x8" in mn: return 8
    if "16x16x32" in mn or "16x16x16" in mn: return 4
    if "_2b_" in mn: return 16
    if "_4b_" in mn: return 8
    if "_16b_" in mn: return 2
    raise ValueError(mn)

class Ins:
    __slots__ = ("text","mn","ops","kind","wr","rd","srcc","ab","states","lds_dma","wide_store_data")
def parse(text):
    t = text.split(";")[0].strip()
    ins = Ins(); ins.text = text
    parts = t.split(None, 1)
    mn = parts[0]; ins.mn = mn
    rest = parts[1] if len(parts) > 1 else ""
    ops = []; cur = ""; depth = 0
    for ch in rest:
        if ch == "[": depth += 1
        if ch == "]": depth -= 1
        if ch == "," and depth == 0: ops.append(cur.strip()); cur = ""
        else: cur += ch
    if cur.strip(): ops.append(cur.strip())
    ins.ops = ops
    ins.wr = set(); ins.rd = set(); ins.srcc = set(); ins.ab = set(); ins.lds_dma = False
    ins.wide_store_data = set()
    ins.states = 1
    R = [regs_of(o.split()[0] if (i == len(ops)-1 and not o.startswith("-") and not o.startswith("abs")) else o) for i, o in enumerate(ops)]
    if mn.startswith("v_mfma"):
        ins.kind = "mfma"; ins.wr = R[0]; ins.ab = R[1] | R[2]; ins.srcc = R[3]; ins.rd = ins.ab | ins.srcc
    elif mn.startswith("v_"):
        ins.kind = "valu"
        if mn.startswith("v_permlane") and "swap" in mn:
            ins.wr = R[0] | R[1]; ins.rd = R[0] | R[1]
        elif mn.startswith(("v_add_co", "v_sub_co", "v_addc_co", "v_subb_co", "v_subrev_co", "v_div_scale", "v_mad_u64")):
            ins.wr = R[0] | R[1]; ins.rd = set().union(*R[2:])
        elif mn.startswith("v_nop"):
            pass
        else:
            ins.wr = R[0]; ins.rd = set().union(*R[1:]) if len(R) > 1 else set()
            if mn.startswith(("v_fmac", "v_pk_fmac", "v_dot2c", "v_writelane", "v_mac")) or "UNUSED_PRESERVE" in t:
                ins.rd |= R[0]
            if mn.startswith("v_cmpx"): ins.wr |= {("s",126),("s",127)}
            if mn.startswith("v_cndmask") and len(ops) == 3: ins.rd |= {("s",106),("s",107)}
    elif mn.startswith(("buffer_", "global_", "flat_", "scratch_")):
        ins.kind = "vmem"
        toks = t.split()
        if "lds" in toks[1:] or "_lds_" in mn:
            ins.lds_dma = True; ins.rd = set().union(*R) | {("s",124)}
        elif "load" in mn:
            ins.wr = R[0]; ins.rd = set().union(*R[1:])
        elif "atomic" in mn:
            ins.rd = set().union(*R)
            if "sc0" in toks:
                if mn.startswith("buffer_"): ins.wr = R[0]
                else: ins.wr = R[0]; ins.rd = set().union(*R[1:])
        elif mn.startswith(("buffer_wbl2", "buffer_inv")):
            pass
        else:
            ins.rd = set().union(*R)
            if "x4" in mn or "x3" in mn:
                ins.wide_store_data = R[0] if mn.startswith("buffer_") else R[1]
    elif mn.startswith("ds_"):
        ins.kind = "ds"
        if mn.startswith(("ds_read", "ds_bpermute", "ds_permute", "ds_swizzle")) or "_rtn" in mn:
            ins.wr = R[0]; ins.rd = set().union(*R[1:])
        else:
            ins.rd = set().union(*R)
    elif mn.startswith("s_"):
        ins.kind = "salu"
        if mn == "s_nop": ins.states = int(ops[0], 0) + 1
        elif mn.startswith(("s_cmp", "s_cbranch", "s_branch", "s_waitcnt", "s_barrier", "s_endpgm", "s_setprio", "s_sleep", "s_bitcmp", "s_setreg", "s_sendmsg")):
            ins.rd = set().union(*R) if R else set()
        else:
            ins.wr = R[0] if R else set(); ins.rd = set().union(*R[1:]) if len(R) > 1 else set()
            if "saveexec" in mn: ins.wr |= {("s",126),("s",127)}
    else:
        raise ValueError("unknown instr: " + text)
    return ins

XD = {2: 5, 4: 8, 8: 12, 16: 20}
XC = {2: 4, 4: 6, 8: 10, 16: 18}
XW = {2: 1, 4: 3, 8: 7, 16: 15}

def need(prod, cons):
    n = 0
    pk, ck = prod.kind, cons.kind
    vw = {r for r in prod.wr if r[0] in "va"}
    sw = {r for r in prod.wr if r[0] == "s"}
    if pk == "valu":
        if ck == "mfma" and vw & cons.rd: n = max(n, 2)
        if prod.mn.startswith("v_dot") and vw & (cons.rd | cons.wr): n = max(n, 3)
        if ck == "mfma" and sw & {("s",126),("s",127)}: n = max(n, 4)
        if prod.mn.startswith(TRANS) and ck in ("valu",) and not cons.mn.startswith(TRANS) and vw & cons.rd: n = max(n, 1)
        if ck == "valu" and sw & cons.rd: n = max(n, 4 if cons.mn.startswith(("v_readlane","v_writelane")) else 2)
        if ck == "valu" and cons.mn.startswith("v_div_fmas") and sw & {("s",106),("s",107)}: n = max(n, 4)
        if ck == "vmem" and sw & cons.rd: n = max(n, 5)
        if ck == "salu" and sw & cons.rd: n = max(n, 1)
        if ck == "valu" and cons.mn.startswith(("v_readlane","v_readfirstlane")) and vw & cons.rd: n = max(n, 1)
        if ck == "valu" and cons.mn.startswith("v_permlane") and vw & cons.rd: n = max(n, 2)
        if ck == "valu" and ("dpp" in cons.text or "row_" in cons.text or "quad_perm" in cons.text) and vw & cons.rd: n = max(n, 2)
        if ck == "valu" and ("sdwa" in prod.mn or "op_sel" in prod.text) and not prod.mn.startswith("v_pk") and vw & (cons.rd | cons.wr): n = max(n, 1)
        if ck == "valu" and sw & {("s",126),("s",127)} and cons.mn.startswith(("v_readlane","v_readfirstlane","v_writelane","v_permlane")): n = max(n, 4)
    if pk == "mfma":
        p = mfma_passes(prod.mn)
        if ck == "mfma":
            if prod.wr & cons.ab: n = max(n, XD[p])
            if prod.wr & cons.srcc:
                if prod.wr == cons.srcc and mfma_passes(cons.mn) == p: n = max(n, 2 if p == 2 else 0)
                else: n = max(n, XC[p])
            elif prod.wr & cons.wr: n = max(n, XC[p])
        elif ck == "valu":
            if prod.wr & (cons.rd | cons.wr): n = max(n, XD[p])
            if prod.srcc & cons.wr: n = max(n, XW[p])
        elif ck in ("vmem", "ds"):
            if prod.wr & (cons.rd | cons.wr): n = max(n, XD[p])
            if prod.srcc & cons.wr: n = max(n, XW[p])
    if pk == "salu" and ("s",124) in prod.wr and cons.lds_dma: n = max(n, 1)
    if prod.wide_store_data and prod.wide_store_data & cons.wr:
        n = max(n, 2 if ck in ("valu","mfma") else 1)
    return n

MAXW = 20
def fix_hazards(lines):
    items = []
    for l in lines:
        s = l.split(";")[0].strip()
        if not s or s.startswith("."): items.append(("txt", l))
        elif s.endswith(":"): items.append(("lab", s[:-1], l))
        else: items.append(("ins", parse(l)))
    labhist = {}
    for it in range(4):
        out = []; hist = []; changed = False; total = 0
        for x in items:
            if x[0] == "txt": out.append(x[1]); continue
            if x[0] == "lab":
                hist = hist + labhist.get(x[1], [])
                out.append(x[2]); continue
            ins = x[1]
            req = 0
            for (p, d) in hist:
                n = need(p, ins)
                if n > d: req = max(req, n - d)
            if req:
                total += 1
                r = req
                while r > 0:
                    k = min(r, 16); out.append(f"s_nop {k-1}"); r -= k
                hist = [(p, d + req) for (p, d) in hist]
            out.append(ins.text)
            hist = [(p, d + ins.states) for (p, d) in hist if d + ins.states < MAXW]
            if ins.kind in ("valu", "mfma") or ins.wide_store_data or (ins.kind == "salu" and ("s",124) in ins.wr):
                hist.append((ins, 0))
            if ins.mn.startswith(("s_cbranch", "s_branch")):
                tgt = ins.ops[0]
                old = labhist.get(tgt, [])
                key = {(id(p), d) for p, d in old}
                new = [(p, d) for (p, d) in hist if (id(p), d) not in key]
                if new: labhist[tgt] = old + new; changed = True
                if ins.mn == "s_branch": hist = []
            if ins.mn == "s_endpgm": hist = []
        if not changed: break
    return out, total

def kernel_desc(name, vgpr, sgpr=102, accum=None):
    accum = accum if accum is not None else ((vgpr + 3)//4)*4
    return [".p2align 6", f".amdhsa_kernel {name}", f"  .amdhsa_next_free_vgpr {vgpr}", f"  .amdhsa_next_free_sgpr {sgpr}",
            f"  .amdhsa_accum_offset {accum}", "  .amdhsa_group_segment_fixed_size 0", "  .amdhsa_kernarg_size 136",
            "  .amdhsa_user_sgpr_count 2", "  .amdhsa_user_sgpr_kernarg_segment_ptr 1", "  .amdhsa_system_sgpr_workgroup_id_x 1",
            ".end_amdhsa_kernel"]
```

```python
from asmlib import *
import math, struct
WS_Q   = 0
WS_O   = WS_Q + 2048*576*2
WS_K0  = WS_O + 2048*576*2
WS_KX  = WS_K0 + 65536
WS_V   = WS_KX + 8192
WS_H   = WS_V + 131072
WS_P   = WS_H + 64*4*1152*16
WS_A   = WS_P + 64*576*8
WS_PW  = WS_A + 16*576*8
WS_END = WS_PW + 9*576*8
WS_SIZE = 268435456
P_AX, P_LRE, P_LIM, P_BRE, P_BIM, P_CRE, P_CIM, P_LDT, P_DSK, P_BX, P_WQ, P_WK, P_WV, P_WO, P_OUT, P_DBG, P_WS = [16+2*i for i in range(17)]
def f2u(f): return struct.unpack("<I", struct.pack("<f", f))[0]
QSCALE = math.log2(math.e) / math.sqrt(18.0)

def load_ptrs(p):
    p.I("s_load_dwordx16 s[16:31], s[0:1], 0")
    p.I("s_load_dwordx16 s[32:47], s[0:1], 64")
    p.I("s_load_dwordx2 s[48:49], s[0:1], 128")

def srd(p, d, ptr, nbytes, off=0):
    if off:
        p.I(f"s_add_u32 s{d}, s{ptr}, {off}")
        p.I(f"s_addc_u32 s{d+1}, s{ptr+1}, 0")
        p.I(f"s_and_b32 s{d+1}, s{d+1}, 0xffff")
    else:
        p.I(f"s_mov_b32 s{d}, s{ptr}")
        p.I(f"s_and_b32 s{d+1}, s{ptr+1}, 0xffff")
    p.I(f"s_mov_b32 s{d+2}, {nbytes}")
    p.I(f"s_mov_b32 s{d+3}, 0x20000")

def mfma(d, a, b, c=None, kind="32x32x16"):
    na = 4 if kind in ("32x32x16", "16x16x32") else 2
    nd = 16 if kind.startswith("32x32") else 4
    cs = "0" if c is None else vr(c, nd)
    return f"v_mfma_f32_{kind}_bf16 {vr(d,nd)}, {vr(a,na)}, {vr(b,na)}, {cs}"

def gemm_loader(p, tag, nch, nslots, slot_bytes, pieces, s_wb, s_t=60, pre_issue=None):
    P = len(pieces)
    ahead = nslots - 1
    def issue(c):
        for pc in pieces:
            (sd, vo, sf, lo, op) = pc[:5]
            wb = pc[5] if len(pc) > 5 else s_wb
            if callable(sd): sd = sd(c)
            p.I(f"s_add_u32 m0, s{wb}, {(c % nslots)*slot_bytes + lo}")
            p.I(f"s_mov_b32 s{s_t}, {sf(c)}")
            p.I(f"{op} v{vo}, s[{sd}:{sd+3}], s{s_t} offen lds")
    if pre_issue: pre_issue()
    for c in range(min(ahead, nch)): issue(c)
    for c in range(nch):
        inflight_after = min(nch - 1 - c, ahead - 1)
        p.I(f"s_waitcnt vmcnt({inflight_after*P})")
        p.I("s_barrier")
        if c + ahead < nch: issue(c + ahead)
    p.I("s_endpgm")

def gemm_compute(p, nch, ksteps, reads, mfmas, first_wait=None):
    tot = nch * ksteps
    p.I("s_barrier")
    p.ext(reads(0, 0, 0))
    for t in range(tot):
        c, s = divmod(t, ksteps)
        if t + 1 < tot:
            c1, s1 = divmod(t + 1, ksteps)
            r = reads(c1, s1, (t + 1) & 1)
            if s1 == 0:
                p.I("s_waitcnt lgkmcnt(0)")
                p.I("s_barrier")
                p.ext(r)
            else:
                p.ext(r)
                p.I(f"s_waitcnt lgkmcnt({len(r)})")
        else:
            p.I("s_waitcnt lgkmcnt(0)")
        p.ext(mfmas(c, s, t & 1, t == 0))

def kc_addr_setup(p, vbase, vl, vt):
    p.I(f"v_and_b32 v{vt}, 31, v{vl}")
    p.I(f"v_lshrrev_b32 v{vt+1}, 1, v{vt}")
    p.I(f"v_and_b32 v{vt+1}, 7, v{vt+1}")
    p.I(f"v_lshrrev_b32 v{vbase}, 5, v{vl}")
    p.I(f"v_xor_b32 v{vt+1}, v{vt+1}, v{vbase}")
    p.I(f"v_lshlrev_b32 v{vt+1}, 4, v{vt+1}")
    p.I(f"v_lshl_add_u32 v{vbase}, v{vt}, 7, v{vt+1}")

def kc_addr_finish(p, vbase, nwin=2):
    for s in range(1, 4): p.I(f"v_xor_b32 v{vbase+s}, {32*s}, v{vbase}")
    for w in range(1, nwin):
        for s in range(4): p.I(f"v_add_u32 v{vbase+4*w+s}, {65536*w}, v{vbase+s}")

def kc_read(dst, vbase, s, off):
    w, o = divmod(off, 65536)
    return f"ds_read_b128 {vr(dst,4)}, v{vbase+4*w+s} offset:{o}"

def kc_dma_voff(p, vd, vl, s_lw, vt, pitch, rowfn_a, wave_rows):
    p.I(f"v_lshrrev_b32 v{vt}, 3, v{vl}")
    p.I(f"v_lshrrev_b32 v{vt+1}, 4, v{vl}")
    p.I(f"s_and_b32 s61, s{s_lw}, 1")
    p.I(f"s_lshl_b32 s61, s61, 2")
    p.I(f"v_add_u32 v{vt+1}, s61, v{vt+1}")
    p.I(f"v_and_b32 v{vd}, 7, v{vl}")
    p.I(f"v_xor_b32 v{vd}, v{vd}, v{vt+1}")
    p.I(f"v_lshlrev_b32 v{vd}, 4, v{vd}")
    if rowfn_a == "scan":
        p.I(f"v_lshrrev_b32 v{vt+1}, 2, v{vt}")
        p.I(f"v_lshlrev_b32 v{vt+1}, 5, v{vt+1}")
        p.I(f"v_and_b32 v{vt}, 3, v{vt}")
        p.I(f"v_add_u32 v{vt}, v{vt}, v{vt+1}")
    p.I(f"s_mul_i32 s61, s{s_lw}, {wave_rows}")
    p.I(f"v_add_u32 v{vt}, s61, v{vt}")
    p.I(f"v_mul_u32_u24 v{vt}, {pitch}, v{vt}")
    p.I(f"v_add_u32 v{vd}, v{vd}, v{vt}")

def cmul(p, dr, di, ar, ai, br, bi, t):
    p.I(f"v_mul_f32 v{t}, v{ai}, v{bi}")
    p.I(f"v_mul_f32 v{t+1}, v{ai}, v{br}")
    p.I(f"v_fma_f32 v{t}, v{ar}, v{br}, -v{t}")
    p.I(f"v_fma_f32 v{di}, v{ar}, v{bi}, v{t+1}")
    p.I(f"v_mov_b32 v{dr}, v{t}")
```

```python
from common import *

def km_lane(p, vd, vl, vt, pitch, colbytes_fn):
    p.I(f"v_lshrrev_b32 v{vt}, 5, v{vl}")
    p.I(f"v_lshlrev_b32 v{vt}, 3, v{vt}")
    p.I(f"v_bfe_u32 v{vd}, v{vl}, 2, 2")
    p.I(f"v_add_u32 v{vt}, v{vt}, v{vd}")
    p.I(f"v_mul_u32_u24 v{vd}, {pitch}, v{vt}")
    colbytes_fn()
    p.I(f"v_add_u32 v{vd}, v{vd}, v{vt+1}")

def proj_gemm(p, tag, PX, xoff, xbytes, PW, s_tb, s_cb, epilogue):
    SLOT = 28672
    p.I(f"s_cmp_ge_u32 s3, 4")
    p.I(f"s_cbranch_scc0 {tag}_comp")
    srd(p, 64, PX, xbytes, xoff); srd(p, 68, PW, 576*1152)
    kc_dma_voff(p, 2, 0, 6, 10, 1152, "plain", 8)
    p.I(f"s_mul_i32 s61, s{s_tb}, {128*1152}")
    p.I("v_add_u32 v2, s61, v2")
    p.I("s_lshl_b32 s62, s6, 10")
    p.I("s_lshl_b32 s61, s6, 6")
    p.I(f"s_mul_i32 s63, s{s_cb}, 192")
    for i in range(3):
        p.I(f"v_add_u32 v10, s61, v0")
        p.I(f"v_add_u32 v10, {256*i}, v10")
        p.I(f"v_mul_u32_u24 v11, 5462, v10")
        p.I(f"v_lshrrev_b32 v11, 16, v11")
        p.I(f"v_mul_u32_u24 v12, 12, v11")
        p.I(f"v_sub_u32 v12, v10, v12")
        p.I(f"v_mul_u32_u24 v11, 1152, v11")
        p.I(f"v_lshl_add_u32 v{3+i}, v12, 4, v11")
        p.I(f"v_add_u32 v{3+i}, s63, v{3+i}")
    pieces = []
    for i in range(4): pieces.append((64, 2, (lambda c, i=i: c*128 + 32*i*1152), i*4096, "buffer_load_dwordx4"))
    for i in range(3): pieces.append((68, 3+i, (lambda c: c*64*1152), 16384 + i*4096, "buffer_load_dwordx4"))
    gemm_loader(p, tag, 9, 4, SLOT, pieces, 62)
    p.L(f"{tag}_comp")
    VX, VW = 2, 10
    kc_addr_setup(p, VX, 0, 12)
    p.I("s_lshl_b32 s61, s6, 12")
    p.I(f"v_add_u32 v{VX}, s61, v{VX}")
    kc_addr_finish(p, VX)
    def colb():
        p.I("v_bfe_u32 v13, v0, 4, 1")
        p.I("v_lshlrev_b32 v13, 5, v13")
        p.I("v_and_b32 v14, 3, v0")
        p.I("v_lshl_add_u32 v13, v14, 3, v13")
    km_lane(p, VW, 0, 12, 192, colb)
    p.I(f"v_add_u32 v{VW+1}, 65536, v{VW}")
    ACC = 16; FR = 64
    def reads(c, s, b):
        base = (c % 4) * SLOT
        r = [kc_read(FR + 16*b, VX, s, base)]
        for nt in range(3):
            for e in range(2):
                off = base + 16384 + (16*s + 4*e)*192 + 64*nt
                w, o = divmod(off, 65536)
                r.append(f"ds_read_b64_tr_b16 {vr(FR+16*b+4+4*nt+2*e, 2)}, v{VW+w} offset:{o}")
        return r
    def mf(c, s, b, first):
        return [mfma(ACC+16*nt, FR+16*b+4+4*nt, FR+16*b, None if first else ACC+16*nt) for nt in range(3)]
    gemm_compute(p, 9, 4, reads, mf)
    epilogue(ACC)
    p.I("s_endpgm")

def gen_k1(name):
    p = Prog()
    p.L(name)
    p.I("s_cmp_ge_u32 s2, 256")
    p.I(f"s_cbranch_scc1 {name}_end")
    load_ptrs(p)
    p.I("v_lshrrev_b32 v1, 6, v0")
    p.I("v_and_b32 v0, 63, v0")
    p.I("v_readfirstlane_b32 s3, v1")
    p.I("s_and_b32 s4, s2, 7")
    p.I("s_lshl_b32 s4, s4, 1")
    p.I("s_bfe_u32 s5, s2, 0x10003")
    p.I("s_add_u32 s4, s4, s5")
    p.I("s_lshr_b32 s5, s2, 4")
    p.I("s_and_b32 s6, s3, 3")
    p.I("s_waitcnt lgkmcnt(0)")
    p.I("s_cmp_lt_u32 s5, 9")
    p.I("s_cbranch_scc1 k1_t3")
    p.I("s_cmp_eq_u32 s5, 15")
    p.I("s_cbranch_scc1 k1_t2")
    p.I("s_sub_u32 s7, s5, 9")
    def epi_q(ACC):
        srd(p, 64, P_WS, 2048*1152, WS_Q)
        p.I("v_and_b32 v12, 31, v0")
        p.I("s_lshl_b32 s61, s4, 7")
        p.I("s_lshl_b32 s62, s6, 5")
        p.I("s_add_u32 s61, s61, s62")
        p.I("v_add_u32 v12, s61, v12")
        p.I("v_mul_u32_u24 v12, 1152, v12")
        p.I("v_lshrrev_b32 v13, 5, v0")
        p.I("v_lshl_add_u32 v12, v13, 3, v12")
        p.I("s_mul_i32 s61, s7, 192")
        p.I("v_add_u32 v12, s61, v12")
        p.I(f"s_mov_b32 s62, {f2u(QSCALE)}")
        for nt in range(3):
            for g in range(4):
                a = ACC + 16*nt + 4*g
                for e in range(4): p.I(f"v_mul_f32 v{a+e}, s62, v{a+e}")
                p.I(f"v_cvt_pk_bf16_f32 v{a}, v{a}, v{a+1}")
                p.I(f"v_cvt_pk_bf16_f32 v{a+1}, v{a+2}, v{a+3}")
                p.I(f"buffer_store_dwordx2 {vr(a,2)}, v12, s[64:67], 0 offen offset:{64*nt+16*g}")
    proj_gemm(p, "k1_t1", P_BX, 0, 2048*1152, P_WQ, 4, 7, epi_q)

    p.L("k1_t2")
    IMG = 23552
    p.I("s_cmp_ge_u32 s3, 4")
    p.I("s_cbranch_scc0 k1_t2_comp")
    srd(p, 64, P_BX, 2048*1152); srd(p, 68, P_WK, 576*36); srd(p, 72, P_WV, 576*36)
    kc_dma_voff(p, 2, 0, 6, 10, 1152, "plain", 8)
    p.I(f"s_mul_i32 s61, s4, {128*1152}")
    p.I("v_add_u32 v2, s61, v2")
    p.I("s_lshl_b32 s62, s6, 10")
    p.I("s_lshl_b32 s63, s6, 8")
    p.I("s_lshl_b32 s61, s6, 6")
    for i in range(5):
        p.I("v_add_u32 v10, s61, v0")
        p.I(f"v_add_u32 v10, {256*i}, v10")
        p.I("v_mul_u32_u24 v11, 6554, v10")
        p.I("v_lshrrev_b32 v11, 16, v11")
        p.I("v_mul_u32_u24 v12, 10, v11")
        p.I("v_sub_u32 v12, v10, v12")
        p.I("v_min_u32 v12, 8, v12")
        p.I("v_mul_u32_u24 v11, 36, v11")
        p.I(f"v_lshl_add_u32 v{3+i}, v12, 2, v11")
    def pre():
        for (sd, base) in ((68, 65536), (72, 65536 + IMG)):
            for i in range(23):
                p.I(f"s_add_u32 m0, s63, {base + i*1024}")
                p.I(f"s_mov_b32 s60, {(i//5)*128*36}")
                p.I(f"buffer_load_dword v{3+i%5}, s[{sd}:{sd+3}], s60 offen lds")
    pieces = [(64, 2, (lambda c, i=i: c*128 + 32*i*1152), i*4096, "buffer_load_dwordx4") for i in range(4)]
    gemm_loader(p, "k1_t2", 9, 4, 16384, pieces, 62, pre_issue=pre)
    p.L("k1_t2_comp")
    VX, VW = 2, 10
    kc_addr_setup(p, VX, 0, 12)
    p.I("s_lshl_b32 s61, s6, 12")
    p.I(f"v_add_u32 v{VX}, s61, v{VX}")
    kc_addr_finish(p, VX, 1)
    def colb():
        p.I("v_and_b32 v13, 1, v0")
        p.I("v_lshlrev_b32 v13, 1, v13")
        p.I("v_bfe_u32 v14, v0, 1, 1")
        p.I("v_or_b32 v13, v13, v14")
        p.I("v_bfe_u32 v14, v0, 4, 1")
        p.I("v_cmp_eq_u32 vcc, 1, v14")
        p.I("v_cndmask_b32 v13, v13, 4, vcc") if False else p.I("v_mov_b32 v14, 4")
        p.I("v_cndmask_b32 v13, v13, v14, vcc")
        p.I("v_lshlrev_b32 v13, 3, v13")
    km_lane(p, VW, 0, 12, 40, colb)
    p.I(f"v_add_u32 v{VW}, 65536, v{VW}")
    AK, AV, FR = 16, 32, 64
    def reads(c, s, b):
        r = [kc_read(FR+16*b, VX, s, (c % 4)*16384)]
        for m in range(2):
            for e in range(2):
                r.append(f"ds_read_b64_tr_b16 {vr(FR+16*b+4+4*m+2*e,2)}, v{VW} offset:{m*IMG + (c*64+16*s+4*e)*40}")
        return r
    def mf(c, s, b, first):
        return [mfma(AK, FR+16*b+4, FR+16*b, None if first else AK), mfma(AV, FR+16*b, FR+16*b+8, None if first else AV)]
    gemm_compute(p, 9, 4, reads, mf)
    srd(p, 64, P_WS, WS_H - WS_K0, WS_K0)
    p.I("s_lshl_b32 s7, s4, 2")
    p.I("s_add_u32 s7, s7, s6")
    p.I("v_lshlrev_b32 v12, 4, v0")
    for i in range(5): p.I(f"v_cvt_pk_bf16_f32 v{48+i}, v{AK+2*i}, v{AK+2*i+1}")
    p.I("s_lshl_b32 s61, s7, 10")
    p.I("buffer_store_dwordx4 v[48:51], v12, s[64:67], s61 offen")
    p.I("s_lshr_b32 s61, s7, 3")
    p.I("s_lshl_b32 s61, s61, 10")
    p.I("s_bfe_u32 s62, s7, 0x10001")
    p.I("s_lshl_b32 s62, s62, 9")
    p.I("s_add_u32 s61, s61, s62")
    p.I("s_bfe_u32 s62, s7, 0x10002")
    p.I("s_lshl_b32 s62, s62, 3")
    p.I("s_add_u32 s61, s61, s62")
    p.I("s_and_b32 s62, s7, 1")
    p.I("s_lshl_b32 s62, s62, 2")
    p.I("s_add_u32 s61, s61, s62")
    p.I(f"s_add_u32 s61, s61, {WS_KX-WS_K0}")
    p.I("v_lshrrev_b32 v13, 5, v0")
    p.I("v_lshlrev_b32 v13, 28, v13")
    p.I("v_add_u32 v13, v13, v12")
    p.I("buffer_store_dword v52, v13, s[64:67], s61 offen")
    for i in range(8): p.I(f"v_cvt_pk_bf16_f32 v{56+i}, v{AV+2*i}, v{AV+2*i+1}")
    p.I("v_and_b32 v14, 31, v0")
    p.I("v_cmp_eq_u32 vcc, 20, v14")
    p.I("v_mov_b32 v15, 0x3f803f80")
    for i in range(8): p.I(f"v_cndmask_b32 v{56+i}, v{56+i}, v15, vcc")
    p.I("s_lshl_b32 s61, s7, 11")
    p.I(f"s_add_u32 s61, s61, {WS_V-WS_K0}")
    p.I("buffer_store_dwordx4 v[56:59], v12, s[64:67], s61 offen")
    p.I("buffer_store_dwordx4 v[60:63], v12, s[64:67], s61 offen offset:1024")
    p.I("s_endpgm")

    p.L("k1_t3")
    p.I("s_cmp_ge_u32 s3, 4")
    p.I("s_cbranch_scc0 k1_t3_comp")
    srd(p, 64, P_AX, 2048*1152); srd(p, 68, P_BRE, 576*1152); srd(p, 72, P_BIM, 576*1152)
    kc_dma_voff(p, 2, 0, 6, 10, 1152, "scan", 4)
    p.I(f"s_mul_i32 s61, s4, {128*1152}")
    p.I("v_add_u32 v2, s61, v2")
    kc_dma_voff(p, 3, 0, 6, 10, 1152, "plain", 8)
    p.I(f"s_mul_i32 s61, s5, {64*1152}")
    p.I("v_add_u32 v3, s61, v3")
    p.I("s_lshl_b32 s62, s6, 10")
    pieces = []
    for i in range(4): pieces.append((64, 2, (lambda c, i=i: c*128 + (64*(i>>1) + 16*(i&1))*1152), i*4096, "buffer_load_dwordx4"))
    for i in range(2): pieces.append((68, 3, (lambda c, i=i: c*128 + 32*i*1152), 16384 + i*4096, "buffer_load_dwordx4"))
    for i in range(2): pieces.append((72, 3, (lambda c, i=i: c*128 + 32*i*1152), 24576 + i*4096, "buffer_load_dwordx4"))
    gemm_loader(p, "k1_t3", 9, 4, 32768, pieces, 62)
    p.L("k1_t3_comp")
    p.I("s_and_b32 s7, s6, 1")
    p.I("s_lshr_b32 s8, s6, 1")
    p.I("s_lshl_b32 s61, s5, 6")
    p.I("s_lshl_b32 s62, s8, 5")
    p.I("s_add_u32 s61, s61, s62")
    p.I("v_and_b32 v1, 31, v0")
    p.I("v_add_u32 v1, s61, v1")
    p.I("v_lshlrev_b32 v20, 1, v1")
    p.I(f"global_load_ushort v21, v20, s[{P_LRE}:{P_LRE+1}]")
    p.I(f"global_load_ushort v22, v20, s[{P_LIM}:{P_LIM+1}]")
    p.I(f"global_load_ushort v23, v20, s[{P_LDT}:{P_LDT+1}]")
    VX, VB = 2, 10
    kc_addr_setup(p, VX, 0, 18)
    p.I(f"v_mov_b32 v{VB}, v{VX}")
    p.I("s_lshl_b32 s61, s7, 13")
    p.I(f"v_add_u32 v{VX}, s61, v{VX}")
    p.I("s_lshl_b32 s61, s8, 12")
    p.I(f"v_add_u32 v{VB}, s61, v{VB}")
    kc_addr_finish(p, VX); kc_addr_finish(p, VB)
    LOG2E = f2u(math.log2(math.e))
    p.I("s_waitcnt vmcnt(0)")
    p.I("v_lshlrev_b32 v21, 16, v21")
    p.I("v_lshlrev_b32 v22, 16, v22")
    p.I("v_lshlrev_b32 v23, 16, v23")
    p.I(f"v_mul_f32 v23, {LOG2E}, v23")
    p.I("v_exp_f32 v23, v23")
    p.I("v_cvt_pk_bf16_f32 v23, v23, v23")
    p.I("v_lshlrev_b32 v23, 16, v23")
    p.I("v_mul_f32 v36, v23, v21")
    p.I("v_mul_f32 v37, v23, v22")
    p.I(f"v_mul_f32 v36, {LOG2E}, v36")
    p.I("v_exp_f32 v36, v36")
    p.I("v_mul_f32 v37, 0.15915494, v37")
    p.I("v_rndne_f32 v38, v37")
    p.I("v_sub_f32 v37, v37, v38")
    p.I("v_cos_f32 v24, v37")
    p.I("v_sin_f32 v25, v37")
    p.I("v_mul_f32 v24, v36, v24")
    p.I("v_mul_f32 v25, v36, v25")
    p.I("v_sub_f32 v26, 0, v25")
    p.I("v_add_f32 v36, -1.0, v24")
    p.I("v_mul_f32 v37, v21, v21")
    p.I("v_fmac_f32 v37, v22, v22")
    p.I("v_rcp_f32 v37, v37")
    p.I("v_mul_f32 v38, v36, v21")
    p.I("v_fmac_f32 v38, v25, v22")
    p.I("v_mul_f32 v39, v25, v21")
    p.I("v_fma_f32 v39, -v36, v22, v39")
    p.I("v_add_f32 v37, v37, v37")
    p.I("v_mul_f32 v28, v38, v37"); p.I("v_mov_b32 v29, v28")
    p.I("v_mul_f32 v30, v39, v37"); p.I("v_sub_f32 v30, 0, v30"); p.I("v_mov_b32 v31, v30")
    p.I("v_sub_f32 v32, 0, v28"); p.I("v_mov_b32 v33, v32")
    p.I("v_mov_b32 v40, v24"); p.I("v_mov_b32 v41, v26")
    cmul(p, 44, 45, 40, 41, 40, 41, 36)
    for _ in range(3): cmul(p, 44, 45, 44, 45, 44, 45, 36)
    cmul(p, 34, 35, 44, 45, 44, 45, 36)
    p.I("s_cmp_lg_u32 s4, 0"); p.I("s_cbranch_scc1 k1_t3_nopw")
    p.I("s_cmp_lg_u32 s7, 0"); p.I("s_cbranch_scc1 k1_t3_nopw")
    srd(p, 64, P_WS, 9*576*8, WS_PW)
    p.I("v_lshlrev_b32 v20, 3, v1")
    for m in range(8):
        p.I(f"s_mov_b32 s61, {m*4608}")
        p.I("buffer_store_dwordx2 v[40:41], v20, s[64:67], s61 offen")
        if m < 7:
            cmul(p, 42, 43, 40, 41, 44, 45, 36)
            p.I("s_nop 0")
            p.I("v_mov_b32 v40, v42"); p.I("v_mov_b32 v41, v43")
    cmul(p, 42, 43, 34, 35, 34, 35, 36)
    cmul(p, 42, 43, 42, 43, 42, 43, 36)
    p.I(f"s_mov_b32 s61, {8*4608}")
    p.I("buffer_store_dwordx2 v[42:43], v20, s[64:67], s61 offen")
    p.L("k1_t3_nopw")
    AR, AI, FR = 64, 96, 128
    def reads(c, s, b):
        base = (c % 4) * 32768
        f = FR + 16*b
        return [kc_read(f, VX, s, base), kc_read(f+8, VB, s, base + 16384), kc_read(f+4, VX, s, base + 4096), kc_read(f+12, VB, s, base + 24576)]
    def mf(c, s, b, first):
        f = FR + 16*b
        return [mfma(AR, f, f+8, None if first else AR), mfma(AR+16, f+4, f+8, None if first else AR+16),
                mfma(AI, f, f+12, None if first else AI), mfma(AI+16, f+4, f+12, None if first else AI+16)]
    gemm_compute(p, 9, 4, reads, mf)
    srd(p, 64, P_WS, WS_PW - WS_H, WS_H)
    p.I("s_lshl_b32 s9, s4, 2")
    p.I("s_lshl_b32 s61, s7, 1")
    p.I("s_add_u32 s9, s9, s61")
    p.I("v_lshrrev_b32 v19, 5, v0")
    p.I("v_add_u32 v18, s9, v19")
    p.I(f"v_mul_u32_u24 v20, {4*1152}, v18")
    p.I("v_add_u32 v20, v20, v1")
    p.I("v_lshlrev_b32 v20, 4, v20")
    p.I(f"v_mul_u32_u24 v21, 576, v18")
    p.I("v_add_u32 v21, v21, v1")
    p.I("v_lshlrev_b32 v21, 3, v21")
    for t in range(1, 32):
        p.I(f"v_fmac_f32 v{AR+t}, v24, v{AR+t-1}")
        p.I(f"v_fmac_f32 v{AI+t}, v24, v{AI+t-1}")
        p.I(f"v_fmac_f32 v{AR+t}, v26, v{AI+t-1}")
        p.I(f"v_fmac_f32 v{AI+t}, v25, v{AR+t-1}")
    PKR, PKI = 128, 144
    for t in range(0, 32, 2):
        p.I(f"v_pk_mul_f32 v[36:37], {vr(AI+t,2)}, v[30:31]")
        p.I(f"v_pk_mul_f32 v[38:39], {vr(AR+t,2)}, v[30:31]")
        p.I(f"v_pk_fma_f32 v[36:37], {vr(AR+t,2)}, v[28:29], v[36:37]")
        p.I(f"v_pk_fma_f32 v[38:39], {vr(AI+t,2)}, v[32:33], v[38:39]")
        p.I(f"v_cvt_pk_bf16_f32 v{PKR+t//2}, v36, v37")
        p.I(f"v_cvt_pk_bf16_f32 v{PKI+t//2}, v38, v39")
        if t % 8 == 6:
            q = t // 8
            p.I(f"s_mov_b32 s61, {q*18432}")
            p.I(f"buffer_store_dwordx4 {vr(PKR+4*q,4)}, v20, s[64:67], s61 offen")
            p.I(f"s_mov_b32 s61, {q*18432+9216}")
            p.I(f"buffer_store_dwordx4 {vr(PKI+4*q,4)}, v20, s[64:67], s61 offen")
    p.I("v_mov_b32 v40, v37"); p.I("v_mov_b32 v41, v39")
    p.I("v_and_b32 v22, 31, v0")
    p.I("s_lshl_b32 s61, s8, 5")
    p.I("v_add_u32 v22, s61, v22")
    p.I("v_lshlrev_b32 v22, 5, v22")
    p.I("v_add_u32 v22, 0x20000, v22")
    p.I("s_lshl_b32 s61, s7, 4")
    p.I("v_lshl_add_u32 v23, v19, 3, v22")
    p.I("v_add_u32 v23, s61, v23")
    p.I("ds_write_b64 v23, v[40:41]")
    p.I("s_waitcnt lgkmcnt(0)")
    p.I("s_barrier")
    p.I("ds_read_b128 v[48:51], v22")
    p.I("ds_read_b128 v[52:55], v22 offset:16")
    p.I("v_cmp_eq_u32 vcc, 1, v19")
    p.I("s_waitcnt lgkmcnt(0)")
    def chain(dr, di, ar, ai, er, ei):
        p.I(f"v_fma_f32 v{dr}, v34, v{ar}, v{er}")
        p.I(f"v_fma_f32 v{di}, v34, v{ai}, v{ei}")
        p.I(f"v_fma_f32 v{dr}, -v35, v{ai}, v{dr}")
        p.I(f"v_fma_f32 v{di}, v35, v{ar}, v{di}")
    p.I("s_cmp_eq_u32 s7, 1")
    p.I("s_cbranch_scc1 k1_t3_th1")
    p.I("v_cndmask_b32 v56, 0, v48, vcc")
    p.I("v_cndmask_b32 v57, 0, v49, vcc")
    p.I(f"s_mov_b32 s61, {WS_P-WS_H}")
    p.I("buffer_store_dwordx2 v[56:57], v21, s[64:67], s61 offen")
    p.I("s_endpgm")
    p.L("k1_t3_th1")
    chain(56, 57, 48, 49, 50, 51)
    chain(58, 59, 56, 57, 52, 53)
    chain(60, 61, 58, 59, 54, 55)
    p.I("v_cndmask_b32 v56, v56, v58, vcc")
    p.I("v_cndmask_b32 v57, v57, v59, vcc")
    p.I(f"s_mov_b32 s61, {WS_P-WS_H}")
    p.I("buffer_store_dwordx2 v[56:57], v21, s[64:67], s61 offen")
    p.I(f"s_mul_i32 s61, s4, {576*8}")
    p.I(f"s_add_u32 s61, s61, {WS_A-WS_H}")
    p.I("v_lshlrev_b32 v22, 3, v1")
    p.I("buffer_store_dwordx2 v[60:61], v22, s[64:67], s61 offen")
    p.L(f"{name}_end")
    p.I("s_endpgm")
    return p, 160, 133120
```

```python
from common import *

KX, K0, VV, S0, S1, O0, O1, QB0, QB1, HX = 16, 20, 52, 116, 132, 148, 164, 180, 192, 204
SLOT = 2576
V_Q0, V_QA, V_QB, V_KV, V_VA, V_O16, V_O8, V_I16, V_I8, V_ONE, V_F, V_H = 2, 3, 4, 5, 6, 7, 8, 9, 10, 11, 12, 13
SQ, SKV, SH, SO = 52, 56, 60, 64

def pk_cfma(p, d, a, b, c, t):
    if c is None: p.I(f"v_pk_mul_f32 {vr(t,2)}, {vr(a,2)}, {vr(b,2)} op_sel_hi:[1,0]")
    else: p.I(f"v_pk_fma_f32 {vr(t,2)}, {vr(a,2)}, {vr(b,2)}, {vr(c,2)} op_sel_hi:[1,0,1]")
    p.I(f"v_pk_fma_f32 {vr(d,2)}, {vr(a,2)}, {vr(b,2)}, {vr(t,2)} op_sel:[1,1,0] op_sel_hi:[0,1,1] neg_lo:[0,1,0]")

def q_loads(p, qb, soff):
    p.I(f"buffer_load_dwordx4 {vr(qb,4)}, v{V_Q0}, s[{SQ}:{SQ+3}], s{soff} offen")
    p.I(f"buffer_load_dword v{qb+4}, v{V_QA}, s[{SQ}:{SQ+3}], s{soff} offen")
    p.I(f"buffer_load_dword v{qb+7}, v{V_QA}, s[{SQ}:{SQ+3}], s{soff} offen")
    p.I(f"buffer_load_dword v{qb+8}, v{V_QB}, s[{SQ}:{SQ+3}], s{soff} offen")
    p.I(f"buffer_load_dword v{qb+11}, v{V_QB}, s[{SQ}:{SQ+3}], s{soff} offen")

def x8(j, s, qb, c=None): return mfma(s, KX + 2*(j >> 2), qb + 4 + 2*(j & 3), c, "32x32x8")
def x16(j, s, qb): return mfma(s, K0 + 4*j, qb, s)
def pv(j, m, s, o): return mfma(o, VV + 8*j + 4*m, s + 4*m, o)
def ex(r): return f"v_exp_f32 v{r}, v{r}"
def cv(s, k): return f"v_cvt_pk_bf16_f32 v{s+k}, v{s+2*k}, v{s+2*k+1}"

def ld_k0(p, j, sb):
    p.I(f"s_add_u32 s7, s{sb}, {j*1024}")
    p.I(f"buffer_load_dwordx4 {vr(K0+4*j,4)}, v{V_KV}, s[{SKV}:{SKV+3}], s7 offen")
def ld_v(p, j, sb):
    p.I(f"s_add_u32 s7, s{sb}, {j*2048}")
    p.I(f"buffer_load_dwordx4 {vr(VV+8*j,4)}, v{V_VA}, s[{SKV}:{SKV+3}], s7 offen")
    p.I(f"buffer_load_dwordx4 {vr(VV+8*j+4,4)}, v{V_VA}, s[{SKV}:{SKV+3}], s7 offen offset:1024")
def kv_bases(p, g):
    p.I(f"s_lshl_b32 s13, s{g}, 13")
    p.I(f"s_lshl_b32 s14, s{g}, 14")
    p.I(f"s_add_u32 s14, s14, {WS_V-WS_K0}")
    p.I(f"s_lshl_b32 s15, s{g}, 10")
    p.I(f"s_add_u32 s15, s15, {WS_KX-WS_K0}")

def fixup_loads(p):
    p.I("s_mul_i32 s7, s5, 3641"); p.I("s_lshr_b32 s7, s7, 16")
    p.I("s_mul_i32 s9, s7, 18"); p.I("s_sub_u32 s9, s5, s9")
    p.I("s_add_u32 s7, s7, 1")
    p.I("s_cmp_ge_u32 s9, 9"); p.I("s_cselect_b32 s10, 1, 0")
    p.I("s_mul_i32 s11, s10, 9"); p.I("s_sub_u32 s9, s9, s11")
    p.I("s_lshl_b32 s9, s9, 6")
    p.I(f"v_add_u32 v{V_H}, s9, v0")
    p.I(f"v_lshlrev_b32 v14, 3, v{V_H}")
    p.I(f"v_lshlrev_b32 v{V_H}, 4, v{V_H}")
    p.I("s_lshr_b32 s68, s7, 2")
    T = HX + 16
    def ld2(d, s): p.I(f"buffer_load_dwordx2 {vr(d,2)}, v14, s[{SH}:{SH+3}], s{s} offen")
    p.I(f"s_mov_b32 s11, {WS_PW-WS_H+8*4608}"); ld2(T+6, 11)
    for jj in range(15):
        p.I(f"s_cmp_le_u32 s68, {jj}"); p.I("s_cbranch_scc1 k2_fx_ld")
        p.I(f"s_mov_b32 s11, {WS_A-WS_H+jj*4608}"); ld2(S0+2*jj, 11)
    p.L("k2_fx_ld")
    p.I(f"s_mov_b32 s11, {WS_PW-WS_H}"); ld2(T, 11)
    p.I("s_mul_i32 s9, s10, 4608"); p.I("s_add_u32 s11, s11, s9"); ld2(T+2, 11)
    p.I("s_and_b32 s9, s7, 3"); p.I("s_mul_i32 s9, s9, 9216"); p.I("s_add_u32 s11, s11, s9"); ld2(T+4, 11)
    p.I("s_mul_i32 s11, s7, 4608"); p.I(f"s_add_u32 s11, s11, {WS_P-WS_H}"); ld2(T+8, 11)
    p.I("s_lshl_b32 s6, s7, 1"); p.I("s_add_u32 s6, s6, s10"); p.I(f"s_mul_i32 s6, s6, {2*18432}")
    for i in range(4):
        p.I(f"s_add_u32 s11, s6, {i*9216}")
        p.I(f"buffer_load_dwordx4 {vr(HX+4*i,4)}, v{V_H}, s[{SH}:{SH+3}], s11 offen")

def fixup_compute(p, nyounger):
    T = HX + 16
    PW0, PWH, PWC, L128, PP, G, X, Y, TM = T, T+2, T+4, T+6, T+8, T+10, T+12, T+14, T+16
    p.I(f"v_mov_b32 v{G}, 0"); p.I(f"v_mov_b32 v{G+1}, 0")
    p.I("s_mov_b32 s10, 0x3f80"); p.I("s_mov_b32 s11, 0x3f800000")
    p.I(f"s_waitcnt vmcnt({nyounger+8})")
    for jj in range(15):
        p.I(f"s_cmp_le_u32 s68, {jj}"); p.I("s_cbranch_scc1 k2_fx_h")
        pk_cfma(p, G, G, L128, S0+2*jj, TM)
    p.L("k2_fx_h")
    p.I(f"s_waitcnt vmcnt({nyounger+4})")
    pk_cfma(p, X, PP, PWH, None, X)
    pk_cfma(p, L128, PW0, PW0, None, L128)
    pk_cfma(p, X, G, PWC, X, TM)
    pk_cfma(p, Y, X, PW0, None, Y)
    p.I(f"s_waitcnt vmcnt({nyounger})")
    for k in range(8):
        q, e = divmod(k, 4)
        hr, hi = HX + 8*q + e, HX + 8*q + 4 + e
        p.I(f"v_dot2_f32_bf16 v{TM}, v{hr}, s10, v{X}")
        p.I(f"v_dot2_f32_bf16 v{TM+1}, v{hr}, s11, v{Y}")
        p.I(f"v_dot2_f32_bf16 v{TM+2}, v{hi}, s10, v{X+1}")
        p.I(f"v_dot2_f32_bf16 v{TM+3}, v{hi}, s11, v{Y+1}")
        if k < 7:
            p.I(f"v_pk_mul_f32 {vr(TM+4,2)}, {vr(X,2)}, {vr(L128,2)} op_sel_hi:[1,0]")
            p.I(f"v_pk_mul_f32 {vr(TM+6,2)}, {vr(Y,2)}, {vr(L128,2)} op_sel_hi:[1,0]")
        p.I(f"v_cvt_pk_bf16_f32 v{hr}, v{TM}, v{TM+1}")
        p.I(f"v_cvt_pk_bf16_f32 v{hi}, v{TM+2}, v{TM+3}")
        if k < 7:
            for (g, t) in ((X, TM+4), (Y, TM+6)):
                p.I(f"v_pk_fma_f32 {vr(g,2)}, {vr(g,2)}, {vr(L128,2)}, {vr(t,2)} op_sel:[1,1,0] op_sel_hi:[0,1,1] neg_lo:[0,1,0]")

def gen_k2(name):
    p = Prog()
    p.L(name)
    p.I("s_cmp_ge_u32 s2, 256")
    p.I(f"s_cbranch_scc1 {name}_end")
    p.I("s_load_dwordx2 s[48:49], s[0:1], 128")
    p.I("v_lshrrev_b32 v1, 6, v0")
    p.I("v_and_b32 v0, 63, v0")
    p.I("v_readfirstlane_b32 s3, v1")
    p.I("v_and_b32 v14, 31, v0")
    p.I("v_lshrrev_b32 v15, 5, v0")
    p.I(f"v_lshrrev_b32 v{V_Q0}, 2, v14")
    p.I(f"v_mul_u32_u24 v{V_Q0}, 1152, v{V_Q0}")
    p.I("v_and_b32 v1, 3, v0")
    p.I(f"v_mad_u32_u24 v{V_Q0}, v1, 36, v{V_Q0}")
    p.I(f"v_lshlrev_b32 v1, 28, v15")
    p.I(f"v_add3_u32 v{V_QA}, v{V_Q0}, v1, 32")
    p.I(f"v_xor_b32 v{V_QB}, 0x10000000, v{V_QA}")
    p.I(f"v_lshl_add_u32 v{V_Q0}, v15, 4, v{V_Q0}")
    p.I(f"v_lshlrev_b32 v{V_KV}, 4, v0")
    p.I("v_cmp_lt_u32 vcc, 20, v14")
    p.I(f"v_mov_b32 v1, 0x10000000")
    p.I(f"v_cndmask_b32 v{V_VA}, v{V_KV}, v1, vcc")
    p.I(f"v_mov_b32 v{V_H}, 0")
    p.I("s_lshl_b32 s5, s2, 2"); p.I("s_add_u32 s5, s5, s3"); p.I("s_add_u32 s5, s5, 126")
    p.I("s_cmp_lt_u32 s2, 126"); p.I("s_cselect_b32 s7, s2, 2000")
    p.I("s_cmp_eq_u32 s3, 4"); p.I("s_cselect_b32 s5, s7, s5")
    p.I("s_cmp_gt_u32 s3, 4"); p.I("s_cselect_b32 s5, 2000, s5")
    p.I(f"s_mul_i32 s8, s2, {8*1152}")
    kv_bases(p, 3)
    p.I("s_waitcnt lgkmcnt(0)")
    srd(p, SQ, P_WS, 2048*1152, WS_Q); srd(p, SKV, P_WS, WS_H-WS_K0, WS_K0); srd(p, SH, P_WS, WS_END-WS_H, WS_H); srd(p, SO, P_WS, 2048*1152, WS_O)
    p.I("s_cmp_ge_u32 s5, 1134"); p.I("s_cbranch_scc1 k2_nofx1")
    fixup_loads(p)
    p.L("k2_nofx1")
    p.I(f"buffer_load_dwordx4 {vr(KX,4)}, v{V_KV}, s[{SKV}:{SKV+3}], s15 offen")
    p.I("s_mul_i32 s9, s3, 144"); p.I("s_add_u32 s9, s9, s8")
    q_loads(p, QB0, 9)
    ld_k0(p, 0, 13)
    for j in range(8):
        if j < 7: ld_k0(p, j+1, 13)
        ld_v(p, j, 14)
    p.I("s_add_u32 s9, s3, 1"); p.I("s_and_b32 s9, s9, 7"); p.I("s_mul_i32 s9, s9, 144"); p.I("s_add_u32 s9, s9, s8")
    q_loads(p, QB1, 9)
    NKV = 1 + 5 + 8 + 16 + 5
    p.I(f"s_mul_i32 s9, s3, {7*SLOT}")
    p.I(f"v_add_u32 v{V_O16}, s9, v{V_KV}")
    p.I(f"v_lshlrev_b32 v1, 3, v0")
    p.I("s_add_u32 s9, s9, 2048")
    p.I(f"v_add_u32 v{V_O8}, s9, v1")
    p.I("s_add_u32 s10, s3, 2"); p.I("s_and_b32 s10, s10, 7"); p.I(f"s_mul_i32 s10, s10, {7*SLOT}")
    p.I("s_add_u32 s12, s3, 1"); p.I("s_and_b32 s12, s12, 7"); p.I(f"s_mul_i32 s12, s12, {7*SLOT}")
    p.I("s_sub_u32 s12, s12, s10")
    p.I(f"v_add_u32 v{V_I16}, s10, v{V_KV}")
    p.I("s_add_u32 s10, s10, 2048")
    p.I(f"v_add_u32 v{V_I8}, s10, v1")
    p.I(f"v_mul_u32_u24 v1, {SLOT}, v0")
    p.I(f"v_add_u32 v1, s9, v1")
    p.I(f"v_mov_b32 v{V_ONE}, 0")
    p.I("s_mov_b64 exec, 0x7f")
    p.I(f"ds_write_b32 v1, v{V_ONE} offset:{SLOT+512}")
    p.I("s_mov_b64 exec, -1")
    p.I(f"v_mov_b32 v{V_ONE}, 1")
    for qb in (QB0, QB1):
        for z in (5, 6, 9, 10): p.I(f"v_mov_b32 v{qb+z}, 0")
    for r in range(32): p.I(f"v_mov_b32 v{O0+r}, 0")
    p.I("s_waitcnt lgkmcnt(0)")
    p.I("s_barrier")
    p.I("s_cmp_ge_u32 s5, 1134"); p.I("s_cbranch_scc1 k2_nofx2")
    fixup_compute(p, NKV)
    p.L("k2_nofx2")
    p.I("s_mov_b32 s4, 0")
    p.I("s_add_u32 s69, s3, 1")
    p.I(f"s_waitcnt vmcnt({NKV-7})")
    p.I(x8(0, S0, QB0)); p.I(x16(0, S0, QB0))
    p.I(ex(S0)); p.I(ex(S0+1))
    p.I("s_branch k2_entry")
    p.L("k2_loop")
    for par in range(2):
        QC, QN = (QB0, QB1) if par == 0 else (QB1, QB0)
        OC, OP = (O0, O1) if par == 0 else (O1, O0)
        lo = par * SLOT
        for j in range(8):
            A, B = (S0, S1) if j % 2 == 0 else (S1, S0)
            jn, qn = (j+1, QC) if j < 7 else (0, QN)
            p.I(ex(A)); p.I(ex(A+1))
            p.I(pv((j-1) % 8, 1, B, OC if j else OP))
            if par == 0 and j == 0: p.L("k2_entry")
            for r in range(2, 7): p.I(ex(A+r))
            if j == 7: p.I("s_waitcnt vmcnt(0)")
            p.I(x8(jn, B, qn))
            p.I(ex(A+7))
            for k in range(4): p.I(cv(A, k))
            p.I(ex(A+8)); p.I(ex(A+9))
            if j < 7: p.I(f"s_waitcnt vmcnt({27-3*j})")
            p.I(x16(jn, B, qn))
            if j == 0:
                if par == 0:
                    p.I("s_cmp_eq_u32 s4, 0"); p.I("s_cbranch_scc1 k2_nopub")
                else:
                    p.I("s_cmp_lg_u32 s4, 0"); p.I("s_cbranch_scc1 k2_nohst")
                    p.I("s_cmp_ge_u32 s5, 1134"); p.I("s_cbranch_scc1 k2_nohst")
                    for i in range(4):
                        p.I(f"s_add_u32 s11, s6, {i*9216}")
                        p.I(f"buffer_store_dwordx4 {vr(HX+4*i,4)}, v{V_H}, s[{SH}:{SH+3}], s11 offen")
                    p.L("k2_nohst")
                p.I(f"ds_write_b128 v{V_O16}, {vr(OP,4)} offset:{lo}")
                p.I(f"ds_write_b128 v{V_O16}, {vr(OP+4,4)} offset:{lo+1024}")
                p.I(f"ds_write_b64 v{V_O8}, {vr(OP+8,2)} offset:{lo}")
                p.I("s_add_u32 s69, s69, 1"); p.I("s_and_b32 s9, s69, 7"); p.I("s_mul_i32 s9, s9, 144"); p.I("s_add_u32 s9, s9, s8")
                q_loads(p, QN, 9)
                if par == 0: p.L("k2_nopub")
            if j == 1:
                if par == 0:
                    p.I("s_cmp_eq_u32 s4, 0"); p.I("s_cbranch_scc1 k2_noflag")
                p.I("s_waitcnt lgkmcnt(0)")
                p.I("s_mov_b64 exec, 1")
                p.I(f"ds_write_b32 v{V_O8}, v{V_ONE} offset:{lo+512}")
                p.I("s_mov_b64 exec, -1")
                if par == 0: p.L("k2_noflag")
            if j == 3 and par == 1:
                p.I("s_cmp_eq_u32 s4, 3"); p.I("s_cselect_b32 s9, s12, 0")
                p.I(f"v_add_u32 v{V_I16}, s9, v{V_I16}"); p.I(f"v_add_u32 v{V_I8}, s9, v{V_I8}")
            if j == 4:
                p.I(f"ds_read_b32 v{V_F}, v{V_I8} offset:{lo+512}")
            if j == 5:
                if par == 0:
                    p.I("s_cmp_eq_u32 s4, 0"); p.I("s_cbranch_scc1 k2_noin")
                p.L(f"k2_poll{par}")
                p.I("s_waitcnt lgkmcnt(0)")
                p.I(f"v_readfirstlane_b32 s9, v{V_F}")
                p.I("s_cmp_lg_u32 s9, 0")
                p.I(f"s_cbranch_scc1 k2_ok{par}")
                p.I("s_sleep 2")
                p.I(f"ds_read_b32 v{V_F}, v{V_I8} offset:{lo+512}")
                p.I(f"s_branch k2_poll{par}")
                p.L(f"k2_ok{par}")
                p.I(f"ds_read_b128 {vr(OP,4)}, v{V_I16} offset:{lo}")
                p.I(f"ds_read_b128 {vr(OP+4,4)}, v{V_I16} offset:{lo+1024}")
                p.I(f"ds_read_b64 {vr(OP+8,2)}, v{V_I8} offset:{lo}")
                if par == 0: p.L("k2_noin")
            if j == 6 and par == 1:
                for r in (V_O16, V_O8, V_I16, V_I8): p.I(f"v_add_u32 v{r}, {2*SLOT}, v{r}")
            for r in range(10, 15): p.I(ex(A+r))
            p.I(f"s_waitcnt vmcnt({25-3*j})" if j < 7 else "s_waitcnt lgkmcnt(0)")
            p.I(pv(j, 0, A, OC))
            p.I(ex(A+15))
            for k in range(4, 8): p.I(cv(A, k))
    p.I("s_add_u32 s4, s4, 1")
    p.I("s_cmp_lt_u32 s4, 4")
    p.I("s_cbranch_scc1 k2_loop")
    p.I(pv(7, 1, S1, O1))
    p.I("s_add_u32 s9, s3, 7"); p.I("s_and_b32 s9, s9, 7"); p.I("s_mul_i32 s9, s9, 144"); p.I("s_add_u32 s9, s9, s8")
    for k in range(5): p.I(f"v_pk_add_f32 {vr(O1+2*k,2)}, {vr(O1+2*k,2)}, {vr(O0+2*k,2)}")
    p.I(f"v_mov_b32 v14, v{O1+8}"); p.I(f"v_mov_b32 v15, v{O1+8}")
    p.I("v_permlane32_swap_b32 v14, v15")
    LO, HI = f2u(2.0**-60), f2u(2.0**60)
    p.I(f"v_subrev_u32 v14, {LO}, v15")
    p.I(f"v_cmp_lt_u32 vcc, {HI-LO}, v14")
    p.I("s_cbranch_vccnz k2_slow")
    p.L("k2_fin")
    p.I("v_rcp_f32 v14, v15")
    p.I("s_nop 0")
    for k in range(5): p.I(f"v_pk_mul_f32 {vr(O1+2*k,2)}, {vr(O1+2*k,2)}, v[14:15] op_sel_hi:[1,0]")
    for k in range(5): p.I(f"v_cvt_pk_bf16_f32 v{O1+k}, v{O1+2*k}, v{O1+2*k+1}")
    p.I(f"buffer_store_dwordx4 {vr(O1,4)}, v{V_Q0}, s[{SO}:{SO+3}], s9 offen")
    p.I(f"buffer_store_dword v{O1+4}, v{V_QA}, s[{SO}:{SO+3}], s9 offen")
    p.L(f"{name}_end")
    p.I("s_endpgm")
    p.L("k2_slow")
    p.I("v_mov_b32 v14, 0xff800000")
    for ps in range(2):
        p.I("s_mov_b32 s4, 0")
        p.L(f"k2_sp{ps}")
        kv_bases(p, 4)
        p.I(f"buffer_load_dwordx4 {vr(KX,4)}, v{V_KV}, s[{SKV}:{SKV+3}], s15 offen")
        for j in range(8):
            ld_k0(p, j, 13)
            if ps: ld_v(p, j, 14)
        p.I("s_waitcnt vmcnt(0)")
        for j in range(8):
            p.I(x8(j, S0, QB1, S1 if ps else None)); p.I(x16(j, S0, QB1))
            if ps == 0:
                for k in range(8): p.I(f"v_max3_f32 v14, v14, v{S0+2*k}, v{S0+2*k+1}")
            else:
                for r in range(16): p.I(ex(S0+r))
                for k in range(8): p.I(cv(S0, k))
                p.I(pv(j, 0, S0, O1)); p.I(pv(j, 1, S0, O1))
        p.I("s_add_u32 s4, s4, 1"); p.I("s_cmp_lt_u32 s4, 8"); p.I(f"s_cbranch_scc1 k2_sp{ps}")
        if ps == 0:
            p.I("v_mov_b32 v15, v14")
            p.I("v_permlane32_swap_b32 v14, v15")
            p.I("v_max_f32 v14, v14, v15")
            for r in range(16):
                p.I(f"v_sub_f32 v{S1+r}, 0, v14"); p.I(f"v_mov_b32 v{O1+r}, 0")
    p.I(f"v_mov_b32 v14, v{O1+8}"); p.I(f"v_mov_b32 v15, v{O1+8}")
    p.I("v_permlane32_swap_b32 v14, v15")
    p.I("s_branch k2_fin")
    return p, 244, 57*SLOT + 1024
```

```python
from common import *
from k1 import proj_gemm

def gen_k3(name):
    p = Prog()
    p.L(name)
    p.I("s_cmp_ge_u32 s2, 240")
    p.I(f"s_cbranch_scc1 {name}_end")
    load_ptrs(p)
    p.I("v_lshrrev_b32 v1, 6, v0")
    p.I("v_and_b32 v0, 63, v0")
    p.I("v_readfirstlane_b32 s3, v1")
    p.I("s_and_b32 s4, s2, 7")
    p.I("s_lshl_b32 s4, s4, 1")
    p.I("s_bfe_u32 s5, s2, 0x10003")
    p.I("s_add_u32 s4, s4, s5")
    p.I("s_lshr_b32 s5, s2, 4")
    p.I("s_and_b32 s6, s3, 3")
    p.I("s_waitcnt lgkmcnt(0)")
    p.I("s_cmp_lt_u32 s5, 9")
    p.I("s_cbranch_scc1 k3_ssm")
    p.I("s_sub_u32 s7, s5, 9")
    def tokaddr(vd):
        p.I("v_and_b32 v12, 31, v0")
        p.I("s_lshl_b32 s61, s4, 7")
        p.I("s_lshl_b32 s62, s6, 5")
        p.I("s_add_u32 s61, s61, s62")
        p.I("v_add_u32 v12, s61, v12")
        p.I(f"v_mul_u32_u24 v{vd}, 4608, v12")
        p.I("v_lshrrev_b32 v13, 5, v0")
        p.I(f"v_lshl_add_u32 v{vd}, v13, 4, v{vd}")
    def epi_o(ACC):
        srd(p, 64, P_OUT, 2048*4608)
        tokaddr(12)
        p.I("s_mul_i32 s61, s7, 384")
        p.I("s_add_u32 s61, s61, 2304")
        for nt in range(3):
            for g in range(4):
                p.I(f"buffer_store_dwordx4 {vr(ACC+16*nt+4*g,4)}, v12, s[64:67], s61 offen offset:{128*nt+32*g}")
    proj_gemm(p, "k3_op", P_WS, WS_O, 2048*1152, P_WO, 4, 7, epi_o)

    p.L("k3_ssm")
    SLOT = 25600
    p.I("s_cmp_ge_u32 s3, 4")
    p.I("s_cbranch_scc0 k3_ssm_comp")
    srd(p, 64, P_WS, WS_P-WS_H, WS_H); srd(p, 68, P_CRE, 576*1152); srd(p, 72, P_CIM, 576*1152)
    p.I("s_lshl_b32 s61, s4, 2"); p.I("s_add_u32 s61, s61, s6"); p.I(f"s_mul_i32 s61, s61, {4*18432}")
    p.I("v_lshlrev_b32 v2, 4, v0"); p.I("v_add_u32 v2, s61, v2")
    kc_dma_voff(p, 3, 0, 6, 10, 1152, "plain", 8)
    p.I(f"s_mul_i32 s61, s5, {64*1152}")
    p.I("v_add_u32 v3, s61, v3")
    p.I("s_lshl_b32 s62, s6, 10")
    p.I("s_mul_i32 s63, s6, 4352")
    pieces = []
    for q in range(4): pieces.append((64, 2, (lambda c, q=q: c*1024 + q*18432), q*1088, "buffer_load_dwordx4", 63))
    for i in range(2): pieces.append(((lambda c: 68 if c < 9 else 72), 3, (lambda c, i=i: (c % 9)*128 + 32*i*1152), 17408 + i*4096, "buffer_load_dwordx4"))
    gemm_loader(p, "k3_ssm", 18, 4, SLOT, pieces, 62)
    p.L("k3_ssm_comp")
    ACC, FR, XR, DR = 16, 48, 80, 96
    srd(p, 64, P_OUT, 2048*4608); srd(p, 68, P_AX, 2048*1152); srd(p, 72, P_DSK, 1152)
    tokaddr(14)
    p.I("v_mul_u32_u24 v15, 1152, v12")
    p.I("v_lshlrev_b32 v13, 3, v13")
    p.I("v_add_u32 v15, v15, v13")
    p.I("s_lshl_b32 s61, s5, 7")
    for i in range(8):
        p.I(f"buffer_load_dwordx2 {vr(XR+2*i,2)}, v15, s[68:71], s61 offen offset:{16*i}")
        p.I(f"buffer_load_dwordx2 {vr(DR+2*i,2)}, v13, s[72:75], s61 offen offset:{16*i}")
    VA, VB = 2, 10
    kc_addr_setup(p, VA, 0, 12)
    kc_addr_finish(p, VA)
    p.I("v_bfe_u32 v12, v0, 4, 1"); p.I("v_lshlrev_b32 v12, 1, v12")
    p.I("v_bfe_u32 v13, v0, 1, 1"); p.I("v_add_u32 v12, v12, v13")
    p.I(f"v_mul_u32_u24 v{VB}, 1088, v12")
    p.I("v_lshrrev_b32 v12, 5, v0"); p.I("v_lshlrev_b32 v12, 3, v12")
    p.I("v_bfe_u32 v13, v0, 2, 2"); p.I("v_add_u32 v12, v12, v13")
    p.I(f"v_lshl_add_u32 v{VB}, v12, 4, v{VB}")
    p.I("v_and_b32 v12, 1, v0")
    p.I(f"v_lshl_add_u32 v{VB}, v12, 3, v{VB}")
    p.I("s_mul_i32 s63, s6, 4352")
    p.I(f"v_add_u32 v{VB}, s63, v{VB}")
    p.I(f"v_add_u32 v{VB+1}, 65536, v{VB}")
    p.I("s_waitcnt vmcnt(0)")
    for i in range(16):
        p.I(f"v_and_b32 v12, 0xffff, v{DR+i}")
        p.I(f"v_and_b32 v13, 0xffff0000, v{DR+i}")
        p.I(f"v_dot2_f32_bf16 v{ACC+2*i}, v{XR+i}, v12, 0")
        p.I(f"v_dot2_f32_bf16 v{ACC+2*i+1}, v{XR+i}, v13, 0")
    def reads(c, s, b):
        base = (c % 4) * SLOT
        f = FR + 16*b
        r = []
        for e in range(2):
            w, o = divmod(base + (16*s + 4*e)*16, 65536)
            r.append(f"ds_read_b64_tr_b16 {vr(f+2*e,2)}, v{VB+w} offset:{o}")
        r.append(kc_read(f+4, VA, s, base + 17408)); r.append(kc_read(f+8, VA, s, base + 17408 + 4096))
        return r
    def mf(c, s, b, first):
        f = FR + 16*b
        return [mfma(ACC, f+4, f, ACC), mfma(ACC+16, f+8, f, ACC+16)]
    gemm_compute(p, 18, 4, reads, mf)
    p.I("s_lshl_b32 s61, s5, 8")
    for i in range(8):
        p.I(f"buffer_store_dwordx4 {vr(ACC+4*i,4)}, v14, s[64:67], s61 offen offset:{32*i}")
    p.L(f"{name}_end")
    p.I("s_endpgm")
    return p, 112, 4*28672, 240
```

```python
import sys, importlib
from asmlib import *
NAME = "concat_heads__ssm_conv_s5__grouped_kv_mqa__prompt"
def build(kernels, path):
    out = []
    ref = open(f"cdna_kernels/{NAME}.s.ref").read().split("\n")
    for l in ref:
        if l.startswith("; Override") or l.startswith("; grid=") or l.startswith("; @launch"): continue
        if not l.startswith(";"): break
        out.append(l)
    for (lab, p, vg, lds, grid, block) in kernels:
        out.append(f"; @launch kernel={lab} grid=({grid},1,1) block=({block},1,1) lds={lds}")
    out.append('.amdgcn_target "amdgcn-amd-amdhsa--gfx950"')
    out.append(".text")
    seen = set()
    for (lab, p, vg, lds, grid, block) in kernels:
        if lab in seen: continue
        seen.add(lab)
        out += [f".globl {lab}", ".p2align 8", f".type {lab},@function"]
        lines, n = fix_hazards(p.lines)
        print(f"{lab}: {len(lines)} lines, {n} nops inserted, vgpr {vg}, lds {lds}", file=sys.stderr)
        out += lines
    out += [".p2align 8"] + ["s_endpgm"] * 4 + [".fill 4096, 4, 0xbf810000"]
    out.append('.section .rodata,"a"')
    seen = set()
    for (lab, p, vg, lds, grid, block) in kernels:
        if lab in seen: continue
        seen.add(lab)
        out += kernel_desc(lab, vg)
    open(path, "w").write("\n".join(out) + "\n")

if __name__ == "__main__":
    which = sys.argv[1] if len(sys.argv) > 1 else "123"
    path = sys.argv[2] if len(sys.argv) > 2 else f"cdna_kernels/{NAME}.s"
    ks = []
    if "1" in which:
        import k1; p, vg, lds = k1.gen_k1("k1_kernel"); ks.append(("k1_kernel", p, vg, lds, 256, 512))
    if "2" in which:
        import k2; p, vg, lds = k2.gen_k2("k2_kernel"); ks.append(("k2_kernel", p, vg, lds, 256, 512))
    if "3" in which:
        import k3; p, vg, lds, grid = k3.gen_k3("k3_kernel"); ks.append(("k3_kernel", p, vg, lds, grid, 512))
    build(ks, path)
```

```python
from asmlib import *
import math, struct

import os
TS = int(os.environ.get("TS", "0"))
TSWG = int(os.environ.get("TSWG", "5"))
def ts(p, idx, real=False):
    if not TS: return
    if TS == 3 and not real: return
    p.I(f"s_{'memrealtime' if real else 'memtime'} s[80:81]")
    p.I("s_waitcnt lgkmcnt(0)")
    p.I(f"s_mov_b32 s{84+idx}, s80")
def ts_flush(p, tag, n=8):
    if not TS: return
    if TS == 3:
        kidx = int(tag[1]) - 1
        p.I("s_load_dwordx2 s[80:81], s[0:1], 128")
        p.I("s_waitcnt lgkmcnt(0)")
        p.I(f"s_add_u32 s76, s80, {(48<<20) + kidx*65536}"); p.I("s_addc_u32 s77, s81, 0"); p.I("s_and_b32 s77, s77, 0xffff"); p.I("s_mov_b32 s78, 65536"); p.I("s_mov_b32 s79, 0x20000")
        p.I("s_lshl_b32 s82, s2, 3"); p.I("s_add_u32 s82, s82, s3"); p.I("s_lshl_b32 s82, s82, 3")
        p.I("v_mov_b32 v1, 0"); p.I("v_mov_b32 v2, s90"); p.I("v_mov_b32 v3, s91")
        p.I("buffer_store_dwordx2 v[2:3], v1, s[76:79], s82 offen")
        return
    p.I(f"s_cmp_lg_u32 s2, {TSWG}"); p.I(f"s_cbranch_scc1 {tag}_nots")
    p.I("s_load_dwordx2 s[80:81], s[0:1], 120")
    p.I("s_waitcnt lgkmcnt(0)")
    p.I("s_mov_b32 s76, s80"); p.I("s_and_b32 s77, s81, 0xffff"); p.I("s_mov_b32 s78, 256"); p.I("s_mov_b32 s79, 0x20000")
    p.I("s_lshl_b32 s82, s3, 5")
    p.I("v_mov_b32 v1, 0")
    for i in range(n):
        p.I(f"v_mov_b32 v2, s{84+i}")
        p.I(f"buffer_store_dword v2, v1, s[76:79], s82 offen offset:{4*i}")
    p.L(f"{tag}_nots")

WS_Q   = 0
WS_O   = WS_Q + 2048*576*2
WS_K0  = WS_O + 2048*576*2
WS_KX  = WS_K0 + 65536
WS_V   = WS_KX + 16384
WS_H   = WS_V + 131072
WS_P   = WS_H + 64*4*1152*16
WS_A   = WS_P + 64*576*8
WS_PW  = WS_A + 16*576*8
WS_END = WS_PW + 9*576*8
WS_SIZE = 268435456
P_AX, P_LRE, P_LIM, P_BRE, P_BIM, P_CRE, P_CIM, P_LDT, P_DSK, P_BX, P_WQ, P_WK, P_WV, P_WO, P_OUT, P_DBG, P_WS = [16+2*i for i in range(17)]
def f2u(f): return struct.unpack("<I", struct.pack("<f", f))[0]
QSCALE = math.log2(math.e) / math.sqrt(18.0)

def load_ptrs(p):
    p.I("s_load_dwordx16 s[16:31], s[0:1], 0")
    p.I("s_load_dwordx16 s[32:47], s[0:1], 64")
    p.I("s_load_dwordx2 s[48:49], s[0:1], 128")

def srd(p, d, ptr, nbytes, off=0):
    if off:
        p.I(f"s_add_u32 s{d}, s{ptr}, {off}")
        p.I(f"s_addc_u32 s{d+1}, s{ptr+1}, 0")
        p.I(f"s_and_b32 s{d+1}, s{d+1}, 0xffff")
    else:
        p.I(f"s_mov_b32 s{d}, s{ptr}")
        p.I(f"s_and_b32 s{d+1}, s{ptr+1}, 0xffff")
    p.I(f"s_mov_b32 s{d+2}, {nbytes}")
    p.I(f"s_mov_b32 s{d+3}, 0x20000")

def mfma(d, a, b, c=None, kind="32x32x16"):
    na = 4 if kind in ("32x32x16", "16x16x32") else 2
    nd = 16 if kind.startswith("32x32") else 4
    cs = "0" if c is None else vr(c, nd)
    return f"v_mfma_f32_{kind}_bf16 {vr(d,nd)}, {vr(a,na)}, {vr(b,na)}, {cs}"

def gemm_loader(p, tag, nch, nslots, slot_bytes, pieces, runs, s_wb, pre_issue=None, hook=None, rot=False):
    P = len(pieces)
    wbs = sorted({(pc[6] if len(pc) > 6 else s_wb) for pc in pieces})
    if pre_issue: pre_issue()
    ROT = os.environ.get("ROT", "y")
    if rot and ROT != "0":
        if ROT == "x": p.I("s_and_b32 s56, s2, 7")
        elif ROT == "z":
            p.I("s_and_b32 s56, s2, 7"); p.I("s_add_u32 s56, s56, s5"); p.I("s_and_b32 s59, s4, 1"); p.I("s_lshl_b32 s59, s59, 2"); p.I("s_add_u32 s56, s56, s59")
            p.I("s_mul_i32 s59, s56, 57"); p.I("s_lshr_b32 s59, s59, 9"); p.I("s_mul_i32 s59, s59, 9"); p.I("s_sub_u32 s56, s56, s59")
        else:
            p.I("s_and_b32 s56, s2, 7"); p.I("s_lshr_b32 s59, s2, 3"); p.I("s_add_u32 s56, s56, s59"); p.I("s_and_b32 s56, s56, 7")
        for r, st in runs.items():
            p.I(f"s_mul_i32 s59, s56, {st}"); p.I(f"s_add_u32 s{r}, s{r}, s59")
        def hook():
            p.I("s_add_u32 s56, s56, 1"); p.I(f"s_cmp_lg_u32 s56, {nch}"); p.I(f"s_cbranch_scc1 {tag}_nw")
            for r, st in runs.items(): p.I(f"s_sub_u32 s{r}, s{r}, {st*nch}")
            p.L(f"{tag}_nw")
    p.I("s_mov_b32 s57, 0")
    p.L(f"{tag}_lp")
    p.I("s_cmp_lt_u32 s57, 3"); p.I(f"s_cbranch_scc1 {tag}_lnw")
    p.I(f"s_waitcnt vmcnt({2*P})")
    if TS == 1:
        p.I("s_cmp_lg_u32 s57, 3"); p.I(f"s_cbranch_scc1 {tag}_lts"); ts(p, 2); p.L(f"{tag}_lts")
    p.I("s_barrier")
    p.L(f"{tag}_lnw")
    for pc in pieces:
        (sd, vo, run, sc, lo, op) = pc[:6]
        wb = pc[6] if len(pc) > 6 else s_wb
        if lo: p.I(f"s_add_u32 m0, s{wb}, {lo}")
        else: p.I(f"s_mov_b32 m0, s{wb}")
        if sc:
            p.I(f"s_add_u32 s60, s{run}, {sc}"); so = 60
        else: so = run; p.I("s_nop 0")
        p.I(f"{op} v{vo}, s[{sd}:{sd+3}], s{so} offen lds")
    for r, st in runs.items(): p.I(f"s_add_u32 s{r}, s{r}, {st}")
    p.I("s_add_u32 s57, s57, 1")
    p.I("s_and_b32 s59, s57, 3")
    p.I("s_cmp_eq_u32 s59, 0")
    p.I(f"s_cselect_b32 s59, {(-(nslots-1)*slot_bytes) & 0xffffffff}, {slot_bytes}") if False else None
    p.I(f"s_mov_b32 s59, {slot_bytes}")
    p.I(f"s_cselect_b32 s59, {(-(nslots-1)*slot_bytes) & 0xffffffff}, s59")
    for wb in wbs: p.I(f"s_add_u32 s{wb}, s{wb}, s59")
    if hook: hook()
    p.I(f"s_cmp_lt_u32 s57, {nch}"); p.I(f"s_cbranch_scc1 {tag}_lp")
    ts(p, 3)
    for k in (2, 1, 0):
        p.I(f"s_waitcnt vmcnt({k*P})")
        if k == 0: ts(p, 5)
        p.I("s_barrier")
    ts(p, 7, True); ts_flush(p, tag + "_ld")
    p.I("s_endpgm")

def gemm_compute(p, tag, nch, nslots, slot_bytes, reads, mfmas, aregs, extra=None):
    ts(p, 1)
    p.I("s_mov_b32 s57, 1")
    p.I("s_waitcnt lgkmcnt(0)")
    p.I("s_barrier")
    ts(p, 2)
    p.ext(reads(0, 0))
    p.L(f"{tag}_cl")
    for s in range(3):
        r = reads(s+1, (s+1) & 1)
        p.ext(r)
        if s == 2:
            p.I("s_and_b32 s59, s57, 3"); p.I("s_cmp_eq_u32 s59, 0")
            p.I(f"s_mov_b32 s59, {slot_bytes}")
            p.I(f"s_cselect_b32 s59, {(-(nslots-1)*slot_bytes) & 0xffffffff}, s59")
            for a in aregs: p.I(f"v_add_u32 v{a}, s59, v{a}")
            for (a, st) in (extra or []): p.I(f"v_add_u32 v{a}, {st}, v{a}")
        p.I(f"s_waitcnt lgkmcnt({len(r)})")
        p.ext(mfmas(s, s & 1))
    p.I("s_waitcnt lgkmcnt(0)")
    p.I(f"s_cmp_eq_u32 s57, {nch}"); p.I(f"s_cbranch_scc1 {tag}_cx")
    p.I("s_add_u32 s57, s57, 1")
    p.I("s_barrier")
    p.ext(reads(0, 0))
    p.ext(mfmas(3, 1))
    p.I(f"s_branch {tag}_cl")
    p.L(f"{tag}_cx")
    p.ext(mfmas(3, 1))
    ts(p, 4)

def code_prefetch(p, nkb, vd):
    p.I("s_getpc_b64 s[50:51]")
    p.I(f"v_lshlrev_b32 v{vd}, 4, v0")
    for i in range(nkb):
        if i: p.I(f"v_add_u32 v{vd}, 8192, v{vd}")
        p.I(f"global_load_dwordx4 v[{vd+2}:{vd+5}], v{vd}, s[50:51]")

def kc_addr_setup(p, vbase, vl, vt):
    p.I(f"v_and_b32 v{vt}, 31, v{vl}")
    p.I(f"v_lshrrev_b32 v{vt+1}, 1, v{vt}")
    p.I(f"v_and_b32 v{vt+1}, 7, v{vt+1}")
    p.I(f"v_lshrrev_b32 v{vbase}, 5, v{vl}")
    p.I(f"v_xor_b32 v{vt+1}, v{vt+1}, v{vbase}")
    p.I(f"v_lshlrev_b32 v{vt+1}, 4, v{vt+1}")
    p.I(f"v_lshl_add_u32 v{vbase}, v{vt}, 7, v{vt+1}")

def kc_addr_finish(p, vbase, nwin=1):
    for s in range(1, 4): p.I(f"v_xor_b32 v{vbase+s}, {32*s}, v{vbase}")
    for w in range(1, nwin):
        for s in range(4): p.I(f"v_add_u32 v{vbase+4*w+s}, {65536*w}, v{vbase+s}")

def kc_read(dst, vbase, s, off):
    w, o = divmod(off, 65536)
    return f"ds_read_b128 {vr(dst,4)}, v{vbase+4*w+s} offset:{o}"

def kc_dma_voff(p, vd, vl, s_lw, vt, pitch, rowfn_a, wave_rows):
    p.I(f"v_lshrrev_b32 v{vt}, 3, v{vl}")
    p.I(f"v_lshrrev_b32 v{vt+1}, 4, v{vl}")
    p.I(f"s_and_b32 s61, s{s_lw}, 1")
    p.I(f"s_lshl_b32 s61, s61, 2")
    p.I(f"v_add_u32 v{vt+1}, s61, v{vt+1}")
    p.I(f"v_and_b32 v{vd}, 7, v{vl}")
    p.I(f"v_xor_b32 v{vd}, v{vd}, v{vt+1}")
    p.I(f"v_lshlrev_b32 v{vd}, 4, v{vd}")
    if rowfn_a == "scan":
        p.I(f"v_lshrrev_b32 v{vt+1}, 2, v{vt}")
        p.I(f"v_lshlrev_b32 v{vt+1}, 5, v{vt+1}")
        p.I(f"v_and_b32 v{vt}, 3, v{vt}")
        p.I(f"v_add_u32 v{vt}, v{vt}, v{vt+1}")
    p.I(f"s_mul_i32 s61, s{s_lw}, {wave_rows}")
    p.I(f"v_add_u32 v{vt}, s61, v{vt}")
    p.I(f"v_mul_u32_u24 v{vt}, {pitch}, v{vt}")
    p.I(f"v_add_u32 v{vd}, v{vd}, v{vt}")

def cmul(p, dr, di, ar, ai, br, bi, t):
    p.I(f"v_mul_f32 v{t}, v{ai}, v{bi}")
    p.I(f"v_mul_f32 v{t+1}, v{ai}, v{br}")
    p.I(f"v_fma_f32 v{t}, v{ar}, v{br}, -v{t}")
    p.I(f"v_fma_f32 v{di}, v{ar}, v{bi}, v{t+1}")
    p.I(f"v_mov_b32 v{dr}, v{t}")
```

```python
from common import *

def km_lane(p, vd, vl, vt, pitch, colbytes_fn):
    p.I(f"v_lshrrev_b32 v{vt}, 5, v{vl}")
    p.I(f"v_lshlrev_b32 v{vt}, 3, v{vt}")
    p.I(f"v_bfe_u32 v{vd}, v{vl}, 2, 2")
    p.I(f"v_add_u32 v{vt}, v{vt}, v{vd}")
    p.I(f"v_mul_u32_u24 v{vd}, {pitch}, v{vt}")
    colbytes_fn()
    p.I(f"v_add_u32 v{vd}, v{vd}, v{vt+1}")

PSLOT = 28672
PFW = int(os.environ.get('PFW', '256'))
def proj_loader(p, tag, PX, xoff, xbytes, PW, s_tb, s_cb, rot=False):
    kc_dma_voff(p, 2, 0, 6, 10, 1152, "plain", 8)
    p.I(f"s_mul_i32 s54, s{s_tb}, {128*1152}")
    p.I("s_lshl_b32 s62, s6, 10")
    p.I("s_lshl_b32 s61, s6, 6")
    p.I(f"s_mul_i32 s55, s{s_cb}, 192")
    for i in range(3):
        p.I(f"v_add_u32 v10, s61, v0")
        if i: p.I(f"v_add_u32 v10, {256*i}, v10")
        p.I(f"v_mul_u32_u24 v11, 5462, v10")
        p.I(f"v_lshrrev_b32 v11, 16, v11")
        p.I(f"v_mul_u32_u24 v12, 12, v11")
        p.I(f"v_sub_u32 v12, v10, v12")
        p.I(f"v_mul_u32_u24 v11, 1152, v11")
        p.I(f"v_lshl_add_u32 v{3+i}, v12, 4, v11")
    p.I("s_waitcnt lgkmcnt(0)")
    srd(p, 64, PX, xbytes, xoff); srd(p, 68, PW, 576*1152)
    pieces = [(64, 2, 54, 32*i*1152, i*4096, "buffer_load_dwordx4") for i in range(4)]
    pieces += [(68, 3+i, 55, 0, 16384 + i*4096, "buffer_load_dwordx4") for i in range(3)]
    gemm_loader(p, tag, 9, 4, PSLOT, pieces, {54: 128, 55: 64*1152}, 62, rot=rot)

def proj_compute(p, tag, epilogue, pre=None):
    VX, VW = 2, 10
    kc_addr_setup(p, VX, 0, 12)
    p.I("s_lshl_b32 s61, s6, 12")
    p.I(f"v_add_u32 v{VX}, s61, v{VX}")
    kc_addr_finish(p, VX)
    def colb():
        p.I("v_bfe_u32 v13, v0, 4, 1")
        p.I("v_lshlrev_b32 v13, 5, v13")
        p.I("v_and_b32 v14, 3, v0")
        p.I("v_lshl_add_u32 v13, v14, 3, v13")
    km_lane(p, VW, 0, 12, 192, colb)
    ACC = 16; FR = 64
    for r in range(48): p.I(f"v_mov_b32 v{ACC+r}, 0")
    if pre: pre()
    def reads(s, b):
        r = [kc_read(FR + 16*b, VX, s, 0)]
        for nt in range(3):
            for e in range(2):
                r.append(f"ds_read_b64_tr_b16 {vr(FR+16*b+4+4*nt+2*e, 2)}, v{VW} offset:{16384 + (16*s + 4*e)*192 + 64*nt}")
        return r
    def mf(s, b):
        return [mfma(ACC+16*nt, FR+16*b+4+4*nt, FR+16*b, ACC+16*nt) for nt in range(3)]
    gemm_compute(p, tag, 9, 4, PSLOT, reads, mf, [VX, VX+1, VX+2, VX+3, VW])
    epilogue(ACC)
    ts(p, 5); ts(p, 7, True); ts_flush(p, tag + "_c"); p.I("s_endpgm")

def gemm_entry(p, name, nwg, nkb):
    p.L(name)
    p.I(f"s_cmp_ge_u32 s2, {nwg}")
    p.I(f"s_cbranch_scc1 {name}_end")
    if nkb: code_prefetch(p, nkb, 162)
    load_ptrs(p)
    ts(p, 0); ts(p, 6, True)
    p.I("v_lshrrev_b32 v1, 6, v0")
    p.I("v_and_b32 v0, 63, v0")
    p.I("v_readfirstlane_b32 s3, v1")
    p.I("s_and_b32 s4, s2, 7")
    p.I("s_lshl_b32 s4, s4, 1")
    p.I("s_bfe_u32 s5, s2, 0x10003")
    p.I("s_add_u32 s4, s4, s5")
    p.I("s_lshr_b32 s5, s2, 4")
    p.I("s_sub_u32 s7, s5, 9")
    p.I("s_and_b32 s6, s3, 3")

def gen_k1(name):
    p = Prog()
    gemm_entry(p, name, 256, 1)
    p.I("s_cmp_lt_u32 s3, 4")
    p.I("s_cbranch_scc1 k1_comp")
    p.I("s_cmp_ge_u32 s5, 9")
    p.I("s_cbranch_scc1 k1_ld12")
    kc_dma_voff(p, 2, 0, 6, 10, 1152, "scan", 4)
    p.I(f"s_mul_i32 s54, s4, {128*1152}")
    kc_dma_voff(p, 3, 0, 6, 10, 1152, "plain", 8)
    p.I(f"s_mul_i32 s55, s5, {64*1152}")
    p.I("s_lshl_b32 s62, s6, 10")
    p.I("s_waitcnt lgkmcnt(0)")
    srd(p, 64, P_AX, 2048*1152); srd(p, 68, P_BRE, 576*1152); srd(p, 72, P_BIM, 576*1152)
    pieces = [(64, 2, 54, (64*(i>>1) + 16*(i&1))*1152, i*4096, "buffer_load_dwordx4") for i in range(4)]
    pieces += [(68, 3, 55, 32*i*1152, 16384 + i*4096, "buffer_load_dwordx4") for i in range(2)]
    pieces += [(72, 3, 55, 32*i*1152, 24576 + i*4096, "buffer_load_dwordx4") for i in range(2)]
    gemm_loader(p, "k1_t3", 9, 4, 32768, pieces, {54: 128, 55: 128}, 62, rot=True)
    p.L("k1_ld12")
    p.I("s_cmp_eq_u32 s5, 15")
    p.I("s_cbranch_scc1 k1_t2")
    proj_loader(p, "k1_t1", P_BX, 0, 2048*1152, P_WQ, 4, 7, rot=True)
    p.L("k1_t2")
    IMG = 25600
    kc_dma_voff(p, 2, 0, 6, 10, 1152, "plain", 8)
    p.I(f"s_mul_i32 s54, s4, {128*1152}")
    p.I("s_lshl_b32 s62, s6, 10")
    p.I("s_lshl_b32 s63, s6, 8")
    p.I("s_lshl_b32 s61, s6, 6")
    for i in range(5):
        p.I("v_add_u32 v10, s61, v0")
        if i: p.I(f"v_add_u32 v10, {256*i}, v10")
        p.I("v_mul_u32_u24 v11, 6554, v10")
        p.I("v_lshrrev_b32 v11, 16, v11")
        p.I("v_mul_u32_u24 v12, 10, v11")
        p.I("v_sub_u32 v12, v10, v12")
        p.I("v_min_u32 v12, 8, v12")
        p.I("v_mul_u32_u24 v11, 36, v11")
        p.I(f"v_lshl_add_u32 v{3+i}, v12, 2, v11")
    p.I("s_waitcnt lgkmcnt(0)")
    srd(p, 64, P_BX, 2048*1152); srd(p, 68, P_WK, 576*36); srd(p, 72, P_WV, 576*36)
    def pre():
        p.I("s_mov_b32 s60, 0")
        p.L("k1_t2_w")
        for i in range(5):
            for (sd, base) in ((68, 65536), (72, 65536 + IMG)):
                p.I(f"s_add_u32 m0, s63, {base + i*1024}")
                p.I("s_nop 0")
                p.I(f"buffer_load_dword v{3+i}, s[{sd}:{sd+3}], s60 offen lds")
        p.I("s_add_u32 s63, s63, 5120"); p.I(f"s_add_u32 s60, s60, {128*36}")
        p.I(f"s_cmp_lt_u32 s60, {5*128*36}"); p.I("s_cbranch_scc1 k1_t2_w")
    pieces = [(64, 2, 54, 32*i*1152, i*4096, "buffer_load_dwordx4") for i in range(4)]
    gemm_loader(p, "k1_t2", 9, 4, 16384, pieces, {54: 128}, 62, pre_issue=pre)
    p.L("k1_comp")
    if "P" in os.environ.get("XP", ""):
        p.I("s_lshl_b32 s61, s6, 6")
        p.I("s_lshr_b32 s62, s2, 3")
        p.I(f"s_mul_i32 s62, s62, {PFW}")
        p.I("s_add_u32 s61, s61, s62")
        p.I("v_add_u32 v160, s61, v0")
        p.I("v_lshlrev_b32 v160, 7, v160")
        p.I("s_and_b32 s61, s2, 7")
        p.I(f"s_mul_i32 s61, s61, {256*1152}")
        p.I(f"s_add_u32 s62, s61, {256*1152}")
        p.I("s_mov_b32 s67, 0x20000")
        p.I("s_waitcnt lgkmcnt(0)")
        for (ptr, isx) in ((P_AX, 1), (P_BRE, 0), (P_BIM, 0), (P_BX, 1), (P_WQ, 0)):
            p.I(f"s_mov_b32 s64, s{ptr}"); p.I(f"s_and_b32 s65, s{ptr+1}, 0xffff")
            p.I("s_mov_b32 s66, s62" if isx else f"s_mov_b32 s66, {576*1152}")
            p.I(f"buffer_load_dword v161, v160, s[64:67], {'s61' if isx else '0'} offen")
    p.I("s_cmp_lt_u32 s5, 9")
    p.I("s_cbranch_scc1 k1_t3_comp")
    p.I("s_cmp_eq_u32 s5, 15")
    p.I("s_cbranch_scc1 k1_t2_comp")
    def pre_q():
        p.I("s_waitcnt lgkmcnt(0)")
        srd(p, 64, P_WS, 2048*1152, WS_Q)
        p.I("v_and_b32 v12, 31, v0")
        p.I("s_lshl_b32 s61, s4, 7")
        p.I("s_lshl_b32 s62, s6, 5")
        p.I("s_add_u32 s61, s61, s62")
        p.I("v_add_u32 v12, s61, v12")
        p.I("v_mul_u32_u24 v12, 1152, v12")
        p.I("v_lshrrev_b32 v13, 5, v0")
        p.I("v_lshl_add_u32 v12, v13, 3, v12")
        p.I("s_mul_i32 s61, s7, 192")
        p.I("v_add_u32 v12, s61, v12")
        p.I(f"s_mov_b32 s62, {f2u(QSCALE)}")
    def epi_q(ACC):
        for nt in range(3):
            for g in range(4):
                a = ACC + 16*nt + 4*g
                for e in range(4): p.I(f"v_mul_f32 v{a+e}, s62, v{a+e}")
                p.I(f"v_cvt_pk_bf16_f32 v{a}, v{a}, v{a+1}")
                p.I(f"v_cvt_pk_bf16_f32 v{a+1}, v{a+2}, v{a+3}")
                p.I(f"buffer_store_dwordx2 {vr(a,2)}, v12, s[64:67], 0 offen offset:{64*nt+16*g}")
    proj_compute(p, "k1_t1", epi_q, pre_q)
    p.L("k1_t2_comp")
    p.I("s_lshl_b32 s61, s6, 12"); p.I("s_add_u32 s61, s61, 8192")
    p.I("v_lshlrev_b32 v160, 4, v0"); p.I("v_add_u32 v160, s61, v160")
    for i in range(4): p.I(f"global_load_dwordx4 v[164:167], v160, s[50:51] offset:{1024*i}")
    VX, VW = 2, 10
    kc_addr_setup(p, VX, 0, 12)
    p.I("s_lshl_b32 s61, s6, 12")
    p.I(f"v_add_u32 v{VX}, s61, v{VX}")
    kc_addr_finish(p, VX)
    def colb():
        p.I("v_and_b32 v13, 1, v0")
        p.I("v_lshlrev_b32 v13, 1, v13")
        p.I("v_bfe_u32 v14, v0, 1, 1")
        p.I("v_or_b32 v13, v13, v14")
        p.I("v_bfe_u32 v14, v0, 4, 1")
        p.I("v_cmp_eq_u32 vcc, 1, v14")
        p.I("v_cndmask_b32 v13, v13, 4, vcc") if False else p.I("v_mov_b32 v14, 4")
        p.I("v_cndmask_b32 v13, v13, v14, vcc")
        p.I("v_lshlrev_b32 v13, 3, v13")
    km_lane(p, VW, 0, 12, 40, colb)
    p.I(f"v_add_u32 v{VW}, 65536, v{VW}")
    AK, AV, FR = 16, 32, 64
    for r in range(32): p.I(f"v_mov_b32 v{AK+r}, 0")
    def reads(s, b):
        r = [kc_read(FR+16*b, VX, s, 0)]
        for m in range(2):
            for e in range(2):
                r.append(f"ds_read_b64_tr_b16 {vr(FR+16*b+4+4*m+2*e,2)}, v{VW} offset:{m*IMG + (16*s+4*e)*40}")
        return r
    def mf(s, b):
        return [mfma(AK, FR+16*b+4, FR+16*b, AK), mfma(AV, FR+16*b, FR+16*b+8, AV)]
    gemm_compute(p, "k1_t2", 9, 4, 16384, reads, mf, [VX, VX+1, VX+2, VX+3], extra=[(VW, 2560)])
    srd(p, 64, P_WS, WS_H - WS_K0, WS_K0)
    p.I("s_lshl_b32 s7, s4, 2")
    p.I("s_add_u32 s7, s7, s6")
    p.I("v_lshlrev_b32 v12, 4, v0")
    for i in range(5): p.I(f"v_cvt_pk_bf16_f32 v{48+i}, v{AK+2*i}, v{AK+2*i+1}")
    p.I("s_lshl_b32 s61, s7, 10")
    p.I("buffer_store_dwordx4 v[48:51], v12, s[64:67], s61 offen")
    p.I("s_lshr_b32 s61, s7, 2"); p.I("s_lshl_b32 s61, s61, 10")
    p.I("s_and_b32 s62, s7, 1"); p.I("s_lshl_b32 s62, s62, 9"); p.I("s_add_u32 s61, s61, s62")
    p.I("s_bfe_u32 s62, s7, 0x10001"); p.I("s_lshl_b32 s62, s62, 3"); p.I("s_add_u32 s61, s61, s62")
    p.I(f"s_add_u32 s61, s61, {WS_KX-WS_K0}")
    p.I("v_lshrrev_b32 v13, 5, v0")
    p.I("v_lshlrev_b32 v13, 28, v13")
    p.I("v_add_u32 v13, v13, v12")
    p.I("v_mov_b32 v53, 0")
    p.I("buffer_store_dwordx2 v[52:53], v13, s[64:67], s61 offen")
    for i in range(8): p.I(f"v_cvt_pk_bf16_f32 v{56+i}, v{AV+2*i}, v{AV+2*i+1}")
    p.I("v_and_b32 v14, 31, v0")
    p.I("v_cmp_eq_u32 vcc, 20, v14")
    p.I("v_mov_b32 v15, 0x3f803f80")
    for i in range(8): p.I(f"v_cndmask_b32 v{56+i}, v{56+i}, v15, vcc")
    p.I("s_lshl_b32 s61, s7, 11")
    p.I(f"s_add_u32 s61, s61, {WS_V-WS_K0}")
    p.I("buffer_store_dwordx4 v[56:59], v12, s[64:67], s61 offen")
    p.I("buffer_store_dwordx4 v[60:63], v12, s[64:67], s61 offen offset:1024")
    ts(p, 5); ts(p, 7, True); ts_flush(p, "k1t2c"); p.I("s_endpgm")

    p.L("k1_t3_comp")
    p.I("s_and_b32 s7, s6, 1")
    p.I("s_lshr_b32 s8, s6, 1")
    p.I("s_lshl_b32 s61, s5, 6")
    p.I("s_lshl_b32 s62, s8, 5")
    p.I("s_add_u32 s61, s61, s62")
    p.I("v_and_b32 v1, 31, v0")
    p.I("v_add_u32 v1, s61, v1")
    p.I("v_lshlrev_b32 v20, 1, v1")
    p.I("s_waitcnt lgkmcnt(0)")
    p.I(f"global_load_ushort v21, v20, s[{P_LRE}:{P_LRE+1}]")
    p.I(f"global_load_ushort v22, v20, s[{P_LIM}:{P_LIM+1}]")
    p.I(f"global_load_ushort v23, v20, s[{P_LDT}:{P_LDT+1}]")
    VX, VB = 2, 6
    kc_addr_setup(p, VX, 0, 18)
    p.I(f"v_mov_b32 v{VB}, v{VX}")
    p.I("s_lshl_b32 s61, s7, 13")
    p.I(f"v_add_u32 v{VX}, s61, v{VX}")
    p.I("s_lshl_b32 s61, s8, 12")
    p.I(f"v_add_u32 v{VB}, s61, v{VB}")
    kc_addr_finish(p, VX); kc_addr_finish(p, VB)
    LOG2E = f2u(math.log2(math.e))
    for r in range(64): p.I(f"v_mov_b32 v{64+r}, 0")
    p.I("s_waitcnt vmcnt(0)")
    p.I("v_lshlrev_b32 v21, 16, v21")
    p.I("v_lshlrev_b32 v22, 16, v22")
    p.I("v_lshlrev_b32 v23, 16, v23")
    p.I(f"v_mul_f32 v23, {LOG2E}, v23")
    p.I("v_exp_f32 v23, v23")
    p.I("v_cvt_pk_bf16_f32 v23, v23, v23")
    p.I("v_lshlrev_b32 v23, 16, v23")
    p.I("v_mul_f32 v36, v23, v21")
    p.I("v_mul_f32 v37, v23, v22")
    p.I(f"v_mul_f32 v36, {LOG2E}, v36")
    p.I("v_exp_f32 v36, v36")
    p.I("v_mul_f32 v37, 0.15915494, v37")
    p.I("v_rndne_f32 v38, v37")
    p.I("v_sub_f32 v37, v37, v38")
    p.I("v_cos_f32 v24, v37")
    p.I("v_sin_f32 v25, v37")
    p.I("v_mul_f32 v24, v36, v24")
    p.I("v_mul_f32 v25, v36, v25")
    p.I("v_sub_f32 v26, 0, v25")
    p.I("v_add_f32 v36, -1.0, v24")
    p.I("v_mul_f32 v37, v21, v21")
    p.I("v_fmac_f32 v37, v22, v22")
    p.I("v_rcp_f32 v37, v37")
    p.I("v_mul_f32 v38, v36, v21")
    p.I("v_fmac_f32 v38, v25, v22")
    p.I("v_mul_f32 v39, v25, v21")
    p.I("v_fma_f32 v39, -v36, v22, v39")
    p.I("v_add_f32 v37, v37, v37")
    p.I("v_mul_f32 v28, v38, v37"); p.I("v_mov_b32 v29, v28")
    p.I("v_mul_f32 v30, v39, v37"); p.I("v_sub_f32 v30, 0, v30"); p.I("v_mov_b32 v31, v30")
    p.I("v_sub_f32 v32, 0, v28"); p.I("v_mov_b32 v33, v32")
    p.I("v_mov_b32 v40, v24"); p.I("v_mov_b32 v41, v26")
    cmul(p, 44, 45, 40, 41, 40, 41, 36)
    for _ in range(3): cmul(p, 44, 45, 44, 45, 44, 45, 36)
    cmul(p, 34, 35, 44, 45, 44, 45, 36)
    p.I("s_cmp_lg_u32 s4, 0"); p.I("s_cbranch_scc1 k1_t3_nopw")
    p.I("s_cmp_lg_u32 s7, 0"); p.I("s_cbranch_scc1 k1_t3_nopw")
    srd(p, 64, P_WS, 9*576*8, WS_PW)
    p.I("v_lshlrev_b32 v20, 3, v1")
    for m in range(8):
        p.I(f"s_mov_b32 s61, {m*4608}")
        p.I("buffer_store_dwordx2 v[40:41], v20, s[64:67], s61 offen")
        if m < 7:
            cmul(p, 42, 43, 40, 41, 44, 45, 36)
            p.I("s_nop 0")
            p.I("v_mov_b32 v40, v42"); p.I("v_mov_b32 v41, v43")
    cmul(p, 42, 43, 34, 35, 34, 35, 36)
    cmul(p, 42, 43, 42, 43, 42, 43, 36)
    p.I(f"s_mov_b32 s61, {8*4608}")
    p.I("buffer_store_dwordx2 v[42:43], v20, s[64:67], s61 offen")
    p.L("k1_t3_nopw")
    srd(p, 64, P_WS, WS_PW - WS_H, WS_H)
    p.I("s_lshl_b32 s9, s4, 2")
    p.I("s_lshl_b32 s61, s7, 1")
    p.I("s_add_u32 s9, s9, s61")
    p.I("v_lshrrev_b32 v19, 5, v0")
    p.I("v_add_u32 v18, s9, v19")
    p.I(f"v_mul_u32_u24 v20, {4*1152}, v18")
    p.I("v_add_u32 v20, v20, v1")
    p.I("v_lshlrev_b32 v20, 4, v20")
    p.I(f"v_mul_u32_u24 v21, 576, v18")
    p.I("v_add_u32 v21, v21, v1")
    p.I("v_lshlrev_b32 v21, 3, v21")
    AR, AI, FR = 64, 96, 128
    def reads(s, b):
        f = FR + 16*b
        return [kc_read(f, VX, s, 0), kc_read(f+8, VB, s, 16384), kc_read(f+4, VX, s, 4096), kc_read(f+12, VB, s, 24576)]
    def mf(s, b):
        f = FR + 16*b
        return [mfma(AR, f, f+8, AR), mfma(AI, f, f+12, AI), mfma(AR+16, f+4, f+8, AR+16), mfma(AI+16, f+4, f+12, AI+16)]
    gemm_compute(p, "k1_t3", 9, 4, 32768, reads, mf, list(range(VX, VX+8)))
    for t in range(1, 32):
        p.I(f"v_fmac_f32 v{AR+t}, v24, v{AR+t-1}")
        p.I(f"v_fmac_f32 v{AI+t}, v24, v{AI+t-1}")
        p.I(f"v_fmac_f32 v{AR+t}, v26, v{AI+t-1}")
        p.I(f"v_fmac_f32 v{AI+t}, v25, v{AR+t-1}")
    PKR, PKI = 128, 144
    for t in range(0, 32, 2):
        p.I(f"v_pk_mul_f32 v[36:37], {vr(AI+t,2)}, v[30:31]")
        p.I(f"v_pk_mul_f32 v[38:39], {vr(AR+t,2)}, v[30:31]")
        p.I(f"v_pk_fma_f32 v[36:37], {vr(AR+t,2)}, v[28:29], v[36:37]")
        p.I(f"v_pk_fma_f32 v[38:39], {vr(AI+t,2)}, v[32:33], v[38:39]")
        p.I(f"v_cvt_pk_bf16_f32 v{PKR+t//2}, v36, v37")
        p.I(f"v_cvt_pk_bf16_f32 v{PKI+t//2}, v38, v39")
        if t % 8 == 6:
            q = t // 8
            p.I(f"s_mov_b32 s61, {q*18432}")
            p.I(f"buffer_store_dwordx4 {vr(PKR+4*q,4)}, v20, s[64:67], s61 offen")
            p.I(f"s_mov_b32 s61, {q*18432+9216}")
            p.I(f"buffer_store_dwordx4 {vr(PKI+4*q,4)}, v20, s[64:67], s61 offen")
    p.I("v_mov_b32 v40, v37"); p.I("v_mov_b32 v41, v39")
    p.I("v_and_b32 v22, 31, v0")
    p.I("s_lshl_b32 s61, s8, 5")
    p.I("v_add_u32 v22, s61, v22")
    p.I("v_lshlrev_b32 v22, 5, v22")
    p.I("v_add_u32 v22, 0x20000, v22")
    p.I("s_lshl_b32 s61, s7, 4")
    p.I("v_lshl_add_u32 v23, v19, 3, v22")
    p.I("v_add_u32 v23, s61, v23")
    p.I("ds_write_b64 v23, v[40:41]")
    p.I("s_waitcnt lgkmcnt(0)")
    p.I("s_barrier")
    p.I("ds_read_b128 v[48:51], v22")
    p.I("ds_read_b128 v[52:55], v22 offset:16")
    p.I("v_cmp_eq_u32 vcc, 1, v19")
    p.I("s_waitcnt lgkmcnt(0)")
    def chain(dr, di, ar, ai, er, ei):
        p.I(f"v_fma_f32 v{dr}, v34, v{ar}, v{er}")
        p.I(f"v_fma_f32 v{di}, v34, v{ai}, v{ei}")
        p.I(f"v_fma_f32 v{dr}, -v35, v{ai}, v{dr}")
        p.I(f"v_fma_f32 v{di}, v35, v{ar}, v{di}")
    p.I("s_cmp_eq_u32 s7, 1")
    p.I("s_cbranch_scc1 k1_t3_th1")
    p.I("v_cndmask_b32 v56, 0, v48, vcc")
    p.I("v_cndmask_b32 v57, 0, v49, vcc")
    p.I(f"s_mov_b32 s61, {WS_P-WS_H}")
    p.I("buffer_store_dwordx2 v[56:57], v21, s[64:67], s61 offen")
    ts(p, 5); ts(p, 7, True); ts_flush(p, "k1t3a"); p.I("s_endpgm")
    p.L("k1_t3_th1")
    chain(56, 57, 48, 49, 50, 51)
    chain(58, 59, 56, 57, 52, 53)
    chain(60, 61, 58, 59, 54, 55)
    p.I("v_cndmask_b32 v56, v56, v58, vcc")
    p.I("v_cndmask_b32 v57, v57, v59, vcc")
    p.I(f"s_mov_b32 s61, {WS_P-WS_H}")
    p.I("buffer_store_dwordx2 v[56:57], v21, s[64:67], s61 offen")
    p.I("s_lshr_b32 s61, s4, 1"); p.I(f"s_mul_i32 s61, s61, {576*16}")
    p.I("s_and_b32 s62, s4, 1"); p.I("s_lshl_b32 s62, s62, 3"); p.I("s_add_u32 s61, s61, s62")
    p.I(f"s_add_u32 s61, s61, {WS_A-WS_H}")
    p.I("v_lshlrev_b32 v22, 4, v1")
    p.I("buffer_store_dwordx2 v[60:61], v22, s[64:67], s61 offen")
    ts(p, 5); ts(p, 7, True); ts_flush(p, "k1t3b")
    p.L(f"{name}_end")
    p.I("s_endpgm")
    return p, 168, 133120
```

```python
from common import *

KX, K0, VV, S0, S1, O0, O1, QB0, QB1, HX = 16, 24, 56, 120, 136, 152, 168, 184, 192, 200
SLOT = 2576
V_Q0, V_QA, V_QB, V_KV, V_VA, V_O16, V_O8, V_I16, V_I8, V_ONE, V_F, V_H = 2, 3, 4, 5, 6, 7, 8, 9, 10, 11, 12, 13
SQ, SKV, SH, SO = 52, 56, 60, 64

def pk_cfma(p, d, a, b, c, t):
    if c is None: p.I(f"v_pk_mul_f32 {vr(t,2)}, {vr(a,2)}, {vr(b,2)} op_sel_hi:[1,0]")
    else: p.I(f"v_pk_fma_f32 {vr(t,2)}, {vr(a,2)}, {vr(b,2)}, {vr(c,2)} op_sel_hi:[1,0,1]")
    p.I(f"v_pk_fma_f32 {vr(d,2)}, {vr(a,2)}, {vr(b,2)}, {vr(t,2)} op_sel:[1,1,0] op_sel_hi:[0,1,1] neg_lo:[0,1,0]")

def q_loads(p, qb, soff):
    p.I(f"buffer_load_dwordx4 {vr(qb,4)}, v{V_Q0}, s[{SQ}:{SQ+3}], s{soff} offen")
    p.I(f"buffer_load_dword v{qb+4}, v{V_QA}, s[{SQ}:{SQ+3}], s{soff} offen")
    p.I(f"buffer_load_dword v{qb+6}, v{V_QB}, s[{SQ}:{SQ+3}], s{soff} offen")

def x8(j, s, qb, c=None): return mfma(s, KX + 2*(j >> 1), qb + 4 + 2*(j & 1), c, "32x32x8")
def x16(j, s, qb): return mfma(s, K0 + 4*j, qb, s)
def pv(j, m, s, o): return mfma(o, VV + 8*j + 4*m, s + 4*m, o)
def ex(r): return f"v_exp_f32 v{r}, v{r}"
def cv(s, k): return f"v_cvt_pk_bf16_f32 v{s+k}, v{s+2*k}, v{s+2*k+1}"

XP = os.environ.get("XP", "")
def kv_bases(p, g):
    p.I(f"s_lshl_b32 s13, s{g}, 13")
    p.I(f"s_lshl_b32 s14, s{g}, 14"); p.I(f"s_add_u32 s14, s14, {WS_V-WS_K0}")
    p.I(f"s_lshl_b32 s15, s{g}, 11"); p.I(f"s_add_u32 s15, s15, {WS_KX-WS_K0}")
def ld_k0(p, j):
    p.I(f"s_add_u32 s7, s13, {(j//4)*4096}")
    p.I(f"buffer_load_dwordx4 {vr(K0+4*j,4)}, v{V_KV}, s[{SKV}:{SKV+3}], s7 offen offset:{(j%4)*1024}")
def ld_v(p, j):
    p.I(f"s_add_u32 s7, s14, {(j//2)*4096}")
    p.I(f"buffer_load_dwordx4 {vr(VV+8*j,4)}, v{V_VA}, s[{SKV}:{SKV+3}], s7 offen offset:{(j%2)*2048}")
    p.I(f"buffer_load_dwordx4 {vr(VV+8*j+4,4)}, v{V_VA}, s[{SKV}:{SKV+3}], s7 offen offset:{(j%2)*2048+1024}")
def ld_kx(p):
    p.I(f"buffer_load_dwordx4 {vr(KX,4)}, v{V_KV}, s[{SKV}:{SKV+3}], s15 offen")
    p.I(f"buffer_load_dwordx4 {vr(KX+4,4)}, v{V_KV}, s[{SKV}:{SKV+3}], s15 offen offset:1024")

def fixup_loads(p):
    p.I("s_mul_i32 s7, s5, 3641"); p.I("s_lshr_b32 s7, s7, 16")
    p.I("s_mul_i32 s9, s7, 18"); p.I("s_sub_u32 s9, s5, s9")
    p.I("s_add_u32 s7, s7, 1")
    p.I("s_cmp_ge_u32 s9, 9"); p.I("s_cselect_b32 s10, 1, 0")
    p.I("s_mul_i32 s11, s10, 9"); p.I("s_sub_u32 s9, s9, s11")
    p.I("s_lshl_b32 s9, s9, 6")
    p.I(f"v_add_u32 v{V_H}, s9, v0")
    p.I(f"v_lshlrev_b32 v14, 3, v{V_H}")
    p.I(f"v_lshlrev_b32 v{V_H}, 4, v{V_H}")
    p.I("s_lshr_b32 s68, s7, 2")
    T = HX + 16
    def ld2(d, s): p.I(f"buffer_load_dwordx2 {vr(d,2)}, v14, s[{SH}:{SH+3}], s{s} offen")
    p.I(f"s_mov_b32 s11, {WS_PW-WS_H+8*4608}"); ld2(T+6, 11)
    for jj in range(8):
        p.I(f"s_cmp_le_u32 s68, {2*jj}"); p.I("s_cbranch_scc1 k2_fx_ld")
        p.I(f"s_mov_b32 s11, {WS_A-WS_H+jj*9216}")
        p.I(f"buffer_load_dwordx4 {vr(S0+4*jj,4)}, v{V_H}, s[{SH}:{SH+3}], s11 offen")
    p.L("k2_fx_ld")
    p.I(f"s_mov_b32 s11, {WS_PW-WS_H}"); ld2(T, 11)
    p.I("s_mul_i32 s9, s10, 4608"); p.I("s_add_u32 s11, s11, s9"); ld2(T+2, 11)
    p.I("s_and_b32 s9, s7, 3"); p.I("s_mul_i32 s9, s9, 9216"); p.I("s_add_u32 s11, s11, s9"); ld2(T+4, 11)
    p.I("s_mul_i32 s11, s7, 4608"); p.I(f"s_add_u32 s11, s11, {WS_P-WS_H}"); ld2(T+8, 11)
    p.I("s_lshl_b32 s6, s7, 1"); p.I("s_add_u32 s6, s6, s10"); p.I(f"s_mul_i32 s6, s6, {2*18432}")
    for i in range(4):
        p.I(f"s_add_u32 s11, s6, {i*9216}")
        p.I(f"buffer_load_dwordx4 {vr(HX+4*i,4)}, v{V_H}, s[{SH}:{SH+3}], s11 offen")

def fixup_compute(p, nyounger):
    T = HX + 16
    PW0, PWH, PWC, L128, PP, G, X, Y, TM = T, T+2, T+4, T+6, T+8, T+10, T+12, T+14, T+16
    p.I(f"v_mov_b32 v{G}, 0"); p.I(f"v_mov_b32 v{G+1}, 0")
    p.I("s_mov_b32 s10, 0x3f80"); p.I("s_mov_b32 s11, 0x3f800000")
    p.I(f"s_waitcnt vmcnt({nyounger+8})")
    for jj in range(15):
        p.I(f"s_cmp_le_u32 s68, {jj}"); p.I("s_cbranch_scc1 k2_fx_h")
        pk_cfma(p, G, G, L128, S0+2*jj, TM)
    p.L("k2_fx_h")
    p.I(f"s_waitcnt vmcnt({nyounger+4})")
    pk_cfma(p, X, PP, PWH, None, X)
    pk_cfma(p, L128, PW0, PW0, None, L128)
    pk_cfma(p, X, G, PWC, X, TM)
    pk_cfma(p, Y, X, PW0, None, Y)
    p.I(f"s_waitcnt vmcnt({nyounger})")
    for k in range(8):
        q, e = divmod(k, 4)
        hr, hi = HX + 8*q + e, HX + 8*q + 4 + e
        p.I(f"v_dot2_f32_bf16 v{TM}, v{hr}, s10, v{X}")
        p.I(f"v_dot2_f32_bf16 v{TM+1}, v{hr}, s11, v{Y}")
        p.I(f"v_dot2_f32_bf16 v{TM+2}, v{hi}, s10, v{X+1}")
        p.I(f"v_dot2_f32_bf16 v{TM+3}, v{hi}, s11, v{Y+1}")
        if k < 7:
            p.I(f"v_pk_mul_f32 {vr(TM+4,2)}, {vr(X,2)}, {vr(L128,2)} op_sel_hi:[1,0]")
            p.I(f"v_pk_mul_f32 {vr(TM+6,2)}, {vr(Y,2)}, {vr(L128,2)} op_sel_hi:[1,0]")
        p.I(f"v_cvt_pk_bf16_f32 v{hr}, v{TM}, v{TM+1}")
        p.I(f"v_cvt_pk_bf16_f32 v{hi}, v{TM+2}, v{TM+3}")
        if k < 7:
            for (g, t) in ((X, TM+4), (Y, TM+6)):
                p.I(f"v_pk_fma_f32 {vr(g,2)}, {vr(g,2)}, {vr(L128,2)}, {vr(t,2)} op_sel:[1,1,0] op_sel_hi:[0,1,1] neg_lo:[0,1,0]")

NSL = os.environ.get("NSL", "0")
_slc = [0]
def osleep(p, j, pos, kind):
    if kind == "first": return
    n = int(NSL[j % len(NSL)])
    if pos not in {0: (), 1: (1,), 2: (0, 2), 3: (0, 1, 2), 4: (0, 1, 2, 3)}[n]: return
    _slc[0] += 1
    p.I(f"s_cbranch_vccz k2_sl{_slc[0]}"); p.I("s_sleep 1"); p.L(f"k2_sl{_slc[0]}")

def emit_round(p, par, kind):
    QC, QN = (QB0, QB1) if par == 0 else (QB1, QB0)
    OC, OP = (O0, O1) if par == 0 else (O1, O0)
    lo = (1 - par) * SLOT
    tg = f"{kind}{par}"
    for j in range(8):
        A, B = (S0, S1) if j % 2 == 0 else (S1, S0)
        jn, qn = (j+1, QC) if j < 7 else (0, QN)
        nxt = not (kind == "last" and j == 7)
        p.I(ex(A)); p.I(ex(A+1))
        if not (kind == "first" and j == 0): p.I(pv((j-1) % 8, 1, B, OC if j else OP))
        for r in range(2, 6): p.I(ex(A+r))
        if j == 7 and nxt: p.I("s_waitcnt vmcnt(0)")
        if nxt: p.I(x8(jn, B, qn))
        p.I(ex(A+6)); p.I(ex(A+7))
        for k in range(4): p.I(cv(A, k))
        if kind == "first" and j < 7: p.I("s_waitcnt vmcnt(5)")
        if nxt: p.I(x16(jn, B, qn))
        p.I(ex(A+8)); p.I(ex(A+9))
        osleep(p, j, 1, kind)
        if kind == "first":
            if j <= 4: ld_k0(p, j+3)
            if j <= 5: ld_v(p, j+2)
            if j == 5: q_loads(p, QN, 9)
            if j == 7:
                p.I("s_cmp_ge_u32 s5, 1134"); p.I("s_cbranch_scc1 k2_nohst")
                for i in range(4):
                    p.I(f"s_add_u32 s11, s6, {i*9216}")
                    p.I(f"buffer_store_dwordx4 {vr(HX+4*i,4)}, v{V_H}, s[{SH}:{SH+3}], s11 offen")
                p.L("k2_nohst")
        elif "N" in XP:
            if j == 0 and kind != "last": q_loads(p, QN, 9)
        else:
            if j == 0:
                p.I(f"ds_write_b128 v{V_O16}, {vr(OP,4)} offset:{lo}")
                p.I(f"ds_write_b128 v{V_O16}, {vr(OP+4,4)} offset:{lo+1024}")
                p.I(f"ds_write_b64 v{V_O8}, {vr(OP+8,2)} offset:{lo}")
                if kind != "last":
                    p.I("s_add_u32 s69, s69, 1"); p.I("s_and_b32 s9, s69, 7"); p.I("s_mul_i32 s9, s9, 144"); p.I("s_add_u32 s9, s9, s8")
                    q_loads(p, QN, 9)
            if j == 1:
                p.I("s_waitcnt lgkmcnt(0)")
                p.I("s_mov_b64 exec, 1")
                p.I(f"ds_write_b32 v{V_O8}, v{V_ONE} offset:{lo+512}")
                p.I("s_mov_b64 exec, -1")
                if kind == "mid" and par == 0 and PFK3:
                    p.I("s_lshl_b32 s9, s4, 3"); p.I("s_add_u32 s9, s9, s3")
                    p.I("s_cmp_lg_u32 s9, 13"); p.I("s_cbranch_scc1 k2_nopf")
                    p.I("s_lshl_b32 s9, s2, 6"); p.I(f"v_add_u32 v{HX}, s9, v0"); p.I(f"v_lshlrev_b32 v{HX}, 7, v{HX}")
                    for ptr in (P_CRE, P_CIM, P_WO):
                        srd(p, 72, ptr, 576*1152)
                        p.I(f"buffer_load_dword v{HX+1}, v{HX}, s[72:75], 0 offen")
                        p.I(f"v_subrev_u32 v{HX}, {576*1152}, v{HX}")
                    p.L("k2_nopf")
            if j == 4:
                p.I(f"ds_read_b32 v{V_F}, v{V_I8} offset:{lo+512}")
            if j == 5:
                p.L(f"k2_poll{tg}")
                p.I("s_waitcnt lgkmcnt(0)")
                p.I(f"v_readfirstlane_b32 s9, v{V_F}")
                p.I("s_cmp_lg_u32 s9, 0")
                p.I(f"s_cbranch_scc1 k2_ok{tg}")
                p.I("s_sleep 2")
                p.I(f"ds_read_b32 v{V_F}, v{V_I8} offset:{lo+512}")
                p.I(f"s_branch k2_poll{tg}")
                p.L(f"k2_ok{tg}")
                p.I(f"ds_read_b128 {vr(OP,4)}, v{V_I16} offset:{lo}")
                p.I(f"ds_read_b128 {vr(OP+4,4)}, v{V_I16} offset:{lo+1024}")
                p.I(f"ds_read_b64 {vr(OP+8,2)}, v{V_I8} offset:{lo}")
            if j == 6 and par == 0:
                p.I("s_cmp_eq_u32 s4, 2"); p.I("s_cselect_b32 s9, s12, 0"); p.I(f"s_add_u32 s9, s9, {2*SLOT}")
                for r in (V_O16, V_O8): p.I(f"v_add_u32 v{r}, {2*SLOT}, v{r}")
                for r in (V_I16, V_I8): p.I(f"v_add_u32 v{r}, s9, v{r}")
        for r in range(10, 14): p.I(ex(A+r))
        if kind == "first" and j < 7: p.I(f"s_waitcnt vmcnt({6 if j < 6 else 5})")
        if kind != "first" and j == 7: p.I("s_waitcnt lgkmcnt(0)")
        p.I(pv(j, 0, A, OC))
        osleep(p, j, 2, kind)
        p.I(ex(A+14)); p.I(ex(A+15))
        for k in range(4, 8): p.I(cv(A, k))

PFK3 = 1
def gen_k2(name):
    p = Prog()
    p.L(name)
    p.I("s_cmp_ge_u32 s2, 256")
    p.I(f"s_cbranch_scc1 {name}_end")
    p.I("s_load_dwordx2 s[48:49], s[0:1], 128")
    if PFK3:
        p.I(f"s_load_dwordx4 s[{P_CRE}:{P_CRE+3}], s[0:1], 40") if P_CRE % 4 == 0 else (p.I(f"s_load_dwordx2 s[{P_CRE}:{P_CRE+1}], s[0:1], 40"), p.I(f"s_load_dwordx2 s[{P_CIM}:{P_CIM+1}], s[0:1], 48"))
        p.I(f"s_load_dwordx2 s[{P_WO}:{P_WO+1}], s[0:1], 104")
    ts(p, 0); ts(p, 6, True)
    p.I("v_lshrrev_b32 v1, 6, v0")
    p.I("v_and_b32 v0, 63, v0")
    p.I("v_readfirstlane_b32 s3, v1")
    p.I("v_and_b32 v14, 31, v0")
    p.I("v_lshrrev_b32 v15, 5, v0")
    p.I(f"v_lshrrev_b32 v{V_Q0}, 2, v14")
    p.I(f"v_mul_u32_u24 v{V_Q0}, 1152, v{V_Q0}")
    p.I("v_and_b32 v1, 3, v0")
    p.I(f"v_mad_u32_u24 v{V_Q0}, v1, 36, v{V_Q0}")
    p.I(f"v_lshlrev_b32 v1, 28, v15")
    p.I(f"v_add3_u32 v{V_QA}, v{V_Q0}, v1, 32")
    p.I(f"v_xor_b32 v{V_QB}, 0x10000000, v{V_QA}")
    p.I(f"v_lshl_add_u32 v{V_Q0}, v15, 4, v{V_Q0}")
    p.I(f"v_lshlrev_b32 v{V_KV}, 4, v0")
    p.I("v_cmp_lt_u32 vcc, 20, v14")
    p.I(f"v_mov_b32 v1, 0x10000000")
    p.I(f"v_cndmask_b32 v{V_VA}, v{V_KV}, v1, vcc")
    p.I(f"v_mov_b32 v{V_H}, 0")
    p.I("s_lshl_b32 s5, s2, 2"); p.I("s_add_u32 s5, s5, s3"); p.I("s_add_u32 s5, s5, 122")
    p.I("s_cmp_lt_u32 s3, 4"); p.I("s_cselect_b32 s5, 2000, s5")
    p.I("s_cmp_lt_u32 s2, 126"); p.I("s_cselect_b32 s7, s2, 2000")
    p.I("s_cmp_eq_u32 s3, 0"); p.I("s_cselect_b32 s5, s7, s5")
    p.I(f"s_mul_i32 s8, s2, {8*1152}")
    kv_bases(p, 3)
    p.I(f"s_mul_i32 s9, s3, {7*SLOT}"); p.I(f"s_add_u32 s9, s9, {SLOT}")
    p.I(f"v_add_u32 v{V_O16}, s9, v{V_KV}")
    p.I(f"v_lshlrev_b32 v1, 3, v0")
    p.I("s_add_u32 s9, s9, 2048")
    p.I(f"v_add_u32 v{V_O8}, s9, v1")
    p.I("s_add_u32 s10, s3, 2"); p.I("s_and_b32 s10, s10, 7"); p.I(f"s_mul_i32 s10, s10, {7*SLOT}")
    p.I("s_add_u32 s12, s3, 1"); p.I("s_and_b32 s12, s12, 7"); p.I(f"s_mul_i32 s12, s12, {7*SLOT}")
    p.I("s_sub_u32 s12, s12, s10")
    p.I(f"s_add_u32 s10, s10, {SLOT}")
    p.I(f"v_add_u32 v{V_I16}, s10, v{V_KV}")
    p.I("s_add_u32 s10, s10, 2048")
    p.I(f"v_add_u32 v{V_I8}, s10, v1")
    p.I(f"v_mul_u32_u24 v1, {SLOT}, v0")
    p.I(f"v_add_u32 v1, s9, v1")
    p.I(f"v_mov_b32 v{V_ONE}, 0")
    p.I("s_mov_b64 exec, 0x7f")
    p.I(f"ds_write_b32 v1, v{V_ONE} offset:512")
    p.I("s_mov_b64 exec, -1")
    p.I(f"v_mov_b32 v{V_ONE}, 1")
    p.I("s_waitcnt lgkmcnt(0)")
    p.I("s_barrier")
    srd(p, SQ, P_WS, 2048*1152, WS_Q); srd(p, SKV, P_WS, WS_H-WS_K0, WS_K0); srd(p, SH, P_WS, WS_END-WS_H, WS_H); srd(p, SO, P_WS, 2048*1152, WS_O)
    if TS == 2: ts(p, 1)
    p.I("s_cmp_ge_u32 s5, 1134"); p.I("s_cbranch_scc1 k2_nofx1")
    fixup_loads(p)
    p.L("k2_nofx1")
    ld_kx(p)
    p.I("s_mul_i32 s9, s3, 144"); p.I("s_add_u32 s9, s9, s8")
    q_loads(p, QB0, 9)
    ld_k0(p, 0); ld_k0(p, 1); ld_v(p, 0); ld_k0(p, 2); ld_v(p, 1)
    NKV = 12
    if TS == 2: ts(p, 2)
    for qb in (QB0, QB1):
        for z in (5, 7): p.I(f"v_mov_b32 v{qb+z}, 0")
    for r in range(32): p.I(f"v_mov_b32 v{O0+r}, 0")
    p.I("s_cmp_ge_u32 s5, 1134"); p.I("s_cbranch_scc1 k2_nofx2")
    fixup_compute(p, NKV)
    p.L("k2_nofx2")
    ts(p, 1 if TS == 1 else 3)
    if "U" in XP:
        p.I("s_cmp_lt_u32 s3, 4"); p.I("s_cbranch_scc1 k2_lowp"); p.I("s_setprio 1"); p.L("k2_lowp")
    p.I("s_cmp_lt_u32 s3, 4"); p.I("s_cselect_b64 vcc, -1, 0")
    p.I("s_mov_b32 s4, 0")
    p.I("s_add_u32 s69, s3, 1")
    p.I("s_and_b32 s9, s69, 7"); p.I("s_mul_i32 s9, s9, 144"); p.I("s_add_u32 s9, s9, s8")
    p.I(f"s_waitcnt vmcnt({NKV-6})")
    if TS == 2: ts(p, 4)
    p.I(x8(0, S0, QB0)); p.I(x16(0, S0, QB0))
    emit_round(p, 0, "first")
    if TS: ts(p, 2 if TS == 1 else 5)
    p.L("k2_loop")
    emit_round(p, 1, "mid")
    emit_round(p, 0, "mid")
    if TS == 1:
        p.I("s_memtime s[80:81]"); p.I("s_waitcnt lgkmcnt(0)"); p.I("s_mov_b32 s87, s88"); p.I("s_mov_b32 s88, s89"); p.I("s_mov_b32 s89, s80")
    p.I("s_add_u32 s4, s4, 1")
    p.I("s_cmp_lt_u32 s4, 3")
    p.I("s_cbranch_scc1 k2_loop")
    emit_round(p, 1, "last")
    p.I(pv(7, 1, S1, O1))
    p.I("s_add_u32 s9, s3, 7"); p.I("s_and_b32 s9, s9, 7"); p.I("s_mul_i32 s9, s9, 144"); p.I("s_add_u32 s9, s9, s8")
    for k in range(5): p.I(f"v_pk_add_f32 {vr(O1+2*k,2)}, {vr(O1+2*k,2)}, {vr(O0+2*k,2)}")
    p.I(f"v_mov_b32 v14, v{O1+8}"); p.I(f"v_mov_b32 v15, v{O1+8}")
    p.I("v_permlane32_swap_b32 v14, v15")
    LO, HI = f2u(2.0**-60), f2u(2.0**60)
    p.I(f"v_subrev_u32 v14, {LO}, v15")
    p.I(f"v_cmp_lt_u32 vcc, {HI-LO}, v14")
    p.I("s_cbranch_vccnz k2_slow")
    p.L("k2_fin")
    p.I("v_rcp_f32 v14, v15")
    p.I("s_nop 0")
    for k in range(5): p.I(f"v_pk_mul_f32 {vr(O1+2*k,2)}, {vr(O1+2*k,2)}, v[14:15] op_sel_hi:[1,0]")
    for k in range(5): p.I(f"v_cvt_pk_bf16_f32 v{O1+k}, v{O1+2*k}, v{O1+2*k+1}")
    p.I(f"buffer_store_dwordx4 {vr(O1,4)}, v{V_Q0}, s[{SO}:{SO+3}], s9 offen")
    p.I(f"buffer_store_dword v{O1+4}, v{V_QA}, s[{SO}:{SO+3}], s9 offen")
    ts(p, 7, True)
    ts_flush(p, "k2")
    p.L(f"{name}_end")
    p.I("s_endpgm")
    p.L("k2_slow")
    p.I("v_mov_b32 v14, 0xff800000")
    for ps in range(2):
        p.I("s_mov_b32 s4, 0")
        p.L(f"k2_sp{ps}")
        kv_bases(p, 4)
        ld_kx(p)
        for j in range(8):
            ld_k0(p, j)
            if ps: ld_v(p, j)
        p.I("s_waitcnt vmcnt(0)")
        for j in range(8):
            p.I(x8(j, S0, QB1, S1 if ps else None)); p.I(x16(j, S0, QB1))
            if ps == 0:
                for k in range(8): p.I(f"v_max3_f32 v14, v14, v{S0+2*k}, v{S0+2*k+1}")
            else:
                for r in range(16): p.I(ex(S0+r))
                for k in range(8): p.I(cv(S0, k))
                p.I(pv(j, 0, S0, O1)); p.I(pv(j, 1, S0, O1))
        p.I("s_add_u32 s4, s4, 1"); p.I("s_cmp_lt_u32 s4, 8"); p.I(f"s_cbranch_scc1 k2_sp{ps}")
        if ps == 0:
            p.I("v_mov_b32 v15, v14")
            p.I("v_permlane32_swap_b32 v14, v15")
            p.I("v_max_f32 v14, v14, v15")
            for r in range(16):
                p.I(f"v_sub_f32 v{S1+r}, 0, v14"); p.I(f"v_mov_b32 v{O1+r}, 0")
    p.I(f"v_mov_b32 v14, v{O1+8}"); p.I(f"v_mov_b32 v15, v{O1+8}")
    p.I("v_permlane32_swap_b32 v14, v15")
    p.I("s_branch k2_fin")
    return p, 244, 57*SLOT + 1024
```

```python
from common import *
from k1 import proj_loader, proj_compute, gemm_entry

def gen_k3(name):
    p = Prog()
    gemm_entry(p, name, 240, 0)
    SLOT = 25600
    p.I("s_cmp_lt_u32 s3, 4")
    p.I("s_cbranch_scc1 k3_comp")
    p.I("s_cmp_ge_u32 s5, 9")
    p.I("s_cbranch_scc1 k3_op_ld")
    p.I("s_lshl_b32 s54, s4, 2"); p.I("s_add_u32 s54, s54, s6"); p.I(f"s_mul_i32 s54, s54, {4*18432}")
    p.I("v_lshlrev_b32 v2, 4, v0")
    kc_dma_voff(p, 3, 0, 6, 10, 1152, "plain", 8)
    p.I(f"s_mul_i32 s55, s5, {64*1152}")
    p.I("s_lshl_b32 s62, s6, 10")
    p.I("s_mul_i32 s63, s6, 4352")
    p.I("s_waitcnt lgkmcnt(0)")
    srd(p, 64, P_WS, WS_P-WS_H, WS_H); srd(p, 68, P_CRE, 576*1152)
    pieces = [(64, 2, 54, q*18432, q*1088, "buffer_load_dwordx4", 63) for q in range(4)]
    pieces += [(68, 3, 55, 32*i*1152, 17408 + i*4096, "buffer_load_dwordx4") for i in range(2)]
    def hook():
        p.I("s_cmp_lg_u32 s57, 9"); p.I("s_cbranch_scc1 k3_nosw")
        srd(p, 68, P_CIM, 576*1152)
        p.I("s_sub_u32 s55, s55, 1152")
        p.L("k3_nosw")
    gemm_loader(p, "k3_ssm", 18, 4, SLOT, pieces, {54: 1024, 55: 128}, 62, hook=hook)
    p.L("k3_op_ld")
    proj_loader(p, "k3_op", P_WS, WS_O, 2048*1152, P_WO, 4, 7)
    p.L("k3_comp")
    p.I("s_cmp_lt_u32 s5, 9")
    p.I("s_cbranch_scc1 k3_ssm_comp")
    def tokaddr(vd):
        p.I("v_and_b32 v12, 31, v0")
        p.I("s_lshl_b32 s61, s4, 7")
        p.I("s_lshl_b32 s62, s6, 5")
        p.I("s_add_u32 s61, s61, s62")
        p.I("v_add_u32 v12, s61, v12")
        p.I(f"v_mul_u32_u24 v{vd}, 4608, v12")
        p.I("v_lshrrev_b32 v13, 5, v0")
        p.I(f"v_lshl_add_u32 v{vd}, v13, 4, v{vd}")
    def pre_o():
        p.I("s_waitcnt lgkmcnt(0)")
        srd(p, 64, P_OUT, 2048*4608)
        tokaddr(12)
        p.I("s_mul_i32 s61, s7, 384")
        p.I("s_add_u32 s61, s61, 2304")
    def epi_o(ACC):
        for nt in range(3):
            for g in range(4):
                p.I(f"buffer_store_dwordx4 {vr(ACC+16*nt+4*g,4)}, v12, s[64:67], s61 offen offset:{128*nt+32*g}")
    proj_compute(p, "k3_op", epi_o, pre_o)
    p.L("k3_ssm_comp")
    ACC, FR, XR, DR = 16, 48, 80, 96
    p.I("s_waitcnt lgkmcnt(0)")
    srd(p, 64, P_OUT, 2048*4608); srd(p, 68, P_AX, 2048*1152); srd(p, 72, P_DSK, 1152)
    tokaddr(14)
    p.I("v_mul_u32_u24 v15, 1152, v12")
    p.I("v_lshlrev_b32 v13, 3, v13")
    p.I("v_add_u32 v15, v15, v13")
    p.I("s_lshl_b32 s61, s5, 7")
    for i in range(8):
        p.I(f"buffer_load_dwordx2 {vr(XR+2*i,2)}, v15, s[68:71], s61 offen offset:{16*i}")
        p.I(f"buffer_load_dwordx2 {vr(DR+2*i,2)}, v13, s[72:75], s61 offen offset:{16*i}")
    VA, VB = 2, 10
    kc_addr_setup(p, VA, 0, 12)
    kc_addr_finish(p, VA)
    p.I("v_bfe_u32 v12, v0, 4, 1"); p.I("v_lshlrev_b32 v12, 1, v12")
    p.I("v_bfe_u32 v13, v0, 1, 1"); p.I("v_add_u32 v12, v12, v13")
    p.I(f"v_mul_u32_u24 v{VB}, 1088, v12")
    p.I("v_lshrrev_b32 v12, 5, v0"); p.I("v_lshlrev_b32 v12, 3, v12")
    p.I("v_bfe_u32 v13, v0, 2, 2"); p.I("v_add_u32 v12, v12, v13")
    p.I(f"v_lshl_add_u32 v{VB}, v12, 4, v{VB}")
    p.I("v_and_b32 v12, 1, v0")
    p.I(f"v_lshl_add_u32 v{VB}, v12, 3, v{VB}")
    p.I("s_mul_i32 s63, s6, 4352")
    p.I(f"v_add_u32 v{VB}, s63, v{VB}")
    p.I("s_waitcnt vmcnt(0)")
    for i in range(16):
        p.I(f"v_and_b32 v12, 0xffff, v{DR+i}")
        p.I(f"v_and_b32 v13, 0xffff0000, v{DR+i}")
        p.I(f"v_dot2_f32_bf16 v{ACC+2*i}, v{XR+i}, v12, 0")
        p.I(f"v_dot2_f32_bf16 v{ACC+2*i+1}, v{XR+i}, v13, 0")
    def reads(s, b):
        f = FR + 16*b
        r = [f"ds_read_b64_tr_b16 {vr(f+2*e,2)}, v{VB} offset:{(16*s + 4*e)*16}" for e in range(2)]
        r.append(kc_read(f+4, VA, s, 17408)); r.append(kc_read(f+8, VA, s, 17408 + 4096))
        return r
    def mf(s, b):
        f = FR + 16*b
        return [mfma(ACC, f+4, f, ACC), mfma(ACC+16, f+8, f, ACC+16)]
    gemm_compute(p, "k3_ssm", 18, 4, SLOT, reads, mf, [VA, VA+1, VA+2, VA+3, VB])
    p.I("s_lshl_b32 s61, s5, 8")
    for i in range(8):
        p.I(f"buffer_store_dwordx4 {vr(ACC+4*i,4)}, v14, s[64:67], s61 offen offset:{32*i}")
    ts(p, 5); ts(p, 7, True); ts_flush(p, "k3s")
    p.L(f"{name}_end")
    p.I("s_endpgm")
    return p, 168, 4*28672, 240
```

```python
from asmlib import *
import math, struct

import os
TS = int(os.environ.get("TS", "0"))
TSWG = int(os.environ.get("TSWG", "5"))
def ts(p, idx, real=False):
    if not TS: return
    if TS >= 3 and not real: return
    p.I(f"s_{'memrealtime' if real else 'memtime'} s[80:81]")
    p.I("s_waitcnt lgkmcnt(0)")
    p.I(f"s_mov_b32 s{84+idx}, s80")
def ts_flush(p, tag, n=8):
    if not TS: return
    if TS == 4:
        kidx = int(tag[1]) - 1
        p.I("s_load_dwordx2 s[80:81], s[0:1], 120")
        p.I("s_waitcnt lgkmcnt(0)")
        p.I(f"s_sub_u32 s76, s80, {kidx*512}"); p.I("s_subb_u32 s77, s81, 0"); p.I("s_and_b32 s77, s77, 0xffff"); p.I("s_mov_b32 s78, 256"); p.I("s_mov_b32 s79, 0x20000")
        p.I("s_not_b32 s82, s90")
        p.I("s_mov_b64 exec, 1")
        p.I("v_mov_b32 v1, 0"); p.I("v_mov_b32 v2, s82"); p.I("v_mov_b32 v3, s91"); p.I("v_mov_b32 v4, s90")
        p.I(f"buffer_atomic_umax v2, v1, s[76:79], 0 offen offset:{kidx*16}")
        p.I(f"buffer_atomic_umax v4, v1, s[76:79], 0 offen offset:{kidx*16+4}")
        p.I(f"buffer_atomic_umax v3, v1, s[76:79], 0 offen offset:{kidx*16+8}")
        return
    if TS == 3:
        kidx = int(tag[1]) - 1
        p.I("s_load_dwordx2 s[80:81], s[0:1], 128")
        p.I("s_waitcnt lgkmcnt(0)")
        p.I(f"s_add_u32 s76, s80, {(48<<20) + kidx*65536}"); p.I("s_addc_u32 s77, s81, 0"); p.I("s_and_b32 s77, s77, 0xffff"); p.I("s_mov_b32 s78, 65536"); p.I("s_mov_b32 s79, 0x20000")
        p.I("s_lshl_b32 s82, s2, 3"); p.I("s_add_u32 s82, s82, s3"); p.I("s_lshl_b32 s82, s82, 3")
        p.I("v_mov_b32 v1, 0"); p.I("v_mov_b32 v2, s90"); p.I("v_mov_b32 v3, s91")
        p.I("buffer_store_dwordx2 v[2:3], v1, s[76:79], s82 offen")
        return
    p.I(f"s_cmp_lg_u32 s2, {TSWG}"); p.I(f"s_cbranch_scc1 {tag}_nots")
    p.I("s_load_dwordx2 s[80:81], s[0:1], 120")
    p.I("s_waitcnt lgkmcnt(0)")
    p.I("s_mov_b32 s76, s80"); p.I("s_and_b32 s77, s81, 0xffff"); p.I("s_mov_b32 s78, 256"); p.I("s_mov_b32 s79, 0x20000")
    p.I("s_lshl_b32 s82, s3, 5")
    p.I("v_mov_b32 v1, 0")
    for i in range(n):
        p.I(f"v_mov_b32 v2, s{84+i}")
        p.I(f"buffer_store_dword v2, v1, s[76:79], s82 offen offset:{4*i}")
    p.L(f"{tag}_nots")

WS_Q   = 0
WS_O   = WS_Q + 2048*576*2
WS_K0  = WS_O + 2048*576*2
WS_KX  = WS_K0 + 65536
WS_V   = WS_KX + 16384
WS_H   = WS_V + 131072
WS_P   = WS_H + 64*4*1152*16
WS_A   = WS_P + 64*576*8
WS_PW  = WS_A + 16*576*8
WS_END = WS_PW + 9*576*8
WS_SIZE = 268435456
P_AX, P_LRE, P_LIM, P_BRE, P_BIM, P_CRE, P_CIM, P_LDT, P_DSK, P_BX, P_WQ, P_WK, P_WV, P_WO, P_OUT, P_DBG, P_WS = [16+2*i for i in range(17)]
def f2u(f): return struct.unpack("<I", struct.pack("<f", f))[0]
QSCALE = math.log2(math.e) / math.sqrt(18.0)

def load_ptrs(p):
    p.I("s_load_dwordx16 s[16:31], s[0:1], 0")
    p.I("s_load_dwordx16 s[32:47], s[0:1], 64")
    p.I("s_load_dwordx2 s[48:49], s[0:1], 128")

def srd(p, d, ptr, nbytes, off=0):
    if off:
        p.I(f"s_add_u32 s{d}, s{ptr}, {off}")
        p.I(f"s_addc_u32 s{d+1}, s{ptr+1}, 0")
        p.I(f"s_and_b32 s{d+1}, s{d+1}, 0xffff")
    else:
        p.I(f"s_mov_b32 s{d}, s{ptr}")
        p.I(f"s_and_b32 s{d+1}, s{ptr+1}, 0xffff")
    p.I(f"s_mov_b32 s{d+2}, {nbytes}")
    p.I(f"s_mov_b32 s{d+3}, 0x20000")

def mfma(d, a, b, c=None, kind="32x32x16"):
    na = 4 if kind in ("32x32x16", "16x16x32") else 2
    nd = 16 if kind.startswith("32x32") else 4
    cs = "0" if c is None else vr(c, nd)
    return f"v_mfma_f32_{kind}_bf16 {vr(d,nd)}, {vr(a,na)}, {vr(b,na)}, {cs}"

def gemm_loader(p, tag, nch, nslots, slot_bytes, pieces, runs, s_wb, pre_issue=None, hook=None, rot=False):
    P = len(pieces)
    wbs = sorted({(pc[6] if len(pc) > 6 else s_wb) for pc in pieces})
    if pre_issue: pre_issue()
    ROT = os.environ.get("ROT", "y")
    if rot and ROT != "0":
        if ROT == "x": p.I("s_and_b32 s56, s2, 7")
        elif ROT == "z":
            p.I("s_and_b32 s56, s2, 7"); p.I("s_add_u32 s56, s56, s5"); p.I("s_and_b32 s59, s4, 1"); p.I("s_lshl_b32 s59, s59, 2"); p.I("s_add_u32 s56, s56, s59")
            p.I("s_mul_i32 s59, s56, 57"); p.I("s_lshr_b32 s59, s59, 9"); p.I("s_mul_i32 s59, s59, 9"); p.I("s_sub_u32 s56, s56, s59")
        else:
            p.I("s_and_b32 s56, s2, 7"); p.I("s_lshr_b32 s59, s2, 3"); p.I("s_add_u32 s56, s56, s59"); p.I("s_and_b32 s56, s56, 7")
        for r, st in runs.items():
            p.I(f"s_mul_i32 s59, s56, {st}"); p.I(f"s_add_u32 s{r}, s{r}, s59")
        def hook():
            p.I("s_add_u32 s56, s56, 1"); p.I(f"s_cmp_lg_u32 s56, {nch}"); p.I(f"s_cbranch_scc1 {tag}_nw")
            for r, st in runs.items(): p.I(f"s_sub_u32 s{r}, s{r}, {st*nch}")
            p.L(f"{tag}_nw")
    p.I("s_mov_b32 s57, 0")
    p.L(f"{tag}_lp")
    p.I("s_cmp_lt_u32 s57, 3"); p.I(f"s_cbranch_scc1 {tag}_lnw")
    p.I(f"s_waitcnt vmcnt({2*P})")
    if TS == 1:
        p.I("s_cmp_lg_u32 s57, 3"); p.I(f"s_cbranch_scc1 {tag}_lts"); ts(p, 2); p.L(f"{tag}_lts")
    p.I("s_barrier")
    p.L(f"{tag}_lnw")
    for pc in pieces:
        (sd, vo, run, sc, lo, op) = pc[:6]
        wb = pc[6] if len(pc) > 6 else s_wb
        if lo: p.I(f"s_add_u32 m0, s{wb}, {lo}")
        else: p.I(f"s_mov_b32 m0, s{wb}")
        if sc:
            p.I(f"s_add_u32 s60, s{run}, {sc}"); so = 60
        else: so = run; p.I("s_nop 0")
        p.I(f"{op} v{vo}, s[{sd}:{sd+3}], s{so} offen lds")
    for r, st in runs.items(): p.I(f"s_add_u32 s{r}, s{r}, {st}")
    p.I("s_add_u32 s57, s57, 1")
    p.I("s_and_b32 s59, s57, 3")
    p.I("s_cmp_eq_u32 s59, 0")
    p.I(f"s_cselect_b32 s59, {(-(nslots-1)*slot_bytes) & 0xffffffff}, {slot_bytes}") if False else None
    p.I(f"s_mov_b32 s59, {slot_bytes}")
    p.I(f"s_cselect_b32 s59, {(-(nslots-1)*slot_bytes) & 0xffffffff}, s59")
    for wb in wbs: p.I(f"s_add_u32 s{wb}, s{wb}, s59")
    if hook: hook()
    p.I(f"s_cmp_lt_u32 s57, {nch}"); p.I(f"s_cbranch_scc1 {tag}_lp")
    ts(p, 3)
    for k in (2, 1, 0):
        p.I(f"s_waitcnt vmcnt({k*P})")
        if k == 0: ts(p, 5)
        p.I("s_barrier")
    ts(p, 7, True); ts_flush(p, tag + "_ld")
    p.I("s_endpgm")

def gemm_compute(p, tag, nch, nslots, slot_bytes, reads, mfmas, aregs, extra=None):
    ts(p, 1)
    p.I("s_mov_b32 s57, 1")
    p.I("s_waitcnt lgkmcnt(0)")
    p.I("s_barrier")
    ts(p, 2)
    p.ext(reads(0, 0))
    p.L(f"{tag}_cl")
    for s in range(3):
        r = reads(s+1, (s+1) & 1)
        p.ext(r)
        if s == 2:
            p.I("s_and_b32 s59, s57, 3"); p.I("s_cmp_eq_u32 s59, 0")
            p.I(f"s_mov_b32 s59, {slot_bytes}")
            p.I(f"s_cselect_b32 s59, {(-(nslots-1)*slot_bytes) & 0xffffffff}, s59")
            for a in aregs: p.I(f"v_add_u32 v{a}, s59, v{a}")
            for (a, st) in (extra or []): p.I(f"v_add_u32 v{a}, {st}, v{a}")
        p.I(f"s_waitcnt lgkmcnt({len(r)})")
        p.ext(mfmas(s, s & 1))
    p.I("s_waitcnt lgkmcnt(0)")
    p.I(f"s_cmp_eq_u32 s57, {nch}"); p.I(f"s_cbranch_scc1 {tag}_cx")
    p.I("s_add_u32 s57, s57, 1")
    p.I("s_barrier")
    p.ext(reads(0, 0))
    p.ext(mfmas(3, 1))
    p.I(f"s_branch {tag}_cl")
    p.L(f"{tag}_cx")
    p.ext(mfmas(3, 1))
    ts(p, 4)

def code_prefetch(p, nkb, vd):
    p.I("s_getpc_b64 s[50:51]")
    p.I(f"v_lshlrev_b32 v{vd}, 4, v0")
    for i in range(nkb):
        if i: p.I(f"v_add_u32 v{vd}, 8192, v{vd}")
        p.I(f"global_load_dwordx4 v[{vd+2}:{vd+5}], v{vd}, s[50:51]")

def kc_addr_setup(p, vbase, vl, vt):
    p.I(f"v_and_b32 v{vt}, 31, v{vl}")
    p.I(f"v_lshrrev_b32 v{vt+1}, 1, v{vt}")
    p.I(f"v_and_b32 v{vt+1}, 7, v{vt+1}")
    p.I(f"v_lshrrev_b32 v{vbase}, 5, v{vl}")
    p.I(f"v_xor_b32 v{vt+1}, v{vt+1}, v{vbase}")
    p.I(f"v_lshlrev_b32 v{vt+1}, 4, v{vt+1}")
    p.I(f"v_lshl_add_u32 v{vbase}, v{vt}, 7, v{vt+1}")

def kc_addr_finish(p, vbase, nwin=1):
    for s in range(1, 4): p.I(f"v_xor_b32 v{vbase+s}, {32*s}, v{vbase}")
    for w in range(1, nwin):
        for s in range(4): p.I(f"v_add_u32 v{vbase+4*w+s}, {65536*w}, v{vbase+s}")

def kc_read(dst, vbase, s, off):
    w, o = divmod(off, 65536)
    return f"ds_read_b128 {vr(dst,4)}, v{vbase+4*w+s} offset:{o}"

def kc_dma_voff(p, vd, vl, s_lw, vt, pitch, rowfn_a, wave_rows):
    p.I(f"v_lshrrev_b32 v{vt}, 3, v{vl}")
    p.I(f"v_lshrrev_b32 v{vt+1}, 4, v{vl}")
    p.I(f"s_and_b32 s61, s{s_lw}, 1")
    p.I(f"s_lshl_b32 s61, s61, 2")
    p.I(f"v_add_u32 v{vt+1}, s61, v{vt+1}")
    p.I(f"v_and_b32 v{vd}, 7, v{vl}")
    p.I(f"v_xor_b32 v{vd}, v{vd}, v{vt+1}")
    p.I(f"v_lshlrev_b32 v{vd}, 4, v{vd}")
    if rowfn_a == "scan":
        p.I(f"v_lshrrev_b32 v{vt+1}, 2, v{vt}")
        p.I(f"v_lshlrev_b32 v{vt+1}, 5, v{vt+1}")
        p.I(f"v_and_b32 v{vt}, 3, v{vt}")
        p.I(f"v_add_u32 v{vt}, v{vt}, v{vt+1}")
    p.I(f"s_mul_i32 s61, s{s_lw}, {wave_rows}")
    p.I(f"v_add_u32 v{vt}, s61, v{vt}")
    p.I(f"v_mul_u32_u24 v{vt}, {pitch}, v{vt}")
    p.I(f"v_add_u32 v{vd}, v{vd}, v{vt}")

def cmul(p, dr, di, ar, ai, br, bi, t):
    p.I(f"v_mul_f32 v{t}, v{ai}, v{bi}")
    p.I(f"v_mul_f32 v{t+1}, v{ai}, v{br}")
    p.I(f"v_fma_f32 v{t}, v{ar}, v{br}, -v{t}")
    p.I(f"v_fma_f32 v{di}, v{ar}, v{bi}, v{t+1}")
    p.I(f"v_mov_b32 v{dr}, v{t}")
```

```python
from asmlib import *
import math, struct

import os
TS = int(os.environ.get("TS", "0"))
TSWG = int(os.environ.get("TSWG", "5"))
def ts(p, idx, real=False):
    if not TS: return
    if TS >= 3 and not real: return
    p.I(f"s_{'memrealtime' if real else 'memtime'} s[80:81]")
    p.I("s_waitcnt lgkmcnt(0)")
    p.I(f"s_mov_b32 s{84+idx}, s80")
def ts_flush(p, tag, n=8):
    if not TS: return
    if TS == 4:
        kidx = int(tag[1]) - 1
        p.I("s_load_dwordx2 s[80:81], s[0:1], 120")
        p.I("s_waitcnt lgkmcnt(0)")
        p.I(f"s_sub_u32 s76, s80, {kidx*512}"); p.I("s_subb_u32 s77, s81, 0"); p.I("s_and_b32 s77, s77, 0xffff"); p.I("s_mov_b32 s78, 256"); p.I("s_mov_b32 s79, 0x20000")
        p.I("s_not_b32 s82, s90")
        p.I("s_mov_b64 exec, 1")
        p.I("v_mov_b32 v1, 0"); p.I("v_mov_b32 v2, s82"); p.I("v_mov_b32 v3, s91"); p.I("v_mov_b32 v4, s90")
        p.I(f"buffer_atomic_umax v2, v1, s[76:79], 0 offen offset:{kidx*16}")
        p.I(f"buffer_atomic_umax v4, v1, s[76:79], 0 offen offset:{kidx*16+4}")
        p.I(f"buffer_atomic_umax v3, v1, s[76:79], 0 offen offset:{kidx*16+8}")
        return
    if TS == 3:
        kidx = int(tag[1]) - 1
        p.I("s_load_dwordx2 s[80:81], s[0:1], 128")
        p.I("s_waitcnt lgkmcnt(0)")
        p.I(f"s_add_u32 s76, s80, {(48<<20) + kidx*65536}"); p.I("s_addc_u32 s77, s81, 0"); p.I("s_and_b32 s77, s77, 0xffff"); p.I("s_mov_b32 s78, 65536"); p.I("s_mov_b32 s79, 0x20000")
        p.I("s_lshl_b32 s82, s2, 3"); p.I("s_add_u32 s82, s82, s3"); p.I("s_lshl_b32 s82, s82, 3")
        p.I("v_mov_b32 v1, 0"); p.I("v_mov_b32 v2, s90"); p.I("v_mov_b32 v3, s91")
        p.I("buffer_store_dwordx2 v[2:3], v1, s[76:79], s82 offen")
        return
    p.I(f"s_cmp_lg_u32 s2, {TSWG}"); p.I(f"s_cbranch_scc1 {tag}_nots")
    p.I("s_load_dwordx2 s[80:81], s[0:1], 120")
    p.I("s_waitcnt lgkmcnt(0)")
    p.I("s_mov_b32 s76, s80"); p.I("s_and_b32 s77, s81, 0xffff"); p.I("s_mov_b32 s78, 256"); p.I("s_mov_b32 s79, 0x20000")
    p.I("s_lshl_b32 s82, s3, 5")
    p.I("v_mov_b32 v1, 0")
    for i in range(n):
        p.I(f"v_mov_b32 v2, s{84+i}")
        p.I(f"buffer_store_dword v2, v1, s[76:79], s82 offen offset:{4*i}")
    p.L(f"{tag}_nots")

WS_Q   = 0
WS_O   = WS_Q + 2048*576*2
WS_K0  = WS_O + 2048*576*2
WS_KX  = WS_K0 + 65536
WS_V   = WS_KX + 16384
WS_H   = WS_V + 131072
WS_P   = WS_H + 64*4*1152*16
WS_A   = WS_P + 64*576*8
WS_PW  = WS_A + 16*576*8
WS_CF  = WS_PW + 9*576*8
WS_CF  = (WS_CF + 4095)//4096*4096
WS_H2  = WS_CF + 18*72*1024
WS_FL  = WS_H2 + 64*72*1024
WS_WF  = WS_FL + 16384
WS_END = WS_WF + 18*36*1024
WS_SIZE = 268435456
P_AX, P_LRE, P_LIM, P_BRE, P_BIM, P_CRE, P_CIM, P_LDT, P_DSK, P_BX, P_WQ, P_WK, P_WV, P_WO, P_OUT, P_DBG, P_WS = [16+2*i for i in range(17)]
def f2u(f): return struct.unpack("<I", struct.pack("<f", f))[0]
QSCALE = math.log2(math.e) / math.sqrt(18.0)

def load_ptrs(p):
    p.I("s_load_dwordx16 s[16:31], s[0:1], 0")
    p.I("s_load_dwordx16 s[32:47], s[0:1], 64")
    p.I("s_load_dwordx2 s[48:49], s[0:1], 128")

def srd(p, d, ptr, nbytes, off=0):
    if off:
        p.I(f"s_add_u32 s{d}, s{ptr}, {off}")
        p.I(f"s_addc_u32 s{d+1}, s{ptr+1}, 0")
        p.I(f"s_and_b32 s{d+1}, s{d+1}, 0xffff")
    else:
        p.I(f"s_mov_b32 s{d}, s{ptr}")
        p.I(f"s_and_b32 s{d+1}, s{ptr+1}, 0xffff")
    p.I(f"s_mov_b32 s{d+2}, {nbytes}")
    p.I(f"s_mov_b32 s{d+3}, 0x20000")

def mfma(d, a, b, c=None, kind="32x32x16"):
    na = 4 if kind in ("32x32x16", "16x16x32") else 2
    nd = 16 if kind.startswith("32x32") else 4
    cs = "0" if c is None else vr(c, nd)
    return f"v_mfma_f32_{kind}_bf16 {vr(d,nd)}, {vr(a,na)}, {vr(b,na)}, {cs}"

def cf_issue(p, tag, ldsbase):
    p.I("s_lshl_b32 s56, s7, 4"); p.I("s_add_u32 s56, s56, s4")
    p.I("s_cmp_ge_u32 s56, 54")
    p.I(f"s_cselect_b32 s72, s{P_CIM}, s{P_CRE}"); p.I(f"s_cselect_b32 s73, s{P_CIM+1}, s{P_CRE+1}")
    p.I("s_cselect_b32 s58, 36, 0"); p.I("s_cselect_b32 s59, 54, 0")
    p.I("s_and_b32 s73, s73, 0xffff"); p.I(f"s_mov_b32 s74, {576*1152}"); p.I("s_mov_b32 s75, 0x20000")
    p.I("s_sub_u32 s59, s56, s59")
    p.I("s_mul_i32 s60, s59, 43"); p.I("s_lshr_b32 s60, s60, 7")
    p.I("s_mul_i32 s61, s60, 3"); p.I("s_sub_u32 s59, s59, s61")
    p.I("s_mul_i32 s59, s59, 3"); p.I("s_add_u32 s59, s59, s6")
    p.I("s_mul_i32 s61, s60, 72"); p.I("s_add_u32 s58, s58, s61"); p.I("s_lshl_b32 s61, s59, 2"); p.I("s_add_u32 s58, s58, s61")
    p.I("s_lshl_b32 s58, s58, 10")
    p.I(f"s_mul_i32 s60, s60, {32*1152}"); p.I("s_lshl_b32 s59, s59, 7"); p.I("s_add_u32 s60, s60, s59")
    p.I("s_cmp_lt_u32 s56, 108"); p.I("s_cselect_b32 s56, 0, 1")
    p.I("s_cmp_eq_u32 s6, 3"); p.I("s_cselect_b32 s56, 1, s56")
    p.I("s_cmp_eq_u32 s56, 1"); p.I("s_cselect_b32 s60, 0x10000000, s60")
    p.I("v_lshrrev_b32 v20, 3, v0"); p.I("v_lshrrev_b32 v21, 4, v0"); p.I("v_and_b32 v22, 7, v0")
    p.I("v_xor_b32 v22, v22, v21"); p.I("v_lshlrev_b32 v22, 4, v22")
    p.I("v_mad_u32_u24 v20, v20, 1152, v22") if False else (p.I("v_mul_u32_u24 v20, 1152, v20"), p.I("v_add_u32 v20, v20, v22"))
    p.I("v_xor_b32 v21, 64, v20")
    p.I(f"s_lshl_b32 s61, s6, 12"); p.I(f"s_add_u32 s61, s61, {ldsbase}")
    for i in range(4):
        p.I(f"s_add_u32 m0, s61, {i*1024}")
        p.I(f"s_add_u32 s59, s60, {i*8*1152}")
        p.I(f"buffer_load_dwordx4 v{20 + (i & 1)}, s[72:75], s59 offen lds")

def cf_finish(p, tag):
    p.I("s_cmp_eq_u32 s56, 1"); p.I(f"s_cbranch_scc1 {tag}_cfx")
    kc_addr_setup(p, 24, 0, 22)
    p.I("v_add_u32 v24, s61, v24")
    kc_addr_finish(p, 24)
    srd(p, 72, P_WS, 18*72*1024, WS_CF)
    p.I("v_lshlrev_b32 v20, 4, v0")
    p.I("s_waitcnt vmcnt(0)")
    for s_ in range(4): p.I(kc_read(32+4*s_, 24, s_, 0))
    for s_ in range(4):
        p.I(f"s_waitcnt lgkmcnt({3-s_})")
        p.I(f"buffer_store_dwordx4 {vr(32+4*s_,4)}, v20, s[72:75], s58 offen offset:{1024*s_}")
    p.I(f"s_branch {tag}_cfy")
    p.L(f"{tag}_cfx")
    p.I("s_lshl_b32 s59, s7, 4"); p.I("s_add_u32 s59, s59, s4")
    p.I("s_cmp_ge_u32 s59, 64"); p.I(f"s_cbranch_scc1 {tag}_cfy")
    srd(p, 72, P_WS, 16384, WS_FL)
    p.I("s_lshl_b32 s59, s59, 8")
    p.I("v_lshlrev_b32 v20, 2, v0"); p.I("v_mov_b32 v21, 0")
    p.I("buffer_store_dword v21, v20, s[72:75], s59 offen")
    p.L(f"{tag}_cfy")

def wf_issue(p):
    srd(p, 64, P_WO, 576*1152); srd(p, 68, P_WS, 18*36*1024, WS_WF)
    p.I("s_lshl_b32 s54, s2, 2"); p.I("s_add_u32 s54, s54, s6")
    p.I("v_and_b32 v20, 31, v0"); p.I("v_lshlrev_b32 v20, 1, v20"); p.I("v_lshrrev_b32 v21, 5, v0")
    for r in range(2):
        if r: p.I("s_add_u32 s54, s54, 576")
        p.I("s_mul_i32 s55, s54, 1821"); p.I("s_lshr_b32 s55, s55, 16")
        p.I("s_mul_i32 s56, s55, 36"); p.I("s_sub_u32 s56, s54, s56")
        p.I("s_mul_i32 s58, s56, 18"); p.I("s_mul_i32 s59, s56, 144"); p.I(f"s_sub_u32 s59, s59, {144*32-16}")
        p.I("s_cmp_lt_u32 s56, 32")
        p.I("s_cselect_b32 s58, s58, s59"); p.I("s_cselect_b32 s60, 1, 9"); p.I(f"s_mul_i32 s59, s60, {8*1152}"); p.I(f"s_mul_i32 s60, s60, {2*1152}")
        p.I("s_mul_i32 s58, s58, 1152"); p.I("s_lshl_b32 s55, s55, 6"); p.I("s_add_u32 s58, s58, s55")
        p.I("s_cmp_lt_u32 s54, 648"); p.I("s_cselect_b32 s58, s58, 0x10000000")
        p.I(f"v_mad_u32_u24 v{22+r}, v21, s59, v20")
        for q in range(4):
            if q: p.I("s_add_u32 s58, s58, s60")
            for e in range(2): p.I(f"buffer_load_ushort v{32+8*r+2*q+e}, v{22+r}, s[64:67], s58 offen offset:{1152*e}")

def wf_finish(p):
    p.I("v_lshlrev_b32 v20, 4, v0")
    p.I("s_lshl_b32 s54, s54, 10")
    p.I(f"s_sub_u32 s55, s54, {576*1024}")
    for r in range(2):
        p.I(f"s_waitcnt vmcnt({8 if r == 0 else 1})")
        for q in range(4): p.I(f"v_lshl_or_b32 v{24+4*r+q}, v{33+8*r+2*q}, 16, v{32+8*r+2*q}")
        p.I(f"buffer_store_dwordx4 {vr(24+4*r,4)}, v20, s[68:71], s{55-r} offen")

def gemm_loader(p, tag, nch, nslots, slot_bytes, pieces, runs, s_wb, pre_issue=None, hook=None, rot=False, cf=None):
    P = len(pieces)
    wbs = sorted({(pc[6] if len(pc) > 6 else s_wb) for pc in pieces})
    if pre_issue: pre_issue()
    ROT = os.environ.get("ROT", "y")
    if rot and ROT != "0":
        if ROT == "x": p.I("s_and_b32 s56, s2, 7")
        elif ROT == "z":
            p.I("s_and_b32 s56, s2, 7"); p.I("s_add_u32 s56, s56, s5"); p.I("s_and_b32 s59, s4, 1"); p.I("s_lshl_b32 s59, s59, 2"); p.I("s_add_u32 s56, s56, s59")
            p.I("s_mul_i32 s59, s56, 57"); p.I("s_lshr_b32 s59, s59, 9"); p.I("s_mul_i32 s59, s59, 9"); p.I("s_sub_u32 s56, s56, s59")
        else:
            p.I("s_and_b32 s56, s2, 7"); p.I("s_lshr_b32 s59, s2, 3"); p.I("s_add_u32 s56, s56, s59"); p.I("s_and_b32 s56, s56, 7")
        for r, st in runs.items():
            p.I(f"s_mul_i32 s59, s56, {st}"); p.I(f"s_add_u32 s{r}, s{r}, s59")
        def hook():
            p.I("s_add_u32 s56, s56, 1"); p.I(f"s_cmp_lg_u32 s56, {nch}"); p.I(f"s_cbranch_scc1 {tag}_nw")
            for r, st in runs.items(): p.I(f"s_sub_u32 s{r}, s{r}, {st*nch}")
            p.L(f"{tag}_nw")
    p.I("s_mov_b32 s57, 0"); p.I("s_mov_b32 s58, 0")
    p.L(f"{tag}_lp")
    p.I(f"s_cmp_lt_u32 s57, {nslots-1}"); p.I(f"s_cbranch_scc1 {tag}_lnw")
    p.I(f"s_waitcnt vmcnt({(nslots-2)*P})")
    if TS == 1:
        p.I(f"s_cmp_lg_u32 s57, {nslots-1}"); p.I(f"s_cbranch_scc1 {tag}_lts"); ts(p, 2); p.L(f"{tag}_lts")
    p.I("s_barrier")
    p.L(f"{tag}_lnw")
    for pc in pieces:
        (sd, vo, run, sc, lo, op) = pc[:6]
        wb = pc[6] if len(pc) > 6 else s_wb
        if lo: p.I(f"s_add_u32 m0, s{wb}, {lo}")
        else: p.I(f"s_mov_b32 m0, s{wb}")
        if sc:
            p.I(f"s_add_u32 s60, s{run}, {sc}"); so = 60
        else: so = run; p.I("s_nop 0")
        p.I(f"{op} v{vo}, s[{sd}:{sd+3}], s{so} offen lds")
    for r, st in runs.items(): p.I(f"s_add_u32 s{r}, s{r}, {st}")
    p.I("s_add_u32 s57, s57, 1")
    p.I("s_add_u32 s58, s58, 1"); p.I(f"s_cmp_eq_u32 s58, {nslots}"); p.I("s_cselect_b32 s58, 0, s58")
    p.I(f"s_mov_b32 s59, {slot_bytes}")
    p.I(f"s_cselect_b32 s59, {(-(nslots-1)*slot_bytes) & 0xffffffff}, s59")
    for wb in wbs: p.I(f"s_add_u32 s{wb}, s{wb}, s59")
    if hook: hook()
    p.I(f"s_cmp_lt_u32 s57, {nch}"); p.I(f"s_cbranch_scc1 {tag}_lp")
    ts(p, 3)
    if cf == "wf": wf_issue(p)
    elif cf: cf_issue(p, tag, cf)
    for k in range(nslots-2, -1, -1):
        p.I(f"s_waitcnt vmcnt({k*P + (16 if cf == 'wf' else 4 if cf else 0)})")
        if k == 0: ts(p, 5)
        p.I("s_barrier")
    if cf == "wf": wf_finish(p)
    elif cf: cf_finish(p, tag)
    ts(p, 7, True); ts_flush(p, tag + "_ld")
    p.I("s_endpgm")

def gemm_compute(p, tag, nch, nslots, slot_bytes, reads, mfmas, aregs, extra=None):
    ts(p, 1)
    p.I("s_mov_b32 s57, 1"); p.I("s_mov_b32 s58, 0")
    p.I("s_waitcnt lgkmcnt(0)")
    p.I("s_barrier")
    ts(p, 2)
    p.ext(reads(0, 0))
    p.L(f"{tag}_cl")
    for s in range(3):
        r = reads(s+1, (s+1) & 1)
        p.ext(r)
        if s == 2:
            p.I("s_add_u32 s58, s58, 1"); p.I(f"s_cmp_eq_u32 s58, {nslots}"); p.I("s_cselect_b32 s58, 0, s58")
            p.I(f"s_mov_b32 s59, {slot_bytes}")
            p.I(f"s_cselect_b32 s59, {(-(nslots-1)*slot_bytes) & 0xffffffff}, s59")
            for a in aregs: p.I(f"v_add_u32 v{a}, s59, v{a}")
            for (a, st) in (extra or []): p.I(f"v_add_u32 v{a}, {st}, v{a}")
        p.I(f"s_waitcnt lgkmcnt({len(r)})")
        p.ext(mfmas(s, s & 1))
    p.I("s_waitcnt lgkmcnt(0)")
    p.I(f"s_cmp_eq_u32 s57, {nch}"); p.I(f"s_cbranch_scc1 {tag}_cx")
    p.I("s_add_u32 s57, s57, 1")
    p.I("s_barrier")
    p.ext(reads(0, 0))
    p.ext(mfmas(3, 1))
    p.I(f"s_branch {tag}_cl")
    p.L(f"{tag}_cx")
    p.ext(mfmas(3, 1))
    ts(p, 4)

def code_prefetch(p, nkb, vd):
    p.I("s_getpc_b64 s[50:51]")
    p.I(f"v_lshlrev_b32 v{vd}, 4, v0")
    for i in range(nkb):
        if i: p.I(f"v_add_u32 v{vd}, 8192, v{vd}")
        p.I(f"global_load_dwordx4 v[{vd+2}:{vd+5}], v{vd}, s[50:51]")

def kc_addr_setup(p, vbase, vl, vt):
    p.I(f"v_and_b32 v{vt}, 31, v{vl}")
    p.I(f"v_lshrrev_b32 v{vt+1}, 1, v{vt}")
    p.I(f"v_and_b32 v{vt+1}, 7, v{vt+1}")
    p.I(f"v_lshrrev_b32 v{vbase}, 5, v{vl}")
    p.I(f"v_xor_b32 v{vt+1}, v{vt+1}, v{vbase}")
    p.I(f"v_lshlrev_b32 v{vt+1}, 4, v{vt+1}")
    p.I(f"v_lshl_add_u32 v{vbase}, v{vt}, 7, v{vt+1}")

def kc_addr_finish(p, vbase, nwin=1):
    for s in range(1, 4): p.I(f"v_xor_b32 v{vbase+s}, {32*s}, v{vbase}")
    for w in range(1, nwin):
        for s in range(4): p.I(f"v_add_u32 v{vbase+4*w+s}, {65536*w}, v{vbase+s}")

def kc_read(dst, vbase, s, off):
    w, o = divmod(off, 65536)
    return f"ds_read_b128 {vr(dst,4)}, v{vbase+4*w+s} offset:{o}"

def kc_dma_voff(p, vd, vl, s_lw, vt, pitch, rowfn_a, wave_rows):
    p.I(f"v_lshrrev_b32 v{vt}, 3, v{vl}")
    p.I(f"v_lshrrev_b32 v{vt+1}, 4, v{vl}")
    p.I(f"s_and_b32 s61, s{s_lw}, 1")
    p.I(f"s_lshl_b32 s61, s61, 2")
    p.I(f"v_add_u32 v{vt+1}, s61, v{vt+1}")
    p.I(f"v_and_b32 v{vd}, 7, v{vl}")
    p.I(f"v_xor_b32 v{vd}, v{vd}, v{vt+1}")
    p.I(f"v_lshlrev_b32 v{vd}, 4, v{vd}")
    if rowfn_a == "scan":
        p.I(f"v_lshrrev_b32 v{vt+1}, 2, v{vt}")
        p.I(f"v_lshlrev_b32 v{vt+1}, 5, v{vt+1}")
        p.I(f"v_and_b32 v{vt}, 3, v{vt}")
        p.I(f"v_add_u32 v{vt}, v{vt}, v{vt+1}")
    p.I(f"s_mul_i32 s61, s{s_lw}, {wave_rows}")
    p.I(f"v_add_u32 v{vt}, s61, v{vt}")
    p.I(f"v_mul_u32_u24 v{vt}, {pitch}, v{vt}")
    p.I(f"v_add_u32 v{vd}, v{vd}, v{vt}")

def cmul(p, dr, di, ar, ai, br, bi, t):
    p.I(f"v_mul_f32 v{t}, v{ai}, v{bi}")
    p.I(f"v_mul_f32 v{t+1}, v{ai}, v{br}")
    p.I(f"v_fma_f32 v{t}, v{ar}, v{br}, -v{t}")
    p.I(f"v_fma_f32 v{di}, v{ar}, v{bi}, v{t+1}")
    p.I(f"v_mov_b32 v{dr}, v{t}")
```

```python
from common import *

def km_lane(p, vd, vl, vt, pitch, colbytes_fn):
    p.I(f"v_lshrrev_b32 v{vt}, 5, v{vl}")
    p.I(f"v_lshlrev_b32 v{vt}, 3, v{vt}")
    p.I(f"v_bfe_u32 v{vd}, v{vl}, 2, 2")
    p.I(f"v_add_u32 v{vt}, v{vt}, v{vd}")
    p.I(f"v_mul_u32_u24 v{vd}, {pitch}, v{vt}")
    colbytes_fn()
    p.I(f"v_add_u32 v{vd}, v{vd}, v{vt+1}")

PSLOT = 28672
TNS = int(os.environ.get('TNS', '4'))
FUSE = int(os.environ.get('FUSE', '1'))
PNS = int(os.environ.get('PNS', '4'))
PFW = int(os.environ.get('PFW', '256'))
def proj_loader(p, tag, PX, xoff, xbytes, PW, s_tb, s_cb, rot=False, cf=None):
    kc_dma_voff(p, 2, 0, 6, 10, 1152, "plain", 8)
    p.I(f"s_mul_i32 s54, s{s_tb}, {128*1152}")
    p.I("s_lshl_b32 s62, s6, 10")
    p.I("s_lshl_b32 s61, s6, 6")
    p.I(f"s_mul_i32 s55, s{s_cb}, 192")
    for i in range(3):
        p.I(f"v_add_u32 v10, s61, v0")
        if i: p.I(f"v_add_u32 v10, {256*i}, v10")
        p.I(f"v_mul_u32_u24 v11, 5462, v10")
        p.I(f"v_lshrrev_b32 v11, 16, v11")
        p.I(f"v_mul_u32_u24 v12, 12, v11")
        p.I(f"v_sub_u32 v12, v10, v12")
        p.I(f"v_mul_u32_u24 v11, 1152, v11")
        p.I(f"v_lshl_add_u32 v{3+i}, v12, 4, v11")
    p.I("s_waitcnt lgkmcnt(0)")
    srd(p, 64, PX, xbytes, xoff); srd(p, 68, PW, 576*1152)
    pieces = [(64, 2, 54, 32*i*1152, i*4096, "buffer_load_dwordx4") for i in range(4)]
    pieces += [(68, 3+i, 55, 0, 16384 + i*4096, "buffer_load_dwordx4") for i in range(3)]
    gemm_loader(p, tag, 9, PNS, PSLOT, pieces, {54: 128, 55: 64*1152}, 62, rot=rot, cf=cf)

def proj_compute(p, tag, epilogue, pre=None):
    VX, VW = 2, 10
    kc_addr_setup(p, VX, 0, 12)
    p.I("s_lshl_b32 s61, s6, 12")
    p.I(f"v_add_u32 v{VX}, s61, v{VX}")
    kc_addr_finish(p, VX)
    def colb():
        p.I("v_bfe_u32 v13, v0, 4, 1")
        p.I("v_lshlrev_b32 v13, 5, v13")
        p.I("v_and_b32 v14, 3, v0")
        p.I("v_lshl_add_u32 v13, v14, 3, v13")
    km_lane(p, VW, 0, 12, 192, colb)
    ACC = 16; FR = 64
    for r in range(48): p.I(f"v_mov_b32 v{ACC+r}, 0")
    if pre: pre()
    def reads(s, b):
        r = [kc_read(FR + 16*b, VX, s, 0)]
        for nt in range(3):
            for e in range(2):
                r.append(f"ds_read_b64_tr_b16 {vr(FR+16*b+4+4*nt+2*e, 2)}, v{VW} offset:{16384 + (16*s + 4*e)*192 + 64*nt}")
        return r
    def mf(s, b):
        return [mfma(ACC+16*nt, FR+16*b+4+4*nt, FR+16*b, ACC+16*nt) for nt in range(3)]
    gemm_compute(p, tag, 9, PNS, PSLOT, reads, mf, [VX, VX+1, VX+2, VX+3, VW])
    epilogue(ACC)
    ts(p, 5); ts(p, 7, True); ts_flush(p, tag + "_c"); p.I("s_endpgm")

def gemm_entry(p, name, nwg, nkb):
    p.L(name)
    p.I(f"s_cmp_ge_u32 s2, {nwg}")
    p.I(f"s_cbranch_scc1 {name}_end")
    if nkb: code_prefetch(p, nkb, 162)
    load_ptrs(p)
    ts(p, 0); ts(p, 6, True)
    p.I("v_lshrrev_b32 v1, 6, v0")
    p.I("v_and_b32 v0, 63, v0")
    p.I("v_readfirstlane_b32 s3, v1")
    p.I("s_and_b32 s4, s2, 7")
    p.I("s_lshl_b32 s4, s4, 1")
    p.I("s_bfe_u32 s5, s2, 0x10003")
    p.I("s_add_u32 s4, s4, s5")
    p.I("s_lshr_b32 s5, s2, 4")
    p.I("s_sub_u32 s7, s5, 9")
    p.I("s_and_b32 s6, s3, 3")

def gen_k1(name):
    p = Prog()
    gemm_entry(p, name, 256, 1)
    p.I("s_cmp_lt_u32 s3, 4")
    p.I("s_cbranch_scc1 k1_comp")
    p.I("s_cmp_ge_u32 s5, 9")
    p.I("s_cbranch_scc1 k1_ld12")
    kc_dma_voff(p, 2, 0, 6, 10, 1152, "scan", 4)
    p.I(f"s_mul_i32 s54, s4, {128*1152}")
    kc_dma_voff(p, 3, 0, 6, 10, 1152, "plain", 8)
    p.I(f"s_mul_i32 s55, s5, {64*1152}")
    p.I("s_lshl_b32 s62, s6, 10")
    p.I("s_waitcnt lgkmcnt(0)")
    srd(p, 64, P_AX, 2048*1152); srd(p, 68, P_BRE, 576*1152); srd(p, 72, P_BIM, 576*1152)
    pieces = [(64, 2, 54, (64*(i>>1) + 16*(i&1))*1152, i*4096, "buffer_load_dwordx4") for i in range(4)]
    pieces += [(68, 3, 55, 32*i*1152, 16384 + i*4096, "buffer_load_dwordx4") for i in range(2)]
    pieces += [(72, 3, 55, 32*i*1152, 24576 + i*4096, "buffer_load_dwordx4") for i in range(2)]
    gemm_loader(p, "k1_t3", 9, TNS, 32768, pieces, {54: 128, 55: 128}, 62, rot=True, cf=("wf" if FUSE else None))
    p.L("k1_ld12")
    p.I("s_cmp_eq_u32 s5, 15")
    p.I("s_cbranch_scc1 k1_t2")
    proj_loader(p, "k1_t1", P_BX, 0, 2048*1152, P_WQ, 4, 7, rot=True, cf=(116736 if FUSE else None))
    p.L("k1_t2")
    IMG = 25600
    kc_dma_voff(p, 2, 0, 6, 10, 1152, "plain", 8)
    p.I(f"s_mul_i32 s54, s4, {128*1152}")
    p.I("s_lshl_b32 s62, s6, 10")
    p.I("s_lshl_b32 s63, s6, 8")
    p.I("s_lshl_b32 s61, s6, 6")
    for i in range(5):
        p.I("v_add_u32 v10, s61, v0")
        if i: p.I(f"v_add_u32 v10, {256*i}, v10")
        p.I("v_mul_u32_u24 v11, 6554, v10")
        p.I("v_lshrrev_b32 v11, 16, v11")
        p.I("v_mul_u32_u24 v12, 10, v11")
        p.I("v_sub_u32 v12, v10, v12")
        p.I("v_min_u32 v12, 8, v12")
        p.I("v_mul_u32_u24 v11, 36, v11")
        p.I(f"v_lshl_add_u32 v{3+i}, v12, 2, v11")
    p.I("s_waitcnt lgkmcnt(0)")
    srd(p, 64, P_BX, 2048*1152); srd(p, 68, P_WK, 576*36); srd(p, 72, P_WV, 576*36)
    def pre():
        p.I("s_mov_b32 s60, 0")
        p.L("k1_t2_w")
        for i in range(5):
            for (sd, base) in ((68, 65536), (72, 65536 + IMG)):
                p.I(f"s_add_u32 m0, s63, {base + i*1024}")
                p.I("s_nop 0")
                p.I(f"buffer_load_dword v{3+i}, s[{sd}:{sd+3}], s60 offen lds")
        p.I("s_add_u32 s63, s63, 5120"); p.I(f"s_add_u32 s60, s60, {128*36}")
        p.I(f"s_cmp_lt_u32 s60, {5*128*36}"); p.I("s_cbranch_scc1 k1_t2_w")
    pieces = [(64, 2, 54, 32*i*1152, i*4096, "buffer_load_dwordx4") for i in range(4)]
    gemm_loader(p, "k1_t2", 9, 4, 16384, pieces, {54: 128}, 62, pre_issue=pre, cf=(116736 if FUSE else None))
    p.L("k1_comp")
    if "P" in os.environ.get("XP", ""):
        p.I("s_lshl_b32 s61, s6, 6")
        p.I("s_lshr_b32 s62, s2, 3")
        p.I(f"s_mul_i32 s62, s62, {PFW}")
        p.I("s_add_u32 s61, s61, s62")
        p.I("v_add_u32 v160, s61, v0")
        p.I("v_lshlrev_b32 v160, 7, v160")
        p.I("s_and_b32 s61, s2, 7")
        p.I(f"s_mul_i32 s61, s61, {256*1152}")
        p.I(f"s_add_u32 s62, s61, {256*1152}")
        p.I("s_mov_b32 s67, 0x20000")
        p.I("s_waitcnt lgkmcnt(0)")
        for (ptr, isx) in ((P_AX, 1), (P_BRE, 0), (P_BIM, 0), (P_BX, 1), (P_WQ, 0)):
            p.I(f"s_mov_b32 s64, s{ptr}"); p.I(f"s_and_b32 s65, s{ptr+1}, 0xffff")
            p.I("s_mov_b32 s66, s62" if isx else f"s_mov_b32 s66, {576*1152}")
            p.I(f"buffer_load_dword v161, v160, s[64:67], {'s61' if isx else '0'} offen")
    p.I("s_cmp_lt_u32 s5, 9")
    p.I("s_cbranch_scc1 k1_t3_comp")
    p.I("s_cmp_eq_u32 s5, 15")
    p.I("s_cbranch_scc1 k1_t2_comp")
    def pre_q():
        p.I("s_waitcnt lgkmcnt(0)")
        srd(p, 64, P_WS, 2048*1152, WS_Q)
        p.I("v_and_b32 v12, 31, v0")
        p.I("s_lshl_b32 s61, s4, 7")
        p.I("s_lshl_b32 s62, s6, 5")
        p.I("s_add_u32 s61, s61, s62")
        p.I("v_add_u32 v12, s61, v12")
        p.I("v_mul_u32_u24 v12, 1152, v12")
        p.I("v_lshrrev_b32 v13, 5, v0")
        p.I("v_lshl_add_u32 v12, v13, 3, v12")
        p.I("s_mul_i32 s61, s7, 192")
        p.I("v_add_u32 v12, s61, v12")
        p.I(f"s_mov_b32 s62, {f2u(QSCALE)}")
    def epi_q(ACC):
        for nt in range(3):
            for g in range(4):
                a = ACC + 16*nt + 4*g
                for e in range(4): p.I(f"v_mul_f32 v{a+e}, s62, v{a+e}")
                p.I(f"v_cvt_pk_bf16_f32 v{a}, v{a}, v{a+1}")
                p.I(f"v_cvt_pk_bf16_f32 v{a+1}, v{a+2}, v{a+3}")
                p.I(f"buffer_store_dwordx2 {vr(a,2)}, v12, s[64:67], 0 offen offset:{64*nt+16*g}")
    proj_compute(p, "k1_t1", epi_q, pre_q)
    p.L("k1_t2_comp")
    p.I("s_lshl_b32 s61, s6, 12"); p.I("s_add_u32 s61, s61, 8192")
    p.I("v_lshlrev_b32 v160, 4, v0"); p.I("v_add_u32 v160, s61, v160")
    for i in range(4): p.I(f"global_load_dwordx4 v[164:167], v160, s[50:51] offset:{1024*i}")
    VX, VW = 2, 10
    kc_addr_setup(p, VX, 0, 12)
    p.I("s_lshl_b32 s61, s6, 12")
    p.I(f"v_add_u32 v{VX}, s61, v{VX}")
    kc_addr_finish(p, VX)
    def colb():
        p.I("v_and_b32 v13, 1, v0")
        p.I("v_lshlrev_b32 v13, 1, v13")
        p.I("v_bfe_u32 v14, v0, 1, 1")
        p.I("v_or_b32 v13, v13, v14")
        p.I("v_bfe_u32 v14, v0, 4, 1")
        p.I("v_cmp_eq_u32 vcc, 1, v14")
        p.I("v_cndmask_b32 v13, v13, 4, vcc") if False else p.I("v_mov_b32 v14, 4")
        p.I("v_cndmask_b32 v13, v13, v14, vcc")
        p.I("v_lshlrev_b32 v13, 3, v13")
    km_lane(p, VW, 0, 12, 40, colb)
    p.I(f"v_add_u32 v{VW}, 65536, v{VW}")
    AK, AV, FR = 16, 32, 64
    for r in range(32): p.I(f"v_mov_b32 v{AK+r}, 0")
    def reads(s, b):
        r = [kc_read(FR+16*b, VX, s, 0)]
        for m in range(2):
            for e in range(2):
                r.append(f"ds_read_b64_tr_b16 {vr(FR+16*b+4+4*m+2*e,2)}, v{VW} offset:{m*IMG + (16*s+4*e)*40}")
        return r
    def mf(s, b):
        return [mfma(AK, FR+16*b+4, FR+16*b, AK), mfma(AV, FR+16*b, FR+16*b+8, AV)]
    gemm_compute(p, "k1_t2", 9, 4, 16384, reads, mf, [VX, VX+1, VX+2, VX+3], extra=[(VW, 2560)])
    srd(p, 64, P_WS, WS_H - WS_K0, WS_K0)
    p.I("s_lshl_b32 s7, s4, 2")
    p.I("s_add_u32 s7, s7, s6")
    p.I("v_lshlrev_b32 v12, 4, v0")
    for i in range(5): p.I(f"v_cvt_pk_bf16_f32 v{48+i}, v{AK+2*i}, v{AK+2*i+1}")
    p.I("s_lshl_b32 s61, s7, 10")
    p.I("buffer_store_dwordx4 v[48:51], v12, s[64:67], s61 offen")
    p.I("s_lshr_b32 s61, s7, 2"); p.I("s_lshl_b32 s61, s61, 10")
    p.I("s_and_b32 s62, s7, 1"); p.I("s_lshl_b32 s62, s62, 9"); p.I("s_add_u32 s61, s61, s62")
    p.I("s_bfe_u32 s62, s7, 0x10001"); p.I("s_lshl_b32 s62, s62, 3"); p.I("s_add_u32 s61, s61, s62")
    p.I(f"s_add_u32 s61, s61, {WS_KX-WS_K0}")
    p.I("v_lshrrev_b32 v13, 5, v0")
    p.I("v_lshlrev_b32 v13, 28, v13")
    p.I("v_add_u32 v13, v13, v12")
    p.I("v_mov_b32 v53, 0")
    p.I("buffer_store_dwordx2 v[52:53], v13, s[64:67], s61 offen")
    for i in range(8): p.I(f"v_cvt_pk_bf16_f32 v{56+i}, v{AV+2*i}, v{AV+2*i+1}")
    p.I("v_and_b32 v14, 31, v0")
    p.I("v_cmp_eq_u32 vcc, 20, v14")
    p.I("v_mov_b32 v15, 0x3f803f80")
    for i in range(8): p.I(f"v_cndmask_b32 v{56+i}, v{56+i}, v15, vcc")
    p.I("s_lshl_b32 s61, s7, 11")
    p.I(f"s_add_u32 s61, s61, {WS_V-WS_K0}")
    p.I("buffer_store_dwordx4 v[56:59], v12, s[64:67], s61 offen")
    p.I("buffer_store_dwordx4 v[60:63], v12, s[64:67], s61 offen offset:1024")
    ts(p, 5); ts(p, 7, True); ts_flush(p, "k1t2c"); p.I("s_endpgm")

    p.L("k1_t3_comp")
    p.I("s_and_b32 s7, s6, 1")
    p.I("s_lshr_b32 s8, s6, 1")
    p.I("s_lshl_b32 s61, s5, 6")
    p.I("s_lshl_b32 s62, s8, 5")
    p.I("s_add_u32 s61, s61, s62")
    p.I("v_and_b32 v1, 31, v0")
    p.I("v_add_u32 v1, s61, v1")
    p.I("v_lshlrev_b32 v20, 1, v1")
    p.I("s_waitcnt lgkmcnt(0)")
    p.I(f"global_load_ushort v21, v20, s[{P_LRE}:{P_LRE+1}]")
    p.I(f"global_load_ushort v22, v20, s[{P_LIM}:{P_LIM+1}]")
    p.I(f"global_load_ushort v23, v20, s[{P_LDT}:{P_LDT+1}]")
    VX, VB = 2, 6
    kc_addr_setup(p, VX, 0, 18)
    p.I(f"v_mov_b32 v{VB}, v{VX}")
    p.I("s_lshl_b32 s61, s7, 13")
    p.I(f"v_add_u32 v{VX}, s61, v{VX}")
    p.I("s_lshl_b32 s61, s8, 12")
    p.I(f"v_add_u32 v{VB}, s61, v{VB}")
    kc_addr_finish(p, VX); kc_addr_finish(p, VB)
    LOG2E = f2u(math.log2(math.e))
    for r in range(64): p.I(f"v_mov_b32 v{64+r}, 0")
    p.I("s_waitcnt vmcnt(0)")
    p.I("v_lshlrev_b32 v21, 16, v21")
    p.I("v_lshlrev_b32 v22, 16, v22")
    p.I("v_lshlrev_b32 v23, 16, v23")
    p.I(f"v_mul_f32 v23, {LOG2E}, v23")
    p.I("v_exp_f32 v23, v23")
    p.I("v_cvt_pk_bf16_f32 v23, v23, v23")
    p.I("v_lshlrev_b32 v23, 16, v23")
    p.I("v_mul_f32 v36, v23, v21")
    p.I("v_mul_f32 v37, v23, v22")
    p.I(f"v_mul_f32 v36, {LOG2E}, v36")
    p.I("v_exp_f32 v36, v36")
    p.I("v_mul_f32 v37, 0.15915494, v37")
    p.I("v_rndne_f32 v38, v37")
    p.I("v_sub_f32 v37, v37, v38")
    p.I("v_cos_f32 v24, v37")
    p.I("v_sin_f32 v25, v37")
    p.I("v_mul_f32 v24, v36, v24")
    p.I("v_mul_f32 v25, v36, v25")
    p.I("v_sub_f32 v26, 0, v25")
    p.I("v_add_f32 v36, -1.0, v24")
    p.I("v_mul_f32 v37, v21, v21")
    p.I("v_fmac_f32 v37, v22, v22")
    p.I("v_rcp_f32 v37, v37")
    p.I("v_mul_f32 v38, v36, v21")
    p.I("v_fmac_f32 v38, v25, v22")
    p.I("v_mul_f32 v39, v25, v21")
    p.I("v_fma_f32 v39, -v36, v22, v39")
    p.I("v_add_f32 v37, v37, v37")
    p.I("v_mul_f32 v28, v38, v37"); p.I("v_mov_b32 v29, v28")
    p.I("v_mul_f32 v30, v39, v37"); p.I("v_sub_f32 v30, 0, v30"); p.I("v_mov_b32 v31, v30")
    p.I("v_sub_f32 v32, 0, v28"); p.I("v_mov_b32 v33, v32")
    p.I("v_mov_b32 v40, v24"); p.I("v_mov_b32 v41, v26")
    cmul(p, 44, 45, 40, 41, 40, 41, 36)
    for _ in range(3): cmul(p, 44, 45, 44, 45, 44, 45, 36)
    cmul(p, 34, 35, 44, 45, 44, 45, 36)
    p.I("s_cmp_lg_u32 s4, 0"); p.I("s_cbranch_scc1 k1_t3_nopw")
    p.I("s_cmp_lg_u32 s7, 0"); p.I("s_cbranch_scc1 k1_t3_nopw")
    srd(p, 64, P_WS, 9*576*8, WS_PW)
    p.I("v_lshlrev_b32 v20, 3, v1")
    for m in range(8):
        p.I(f"s_mov_b32 s61, {m*4608}")
        p.I("buffer_store_dwordx2 v[40:41], v20, s[64:67], s61 offen")
        if m < 7:
            cmul(p, 42, 43, 40, 41, 44, 45, 36)
            p.I("s_nop 0")
            p.I("v_mov_b32 v40, v42"); p.I("v_mov_b32 v41, v43")
    cmul(p, 42, 43, 34, 35, 34, 35, 36)
    cmul(p, 42, 43, 42, 43, 42, 43, 36)
    p.I(f"s_mov_b32 s61, {8*4608}")
    p.I("buffer_store_dwordx2 v[42:43], v20, s[64:67], s61 offen")
    p.L("k1_t3_nopw")
    srd(p, 64, P_WS, WS_PW - WS_H, WS_H)
    p.I("s_lshl_b32 s9, s4, 2")
    p.I("s_lshl_b32 s61, s7, 1")
    p.I("s_add_u32 s9, s9, s61")
    p.I("v_lshrrev_b32 v19, 5, v0")
    p.I("v_add_u32 v18, s9, v19")
    p.I(f"v_mul_u32_u24 v20, {4*1152}, v18")
    p.I("v_add_u32 v20, v20, v1")
    p.I("v_lshlrev_b32 v20, 4, v20")
    p.I(f"v_mul_u32_u24 v21, 576, v18")
    p.I("v_add_u32 v21, v21, v1")
    p.I("v_lshlrev_b32 v21, 3, v21")
    AR, AI, FR = 64, 96, 128
    def reads(s, b):
        f = FR + 16*b
        return [kc_read(f, VX, s, 0), kc_read(f+8, VB, s, 16384), kc_read(f+4, VX, s, 4096), kc_read(f+12, VB, s, 24576)]
    def mf(s, b):
        f = FR + 16*b
        return [mfma(AR, f, f+8, AR), mfma(AI, f, f+12, AI), mfma(AR+16, f+4, f+8, AR+16), mfma(AI+16, f+4, f+12, AI+16)]
    gemm_compute(p, "k1_t3", 9, TNS, 32768, reads, mf, list(range(VX, VX+8)))
    for t in range(1, 32):
        p.I(f"v_fmac_f32 v{AR+t}, v24, v{AR+t-1}")
        p.I(f"v_fmac_f32 v{AI+t}, v24, v{AI+t-1}")
        p.I(f"v_fmac_f32 v{AR+t}, v26, v{AI+t-1}")
        p.I(f"v_fmac_f32 v{AI+t}, v25, v{AR+t-1}")
    PKR, PKI = 128, 144
    for t in range(0, 32, 2):
        p.I(f"v_pk_mul_f32 v[36:37], {vr(AI+t,2)}, v[30:31]")
        p.I(f"v_pk_mul_f32 v[38:39], {vr(AR+t,2)}, v[30:31]")
        p.I(f"v_pk_fma_f32 v[36:37], {vr(AR+t,2)}, v[28:29], v[36:37]")
        p.I(f"v_pk_fma_f32 v[38:39], {vr(AI+t,2)}, v[32:33], v[38:39]")
        p.I(f"v_cvt_pk_bf16_f32 v{PKR+t//2}, v36, v37")
        p.I(f"v_cvt_pk_bf16_f32 v{PKI+t//2}, v38, v39")
        if t % 8 == 6:
            q = t // 8
            p.I(f"s_mov_b32 s61, {q*18432}")
            p.I(f"buffer_store_dwordx4 {vr(PKR+4*q,4)}, v20, s[64:67], s61 offen")
            p.I(f"s_mov_b32 s61, {q*18432+9216}")
            p.I(f"buffer_store_dwordx4 {vr(PKI+4*q,4)}, v20, s[64:67], s61 offen")
    p.I("v_mov_b32 v40, v37"); p.I("v_mov_b32 v41, v39")
    p.I("v_and_b32 v22, 31, v0")
    p.I("s_lshl_b32 s61, s8, 5")
    p.I("v_add_u32 v22, s61, v22")
    p.I("v_lshlrev_b32 v22, 5, v22")
    p.I("v_add_u32 v22, 0x20000, v22")
    p.I("s_lshl_b32 s61, s7, 4")
    p.I("v_lshl_add_u32 v23, v19, 3, v22")
    p.I("v_add_u32 v23, s61, v23")
    p.I("ds_write_b64 v23, v[40:41]")
    p.I("s_waitcnt lgkmcnt(0)")
    p.I("s_barrier")
    p.I("ds_read_b128 v[48:51], v22")
    p.I("ds_read_b128 v[52:55], v22 offset:16")
    p.I("v_cmp_eq_u32 vcc, 1, v19")
    p.I("s_waitcnt lgkmcnt(0)")
    def chain(dr, di, ar, ai, er, ei):
        p.I(f"v_fma_f32 v{dr}, v34, v{ar}, v{er}")
        p.I(f"v_fma_f32 v{di}, v34, v{ai}, v{ei}")
        p.I(f"v_fma_f32 v{dr}, -v35, v{ai}, v{dr}")
        p.I(f"v_fma_f32 v{di}, v35, v{ar}, v{di}")
    p.I("s_cmp_eq_u32 s7, 1")
    p.I("s_cbranch_scc1 k1_t3_th1")
    p.I("v_cndmask_b32 v56, 0, v48, vcc")
    p.I("v_cndmask_b32 v57, 0, v49, vcc")
    p.I(f"s_mov_b32 s61, {WS_P-WS_H}")
    p.I("buffer_store_dwordx2 v[56:57], v21, s[64:67], s61 offen")
    ts(p, 5); ts(p, 7, True); ts_flush(p, "k1t3a"); p.I("s_endpgm")
    p.L("k1_t3_th1")
    chain(56, 57, 48, 49, 50, 51)
    chain(58, 59, 56, 57, 52, 53)
    chain(60, 61, 58, 59, 54, 55)
    p.I("v_cndmask_b32 v56, v56, v58, vcc")
    p.I("v_cndmask_b32 v57, v57, v59, vcc")
    p.I(f"s_mov_b32 s61, {WS_P-WS_H}")
    p.I("buffer_store_dwordx2 v[56:57], v21, s[64:67], s61 offen")
    p.I("s_lshr_b32 s61, s4, 1"); p.I(f"s_mul_i32 s61, s61, {576*16}")
    p.I("s_and_b32 s62, s4, 1"); p.I("s_lshl_b32 s62, s62, 3"); p.I("s_add_u32 s61, s61, s62")
    p.I(f"s_add_u32 s61, s61, {WS_A-WS_H}")
    p.I("v_lshlrev_b32 v22, 4, v1")
    p.I("buffer_store_dwordx2 v[60:61], v22, s[64:67], s61 offen")
    ts(p, 5); ts(p, 7, True); ts_flush(p, "k1t3b")
    p.L(f"{name}_end")
    p.I("s_endpgm")
    return p, 168, max(133120, TNS*32768, PNS*PSLOT)
```

```python
from common import *

KX, K0, VV, S0, S1, O0, O1, QB0, QB1, HX = 16, 24, 56, 120, 136, 152, 168, 184, 192, 200
SLOT = 2576
V_Q0, V_QA, V_QB, V_KV, V_VA, V_O16, V_O8, V_I16, V_I8, V_ONE, V_F, V_H = 2, 3, 4, 5, 6, 7, 8, 9, 10, 11, 12, 13
SQ, SKV, SH, SO = 52, 56, 60, 64

def pk_cfma(p, d, a, b, c, t):
    if c is None: p.I(f"v_pk_mul_f32 {vr(t,2)}, {vr(a,2)}, {vr(b,2)} op_sel_hi:[1,0]")
    else: p.I(f"v_pk_fma_f32 {vr(t,2)}, {vr(a,2)}, {vr(b,2)}, {vr(c,2)} op_sel_hi:[1,0,1]")
    p.I(f"v_pk_fma_f32 {vr(d,2)}, {vr(a,2)}, {vr(b,2)}, {vr(t,2)} op_sel:[1,1,0] op_sel_hi:[0,1,1] neg_lo:[0,1,0]")

def q_loads(p, qb, soff):
    p.I(f"buffer_load_dwordx4 {vr(qb,4)}, v{V_Q0}, s[{SQ}:{SQ+3}], s{soff} offen")
    p.I(f"buffer_load_dword v{qb+4}, v{V_QA}, s[{SQ}:{SQ+3}], s{soff} offen")
    p.I(f"buffer_load_dword v{qb+6}, v{V_QB}, s[{SQ}:{SQ+3}], s{soff} offen")

def x8(j, s, qb, c=None): return mfma(s, KX + 2*(j >> 1), qb + 4 + 2*(j & 1), c, "32x32x8")
def x16(j, s, qb): return mfma(s, K0 + 4*j, qb, s)
def pv(j, m, s, o): return mfma(o, VV + 8*j + 4*m, s + 4*m, o)
def ex(r): return f"v_exp_f32 v{r}, v{r}"
def cv(s, k): return f"v_cvt_pk_bf16_f32 v{s+k}, v{s+2*k}, v{s+2*k+1}"

XP = os.environ.get("XP", "")
def kv_bases(p, g):
    p.I(f"s_lshl_b32 s13, s{g}, 13")
    p.I(f"s_lshl_b32 s14, s{g}, 14"); p.I(f"s_add_u32 s14, s14, {WS_V-WS_K0}")
    p.I(f"s_lshl_b32 s15, s{g}, 11"); p.I(f"s_add_u32 s15, s15, {WS_KX-WS_K0}")
def ld_k0(p, j):
    p.I(f"s_add_u32 s7, s13, {(j//4)*4096}")
    p.I(f"buffer_load_dwordx4 {vr(K0+4*j,4)}, v{V_KV}, s[{SKV}:{SKV+3}], s7 offen offset:{(j%4)*1024}")
def ld_v(p, j):
    p.I(f"s_add_u32 s7, s14, {(j//2)*4096}")
    p.I(f"buffer_load_dwordx4 {vr(VV+8*j,4)}, v{V_VA}, s[{SKV}:{SKV+3}], s7 offen offset:{(j%2)*2048}")
    p.I(f"buffer_load_dwordx4 {vr(VV+8*j+4,4)}, v{V_VA}, s[{SKV}:{SKV+3}], s7 offen offset:{(j%2)*2048+1024}")
def ld_kx(p):
    p.I(f"buffer_load_dwordx4 {vr(KX,4)}, v{V_KV}, s[{SKV}:{SKV+3}], s15 offen")
    p.I(f"buffer_load_dwordx4 {vr(KX+4,4)}, v{V_KV}, s[{SKV}:{SKV+3}], s15 offen offset:1024")

def fixup_loads(p):
    p.I("s_lshr_b32 s7, s2, 2")
    p.I("s_mov_b32 s9, s5")
    p.I("s_cmp_ge_u32 s9, 9"); p.I("s_cselect_b32 s10, 1, 0")
    p.I("s_mul_i32 s11, s10, 9"); p.I("s_sub_u32 s9, s9, s11")
    p.I("s_lshl_b32 s70, s9, 12"); p.I("s_lshl_b32 s11, s10, 8"); p.I("s_add_u32 s70, s70, s11")
    p.I(f"s_mul_i32 s11, s7, {72*1024}"); p.I("s_add_u32 s70, s70, s11"); p.I(f"s_add_u32 s70, s70, {WS_H2-WS_H}")
    p.I("s_lshl_b32 s9, s9, 6")
    p.I(f"v_add_u32 v{V_H}, s9, v0")
    p.I(f"v_lshlrev_b32 v14, 3, v{V_H}")
    p.I(f"v_lshlrev_b32 v{V_H}, 4, v{V_H}")
    p.I("s_lshr_b32 s68, s7, 2")
    T = HX + 16
    def ld2(d, s): p.I(f"buffer_load_dwordx2 {vr(d,2)}, v14, s[{SH}:{SH+3}], s{s} offen")
    p.I(f"s_mov_b32 s11, {WS_PW-WS_H+8*4608}"); ld2(T+6, 11)
    for jj in range(8):
        p.I(f"s_cmp_le_u32 s68, {2*jj}"); p.I("s_cbranch_scc1 k2_fx_ld")
        p.I(f"s_mov_b32 s11, {WS_A-WS_H+jj*9216}")
        p.I(f"buffer_load_dwordx4 {vr(S0+4*jj,4)}, v{V_H}, s[{SH}:{SH+3}], s11 offen")
    p.L("k2_fx_ld")
    p.I(f"s_mov_b32 s11, {WS_PW-WS_H}"); ld2(T, 11)
    p.I("s_mul_i32 s9, s10, 4608"); p.I("s_add_u32 s11, s11, s9"); ld2(T+2, 11)
    p.I("s_and_b32 s9, s7, 3"); p.I("s_mul_i32 s9, s9, 9216"); p.I("s_add_u32 s11, s11, s9"); ld2(T+4, 11)
    p.I("s_mul_i32 s11, s7, 4608"); p.I(f"s_add_u32 s11, s11, {WS_P-WS_H}"); ld2(T+8, 11)
    p.I("s_lshl_b32 s6, s7, 1"); p.I("s_add_u32 s6, s6, s10"); p.I(f"s_mul_i32 s6, s6, {2*18432}")
    for i in range(4):
        p.I(f"s_add_u32 s11, s6, {i*9216}")
        p.I(f"buffer_load_dwordx4 {vr(HX+4*i,4)}, v{V_H}, s[{SH}:{SH+3}], s11 offen")

FXB = int(os.environ.get('FXB', '0'))
FXA = FXB + 2
PRI = int(os.environ.get('PRI', '0'))
def fixup_compute(p, nyounger):
    T = HX + 16
    PW0, PWH, PWC, L128, PP, G, X, Y, TM = T, T+2, T+4, T+6, T+8, T+10, T+12, T+14, T+16
    p.I(f"v_mov_b32 v{G}, 0"); p.I(f"v_mov_b32 v{G+1}, 0")
    p.I("s_mov_b32 s10, 0x3f80"); p.I("s_mov_b32 s11, 0x3f800000")
    p.I(f"s_waitcnt vmcnt({nyounger+8})")
    for jj in range(15):
        p.I(f"s_cmp_le_u32 s68, {jj}"); p.I("s_cbranch_scc1 k2_fx_h")
        pk_cfma(p, G, G, L128, S0+2*jj, TM)
    p.L("k2_fx_h")
    for j in range(3, 3+FXB): ld_k0(p, j); ld_v(p, j-1)
    nyounger += 3*FXB
    p.I("v_bfe_u32 v14, v0, 1, 1"); p.I("v_lshlrev_b32 v14, 10, v14")
    p.I("v_lshrrev_b32 v15, 4, v0"); p.I("v_lshlrev_b32 v15, 3, v15")
    p.I("v_bfe_u32 v1, v0, 2, 2"); p.I("v_add_u32 v15, v15, v1")
    p.I("v_lshl_add_u32 v14, v15, 4, v14")
    p.I("v_and_b32 v1, 1, v0"); p.I("v_lshl_add_u32 v14, v1, 3, v14")
    p.I(f"s_mul_i32 s7, s3, {7*SLOT}"); p.I(f"s_add_u32 s7, s7, {6*SLOT}")
    p.I("v_add_u32 v14, s7, v14")
    p.I("v_and_b32 v15, 15, v0"); p.I("v_lshlrev_b32 v15, 4, v15")
    p.I("v_bfe_u32 v1, v0, 4, 1"); p.I("v_lshl_add_u32 v15, v1, 9, v15")
    p.I("v_lshrrev_b32 v1, 5, v0"); p.I("v_lshl_add_u32 v15, v1, 10, v15")
    p.I(f"s_waitcnt vmcnt({nyounger+4})")
    pk_cfma(p, X, PP, PWH, None, X)
    pk_cfma(p, L128, PW0, PW0, None, L128)
    pk_cfma(p, X, G, PWC, X, TM)
    pk_cfma(p, Y, X, PW0, None, Y)
    p.I(f"s_waitcnt vmcnt({nyounger})")
    for k in range(8):
        q, e = divmod(k, 4)
        hr, hi = HX + 8*q + e, HX + 8*q + 4 + e
        p.I(f"v_dot2_f32_bf16 v{TM}, v{hr}, s10, v{X}")
        p.I(f"v_dot2_f32_bf16 v{TM+1}, v{hr}, s11, v{Y}")
        p.I(f"v_dot2_f32_bf16 v{TM+2}, v{hi}, s10, v{X+1}")
        p.I(f"v_dot2_f32_bf16 v{TM+3}, v{hi}, s11, v{Y+1}")
        if k < 7:
            p.I(f"v_pk_mul_f32 {vr(TM+4,2)}, {vr(X,2)}, {vr(L128,2)} op_sel_hi:[1,0]")
            p.I(f"v_pk_mul_f32 {vr(TM+6,2)}, {vr(Y,2)}, {vr(L128,2)} op_sel_hi:[1,0]")
        p.I(f"v_cvt_pk_bf16_f32 v{hr}, v{TM}, v{TM+1}")
        p.I(f"v_cvt_pk_bf16_f32 v{hi}, v{TM+2}, v{TM+3}")
        if k < 7:
            for (g, t) in ((X, TM+4), (Y, TM+6)):
                p.I(f"v_pk_fma_f32 {vr(g,2)}, {vr(g,2)}, {vr(L128,2)}, {vr(t,2)} op_sel:[1,1,0] op_sel_hi:[0,1,1] neg_lo:[0,1,0]")
        if e == 3:
            for c in range(2): p.I(f"ds_write_b128 v{V_O16}, {vr(HX+8*q+4*c,4)} offset:{(5+c)*SLOT + q*1024}")
    p.I("s_waitcnt lgkmcnt(0)")
    for c in range(2):
        for m in range(2):
            for e in range(2):
                p.I(f"ds_read_b64_tr_b16 {vr(T+8*c+4*m+2*e,2)}, v14 offset:{c*SLOT + m*512 + e*64}")
    p.I(f"s_add_u32 s71, s70, {36*1024}")
    for c in range(2):
        for m in range(2):
            p.I(f"s_waitcnt lgkmcnt({6-4*c-2*m})")
            p.I(f"buffer_store_dwordx4 {vr(T+8*c+4*m,4)}, v15, s[{SH}:{SH+3}], s{70+c} offen offset:{m*2048}" + ("" if "S" in XP else " sc1"))
    for j in range(3+FXB, 8): ld_k0(p, j); ld_v(p, j-1)
    ld_v(p, 7)
    p.I("s_and_b32 s9, s69, 7"); p.I("s_mul_i32 s9, s9, 144"); p.I("s_add_u32 s9, s9, s8")
    q_loads(p, QB1, 9)

NSL = os.environ.get("NSL", "0")
_slc = [0]
def osleep(p, j, pos, kind):
    if kind == "first": return
    n = int(NSL[j % len(NSL)])
    if pos not in {0: (), 1: (1,), 2: (0, 2), 3: (0, 1, 2), 4: (0, 1, 2, 3)}[n]: return
    _slc[0] += 1
    p.I(f"s_cbranch_vccz k2_sl{_slc[0]}"); p.I("s_sleep 1"); p.L(f"k2_sl{_slc[0]}")

ACC, RG, V_HF, V_CF, V_FL, V_T = 200, 216, 248, 249, 250, 251
EXB = 57*SLOT
SOUT, SXA, SDK = 72, 92, 96
PJ = int(os.environ.get('PJ', '1'))
XD = 240
class VM:
    def __init__(s): s.q = []
    def iss(s, tag, n=1): s.q += [tag]*n
    def wait(s, p, tag):
        idx = max([i for i, t in enumerate(s.q) if t == tag], default=None)
        if idx is None: return
        p.I(f"s_waitcnt vmcnt({len(s.q)-1-idx})"); s.q = s.q[idx+1:]
def ss_load(p, vm, n):
    r = RG + 8*(n & 3)
    p.I(f"buffer_load_dwordx4 {vr(r,4)}, v{V_CF}, s[{SH}:{SH+3}], s70 offen offset:{(n&3)*1024}")
    p.I(f"buffer_load_dwordx4 {vr(r+4,4)}, v{V_HF}, s[{SH}:{SH+3}], s70 offen offset:{(n&3)*1024} sc1")
    vm.iss(("ss", n), 2)
    if n & 3 == 3: p.I("s_add_u32 s70, s70, 4096")

def emit_round(p, rho, vm, fx=False, tg=None):
    par = rho & 1
    kind = "first" if rho == 0 else ("last" if rho == 7 else "mid")
    QC, QN = (QB0, QB1) if par == 0 else (QB1, QB0)
    OC, OP = (O0, O1) if par == 0 else (O1, O0)
    lo = (1 - par) * SLOT
    tg = tg or f"r{rho}"
    prog = kind == "first" and not fx
    for j in range(8):
        A, B = (S0, S1) if j % 2 == 0 else (S1, S0)
        jn, qn = (j+1, QC) if j < 7 else (0, QN)
        nxt = not (kind == "last" and j == 7)
        n = 8*(rho-3) + j
        ss = 0 <= n < 36 and "S" not in XP
        p.I(ex(A)); p.I(ex(A+1))
        if not (kind == "first" and j == 0): p.I(pv((j-1) % 8, 1, B, OC if j else OP))
        for r in range(2, 6): p.I(ex(A+r))
        if j == 7 and nxt:
            vm.wait(p, "q")
        if nxt: p.I(x8(jn, B, qn))
        p.I(ex(A+6)); p.I(ex(A+7))
        for k in range(4): p.I(cv(A, k))
        if kind == "first" and j < 7: vm.wait(p, ("k", j+1))
        if nxt: p.I(x16(jn, B, qn))
        p.I(ex(A+8)); p.I(ex(A+9))
        if kind == "first":
            if not fx and j <= 4: ld_k0(p, j+3); vm.iss(("k", j+3))
            if not fx and j <= 5: ld_v(p, j+2); vm.iss(("v", j+2), 2)
            if fx and j == FXA and "S" not in XP:
                p.I("s_lshr_b32 s7, s2, 2"); p.I("s_lshl_b32 s7, s7, 5"); p.I("s_add_u32 s7, s7, s5"); p.I("s_lshl_b32 s7, s7, 2")
                p.I(f"s_add_u32 s7, s7, {WS_FL-WS_H}")
                vm.wait(p, "st")
                p.I("s_mov_b64 exec, 1")
                p.I(f"buffer_store_dword v{V_ONE}, v{V_KV}, s[{SH}:{SH+3}], s7 offen sc1"); vm.iss("fl")
                p.I("s_mov_b64 exec, -1")
            if j == 5 and not fx: q_loads(p, QN, 9); vm.iss("q", 3)
            if j == 7 and fx and PFK3:
                p.I("s_lshl_b32 s9, s3, 8"); p.I("s_add_u32 s9, s9, s2"); p.I(f"s_sub_u32 s9, s9, {5*256}")
                p.I("s_cmp_ge_u32 s9, 81"); p.I("s_cbranch_scc1 k2_nopf")
                p.I("s_lshl_b32 s9, s2, 13"); p.I(f"v_lshlrev_b32 v14, 7, v0")
                srd(p, 72, P_WS, 576*1152, WS_WF)
                p.I(f"buffer_load_dword v15, v14, s[72:75], s9 offen")
                p.L("k2_nopf")
        else:
            if j == 0:
                p.I(f"ds_write_b128 v{V_O16}, {vr(OP,4)} offset:{lo}")
                p.I(f"ds_write_b128 v{V_O16}, {vr(OP+4,4)} offset:{lo+1024}")
                p.I(f"ds_write_b64 v{V_O8}, {vr(OP+8,2)} offset:{lo}")
                if kind != "last":
                    p.I("s_add_u32 s69, s69, 1"); p.I("s_and_b32 s9, s69, 7"); p.I("s_mul_i32 s9, s9, 144"); p.I("s_add_u32 s9, s9, s8")
                    q_loads(p, QN, 9); vm.iss("q", 3)
            if j == 1:
                p.I("s_waitcnt lgkmcnt(0)")
                p.I("s_mov_b64 exec, 1")
                p.I(f"ds_write_b32 v{V_O8}, v{V_ONE} offset:{lo+512}")
                p.I("s_mov_b64 exec, -1")
            if rho == 1 and j == 2 and "S" not in XP:
                srd(p, SXA, P_AX, 2048*1152); srd(p, SDK, P_DSK, 1152)
                p.I("s_and_b32 s9, s2, 3"); p.I("s_lshl_b32 s9, s9, 2"); p.I("s_and_b32 s10, s3, 3"); p.I("s_add_u32 s9, s9, s10")
                p.I("s_lshl_b32 s9, s9, 6"); p.I("s_lshr_b32 s10, s3, 2"); p.I("s_lshl_b32 s10, s10, 5"); p.I("s_add_u32 s68, s9, s10")
                p.I("s_lshr_b32 s10, s2, 2"); p.I(f"s_mul_i32 s10, s10, {32*1152}"); p.I("s_add_u32 s10, s10, s68")
                p.I("v_lshrrev_b32 v14, 5, v0"); p.I("v_lshlrev_b32 v14, 3, v14")
                p.I("v_and_b32 v15, 31, v0"); p.I("v_mul_u32_u24 v15, 1152, v15"); p.I("v_add_u32 v15, v15, v14")
                for g in range(2):
                    p.I(f"buffer_load_dwordx2 {vr(XD+2*g,2)}, v15, s[{SXA}:{SXA+3}], s10 offen offset:{16*g}")
                    p.I(f"buffer_load_dwordx2 {vr(XD+4+2*g,2)}, v14, s[{SDK}:{SDK+3}], s68 offen offset:{16*g}")
                vm.iss("xd", 4)
            if rho == 2 and "S" not in XP:
                if j == PJ:
                    vm.wait(p, "xd")
                    p.I(f"buffer_load_dword v{V_T}, v{V_FL}, s[{SH}:{SH+3}], 0 offen sc1")
                    for i in range(4):
                        p.I(f"v_and_b32 v14, 0xffff, v{XD+4+i}"); p.I(f"v_and_b32 v15, 0xffff0000, v{XD+4+i}")
                        p.I(f"v_dot2_f32_bf16 v{ACC+2*i}, v{XD+i}, v14, 0")
                        p.I(f"v_dot2_f32_bf16 v{ACC+2*i+1}, v{XD+i}, v15, 0")
                    for r in range(8, 16): p.I(f"v_mov_b32 v{ACC+r}, 0")
                    p.I("s_mov_b32 s70, 0")
                if j == PJ + 2:
                    p.I("s_mov_b32 s71, 0")
                    p.L("k2_fpoll")
                    p.I("s_waitcnt vmcnt(0)"); vm.q = []
                    p.I(f"v_cmp_ne_u32 vcc, 1, v{V_T}")
                    p.I("s_cbranch_vccz k2_fok")
                    p.I("s_add_u32 s71, s71, 1"); p.I("s_cmp_gt_u32 s71, 0x40000"); p.I("s_cbranch_scc1 k2_fok")
                    p.I("s_sleep 4")
                    p.I(f"buffer_load_dword v{V_T}, v{V_FL}, s[{SH}:{SH+3}], 0 offen sc1")
                    p.I("s_branch k2_fpoll")
                    p.L("k2_fok")
                    for m in range(4): ss_load(p, vm, m)
            if rho == 7 and "S" not in XP:
                if j == 1:
                    srd(p, SOUT, P_OUT, 2048*4608)
                    p.I("s_mov_b32 s9, s68")
                    p.I(f"v_lshrrev_b32 v{V_HF}, 5, v0"); p.I(f"v_lshlrev_b32 v{V_HF}, 3, v{V_HF}")
                    p.I(f"v_and_b32 v{V_CF}, 31, v0"); p.I(f"v_mul_u32_u24 v{V_CF}, 4608, v{V_CF}"); p.I(f"v_lshl_add_u32 v{V_CF}, v{V_HF}, 1, v{V_CF}")
                    p.I("s_lshr_b32 s10, s2, 2"); p.I(f"s_mul_i32 s10, s10, {32*4608}"); p.I("s_lshl_b32 s9, s9, 1"); p.I("s_add_u32 s70, s10, s9")
                    p.I("s_lshl_b32 s9, s3, 11"); p.I(f"s_add_u32 s9, s9, {EXB}")
                    p.I(f"v_add_u32 v{V_HF}, s9, v{V_KV}")
                    p.I("s_lshl_b32 s9, s3, 2"); p.I(f"v_mov_b32 v{V_FL}, s9")
                if j == 4:
                    p.I(f"ds_write_b128 v{V_HF}, {vr(ACC+8,4)}"); p.I(f"ds_write_b128 v{V_HF}, {vr(ACC+12,4)} offset:1024")
                    p.I(f"v_xor_b32 v{V_T}, 16, v{V_FL}")
                    p.I("s_lshl_b32 s9, s3, 11"); p.I("s_xor_b32 s9, s9, 8192"); p.I(f"s_add_u32 s9, s9, {EXB}")
                    p.I(f"v_add_u32 v{V_HF}, s9, v{V_KV}")
                if j == 7: p.I(f"ds_read_b32 v{V_FL}, v{V_T}")
            if j == 4:
                p.I(f"ds_read_b32 v{V_F}, v{V_I8} offset:{lo+512}")
            if j == 5:
                p.L(f"k2_poll{tg}")
                p.I("s_waitcnt lgkmcnt(0)")
                p.I(f"v_readfirstlane_b32 s9, v{V_F}")
                p.I("s_cmp_lg_u32 s9, 0")
                p.I(f"s_cbranch_scc1 k2_ok{tg}")
                p.I("s_sleep 2")
                p.I(f"ds_read_b32 v{V_F}, v{V_I8} offset:{lo+512}")
                p.I(f"s_branch k2_poll{tg}")
                p.L(f"k2_ok{tg}")
                if rho == 7 and "S" not in XP: p.I(f"ds_write_b32 v{V_FL}, v{V_ONE}")
                p.I(f"ds_read_b128 {vr(OP,4)}, v{V_I16} offset:{lo}")
                p.I(f"ds_read_b128 {vr(OP+4,4)}, v{V_I16} offset:{lo+1024}")
                p.I(f"ds_read_b64 {vr(OP+8,2)}, v{V_I8} offset:{lo}")
            if j == 6 and par == 0:
                for r in (V_O16, V_O8): p.I(f"v_add_u32 v{r}, {2*SLOT}, v{r}")
                if rho > 2: p.I("s_cmp_eq_u32 s4, 1"); p.I("s_cselect_b32 s9, s12, 0"); p.I(f"s_add_u32 s9, s9, {2*SLOT}")
                for r in (V_I16, V_I8): p.I(f"v_add_u32 v{r}, {'s9' if rho > 2 else 2*SLOT}, v{r}")
        for r in range(10, 12 if ss else 14): p.I(ex(A+r))
        if kind == "first": vm.wait(p, ("v", j))
        if kind != "first" and j == 7: p.I("s_waitcnt lgkmcnt(0)")
        p.I(pv(j, 0, A, OC))
        for r in range(12 if ss else 14, 16): p.I(ex(A+r))
        if ss:
            vm.wait(p, ("ss", n))
            p.I(mfma(ACC, RG + 8*(n & 3), RG + 8*(n & 3) + 4, ACC))
        for k in range(4, 8): p.I(cv(A, k))
        if ss and n + 4 < 36: ss_load(p, vm, n + 4)

PFK3 = 0
def gpoll(p, tag, va):
    p.I("s_mov_b32 s71, 0x20000"); p.I("s_mov_b32 s61, 0")
    p.L(f"{tag}_p")
    p.I(f"buffer_load_dword v10, v{va}, s[68:71], 0 offen sc1")
    p.I("s_waitcnt vmcnt(0)")
    p.I("v_cmp_ne_u32 vcc, 1, v10")
    p.I(f"s_cbranch_vccz {tag}_ok")
    p.I("s_add_u32 s61, s61, 1"); p.I("s_cmp_gt_u32 s61, 0x40000"); p.I(f"s_cbranch_scc1 {tag}_ok")
    p.I(f"s_sleep {os.environ.get('PSL', '6')}")
    p.I(f"s_branch {tag}_p")
    p.L(f"{tag}_ok")

def o_flag(p, nyounger):
    srd(p, 68, P_WS, 16384, WS_FL)
    p.I("s_lshl_b32 s60, s2, 3"); p.I("s_add_u32 s60, s60, s3"); p.I("s_lshl_b32 s60, s60, 2"); p.I("s_add_u32 s60, s60, 8192")
    p.I("v_mov_b32 v10, 1")
    p.I(f"s_waitcnt vmcnt({nyounger})")
    p.I("s_mov_b64 exec, 1")
    p.I("buffer_store_dword v10, v2, s[68:71], s60 offen sc1")
    p.I("s_mov_b64 exec, -1")

def tail(p):
    if TS == 1: ts(p, 6)
    p.I("s_and_b32 s6, s3, 3")
    p.I("v_lshlrev_b32 v2, 4, v0")
    p.I("s_cmp_ge_u32 s2, 192")
    p.I("s_cbranch_scc1 k3_ssm")
    ACC, FR = 16, 64
    p.I("s_and_b32 s4, s2, 31"); p.I("s_lshl_b32 s7, s4, 8"); p.I("s_add_u32 s7, s7, 8192")
    p.I("s_lshl_b32 s4, s4, 1"); p.I("s_lshr_b32 s5, s3, 2"); p.I("s_add_u32 s4, s4, s5")
    p.I("s_lshr_b32 s5, s2, 5")
    p.I("s_lshl_b32 s60, s6, 7"); p.I("v_xor_b32 v3, s60, v2")
    p.I(f"s_mul_i32 s60, s6, {9*1024}")
    p.I("s_mul_i32 s54, s4, 36864"); p.I("s_add_u32 s54, s54, s60")
    p.I(f"s_mul_i32 s55, s5, {3*36864}"); p.I("s_add_u32 s55, s55, s60"); p.I(f"s_add_u32 s55, s55, {WS_WF-WS_O}")
    p.I("s_add_u32 s56, s55, 36864"); p.I("s_add_u32 s57, s56, 36864")
    srd(p, 64, P_WS, WS_END-WS_O, WS_O)
    WPRE = int(os.environ.get("WPRE", "0"))
    for i in range(9):
        if i == WPRE: o_flag(p, 3*WPRE)
        if i and i % 4 == 0:
            for r in (55, 56, 57): p.I(f"s_add_u32 s{r}, s{r}, 4096")
        for k in range(1, 4):
            p.I(f"buffer_load_dwordx4 {vr(FR+16*i+4*k,4)}, v3, s[64:67], s{54+k} offen offset:{(i%4)*1024}")
    srd(p, 72, P_OUT, 2048*4608)
    p.I("v_and_b32 v12, 31, v0"); p.I("v_mul_u32_u24 v12, 4608, v12"); p.I("v_lshrrev_b32 v13, 5, v0"); p.I("v_lshl_add_u32 v12, v13, 4, v12")
    p.I(f"s_mul_i32 s58, s4, {32*4608}"); p.I("s_mul_i32 s59, s5, 384"); p.I("s_add_u32 s58, s58, s59")
    p.I("s_lshl_b32 s59, s6, 5"); p.I("s_add_u32 s58, s58, s59"); p.I("s_add_u32 s58, s58, 2304")
    p.I("s_lshl_b32 s60, s3, 14"); p.I("v_add_u32 v4, s60, v2")
    for g in range(1, 4): p.I(f"v_xor_b32 v{4+g}, {g << 14}, v4")
    p.I("v_lshl_add_u32 v11, v0, 2, s7")
    p.I("s_barrier")
    p.I("s_cmp_lg_u32 s3, 0"); p.I("s_cbranch_scc1 k3_o_ok")
    gpoll(p, "k3_o", 11)
    p.I("s_barrier")
    if TS == 1: ts(p, 7)
    for i in range(9):
        if i and i % 4 == 0: p.I("s_add_u32 s54, s54, 4096")
        p.I(f"buffer_load_dwordx4 {vr(FR+16*i,4)}, v2, s[64:67], s54 offen offset:{(i%4)*1024} sc1")
    for i in range(9):
        p.I(f"s_waitcnt vmcnt({8-i})")
        f = FR + 16*i
        for nt in range(3): p.I(mfma(ACC+16*nt, f+4+4*nt, f, ACC+16*nt if i else None))
    for nt in range(3):
        for g in range(1, 4): p.I(f"ds_write_b128 v{4+g}, {vr(ACC+16*nt+4*g,4)} offset:{((g-1)*3+nt)*1024}")
    p.I("s_waitcnt lgkmcnt(0)")
    p.I("s_barrier")
    for nt in range(3):
        for g in range(3): p.I(f"ds_read_b128 {vr(FR+12*nt+4*g,4)}, v4 offset:{(g*3+nt)*1024}")
    for nt in range(3):
        for g in range(3):
            p.I(f"s_waitcnt lgkmcnt({8-3*nt-g})")
            for k in range(2): p.I(f"v_pk_add_f32 {vr(ACC+16*nt+2*k,2)}, {vr(ACC+16*nt+2*k,2)}, {vr(FR+12*nt+4*g+2*k,2)}")
        p.I(f"buffer_store_dwordx4 {vr(ACC+16*nt,4)}, v12, s[72:75], s58 offen offset:{128*nt}")
    if TS != 1: ts(p, 7, True)
    ts_flush(p, "k2o")
    p.I("s_endpgm")
    p.L("k3_ssm")
    ACC, FR = 16, 48
    p.I("s_sub_u32 s4, s2, 192")
    p.I(f"s_mul_i32 s54, s3, {9*1024}")
    p.I(f"s_mul_i32 s55, s4, {72*1024}"); p.I("s_add_u32 s55, s55, s54"); p.I(f"s_add_u32 s55, s55, {WS_H2-WS_CF}")
    p.I(f"s_add_u32 s54, s54, {16*72*1024}")
    p.I(f"s_add_u32 s56, s54, {72*1024}")
    o_flag(p, 0)
    p.I("s_lshl_b32 s7, s4, 7"); p.I("v_min_u32 v11, 17, v0"); p.I("v_lshl_add_u32 v11, v11, 2, s7")
    gpoll(p, "k3_h", 11)
    srd(p, 64, P_WS, WS_FL-WS_CF, WS_CF)
    for i in range(9):
        if i and i % 4 == 0:
            for r in (54, 55, 56): p.I(f"s_add_u32 s{r}, s{r}, 4096")
        for k, r in enumerate((55, 54, 56)):
            p.I(f"buffer_load_dwordx4 {vr(FR+12*i+4*k,4)}, v2, s[64:67], s{r} offen offset:{(i%4)*1024}" + (" sc1" if k == 0 else ""))
    p.I("v_lshrrev_b32 v13, 5, v0"); p.I("v_lshlrev_b32 v13, 3, v13")
    p.I("v_and_b32 v12, 31, v0"); p.I("v_mul_u32_u24 v14, 1152, v12"); p.I("v_add_u32 v14, v14, v13")
    p.I("v_mul_u32_u24 v15, 4608, v12"); p.I("v_lshl_add_u32 v15, v13, 1, v15")
    p.I("s_lshl_b32 s57, s3, 4"); p.I("s_add_u32 s57, s57, 1024")
    p.I(f"s_mul_i32 s58, s4, {32*1152}"); p.I("s_add_u32 s58, s58, s57")
    p.I(f"s_mul_i32 s59, s4, {32*4608}"); p.I("s_lshl_b32 s60, s57, 1"); p.I("s_add_u32 s59, s59, s60")
    srd(p, 68, P_AX, 2048*1152); srd(p, 72, P_DSK, 1152); srd(p, 92, P_OUT, 2048*4608)
    p.I("buffer_load_dwordx2 v[4:5], v14, s[68:71], s58 offen")
    p.I("buffer_load_dwordx2 v[6:7], v13, s[72:75], s57 offen")
    p.I("s_lshl_b32 s60, s3, 13"); p.I("v_add_u32 v8, s60, v2")
    p.I("s_lshl_b32 s60, s3, 10"); p.I("v_add_u32 v9, s60, v2")
    for i in range(9):
        p.I(f"s_waitcnt vmcnt({2 + 3*(8-i)})")
        f = FR + 12*i
        p.I(mfma(ACC, f+4, f, ACC if i else None)); p.I(mfma(ACC+16, f+8, f, ACC+16 if i else None))
    p.I("s_barrier")
    for i in range(8): p.I(f"ds_write_b128 v8, {vr(ACC+4*i,4)} offset:{1024*i}")
    p.I("s_waitcnt lgkmcnt(0)")
    p.I("s_barrier")
    for i in range(8): p.I(f"ds_read_b128 {vr(FR+4*i,4)}, v9 offset:{8192*i}")
    p.I("s_waitcnt vmcnt(0)")
    for i in range(2):
        p.I(f"v_and_b32 v10, 0xffff, v{6+i}"); p.I(f"v_and_b32 v11, 0xffff0000, v{6+i}")
        p.I(f"v_dot2_f32_bf16 v{ACC+2*i}, v{4+i}, v10, 0"); p.I(f"v_dot2_f32_bf16 v{ACC+2*i+1}, v{4+i}, v11, 0")
    for i in range(8):
        p.I(f"s_waitcnt lgkmcnt({7-i})")
        for k in range(2): p.I(f"v_pk_add_f32 {vr(ACC+2*k,2)}, {vr(ACC+2*k,2)}, {vr(FR+4*i+2*k,2)}")
    p.I(f"buffer_store_dwordx4 {vr(ACC,4)}, v15, s[92:95], s59 offen")
    if TS != 1: ts(p, 7, True)
    ts_flush(p, "k2s")

def gen_k2(name):
    p = Prog()
    p.L(name)
    p.I("s_cmp_ge_u32 s2, 256")
    p.I(f"s_cbranch_scc1 {name}_end")
    load_ptrs(p)
    ts(p, 0)
    if TS != 1: ts(p, 6, True)
    p.I("v_lshrrev_b32 v1, 6, v0")
    p.I("v_and_b32 v0, 63, v0")
    p.I("v_readfirstlane_b32 s3, v1")
    p.I("v_and_b32 v14, 31, v0")
    p.I("v_lshrrev_b32 v15, 5, v0")
    p.I(f"v_lshrrev_b32 v{V_Q0}, 2, v14")
    p.I(f"v_mul_u32_u24 v{V_Q0}, 1152, v{V_Q0}")
    p.I("v_and_b32 v1, 3, v0")
    p.I(f"v_mad_u32_u24 v{V_Q0}, v1, 36, v{V_Q0}")
    p.I(f"v_lshlrev_b32 v1, 28, v15")
    p.I(f"v_add3_u32 v{V_QA}, v{V_Q0}, v1, 32")
    p.I(f"v_xor_b32 v{V_QB}, 0x10000000, v{V_QA}")
    p.I(f"v_lshl_add_u32 v{V_Q0}, v15, 4, v{V_Q0}")
    p.I(f"v_lshlrev_b32 v{V_KV}, 4, v0")
    p.I("v_cmp_lt_u32 vcc, 20, v14")
    p.I(f"v_mov_b32 v1, 0x10000000")
    p.I(f"v_cndmask_b32 v{V_VA}, v{V_KV}, v1, vcc")
    p.I(f"v_mov_b32 v{V_H}, 0")
    p.I("s_and_b32 s7, s2, 3"); p.I("s_mul_i32 s5, s7, 9"); p.I("s_add_u32 s5, s5, 1"); p.I("s_lshr_b32 s5, s5, 1")
    p.I("s_and_b32 s7, s7, 1"); p.I("s_lshl_b32 s7, s7, 5"); p.I("s_add_u32 s7, s7, 8")
    p.I("s_cmp_eq_u32 s3, 0"); p.I("s_cselect_b32 s7, s7, s3")
    p.I("s_add_u32 s5, s5, s7"); p.I("s_sub_u32 s5, s5, 4")
    p.I("s_cmp_lt_u32 s7, 4"); p.I("s_cselect_b32 s5, 99, s5")
    p.I("s_lshr_b32 s7, s3, 2"); p.I(f"s_mul_i32 s9, s7, {36*1024}")
    p.I("s_lshr_b32 s10, s2, 2"); p.I(f"s_mul_i32 s11, s10, {72*1024}"); p.I("s_add_u32 s11, s11, s9"); p.I(f"s_add_u32 s11, s11, {WS_H2-WS_H}")
    p.I(f"v_add_u32 v{V_HF}, s11, v{V_KV}")
    p.I("s_lshl_b32 s10, s10, 7"); p.I(f"s_add_u32 s10, s10, {WS_FL-WS_H}")
    p.I(f"v_min_u32 v{V_FL}, 17, v0"); p.I(f"v_lshl_add_u32 v{V_FL}, v{V_FL}, 2, s10")
    p.I("s_and_b32 s10, s2, 3"); p.I("s_lshl_b32 s10, s10, 2"); p.I("s_and_b32 s11, s3, 3"); p.I("s_add_u32 s10, s10, s11")
    p.I(f"s_mul_i32 s10, s10, {72*1024}"); p.I("s_add_u32 s10, s10, s9"); p.I(f"s_add_u32 s10, s10, {WS_CF-WS_H}")
    p.I("s_lshl_b32 s7, s7, 8"); p.I(f"v_xor_b32 v{V_CF}, s7, v{V_KV}"); p.I(f"v_add_u32 v{V_CF}, s10, v{V_CF}")
    p.I(f"s_mul_i32 s8, s2, {8*1152}")
    kv_bases(p, 3)
    p.I(f"s_mul_i32 s9, s3, {7*SLOT}"); p.I(f"s_add_u32 s9, s9, {SLOT}")
    p.I(f"v_add_u32 v{V_O16}, s9, v{V_KV}")
    p.I(f"v_lshlrev_b32 v1, 3, v0")
    p.I("s_add_u32 s9, s9, 2048")
    p.I(f"v_add_u32 v{V_O8}, s9, v1")
    p.I("s_add_u32 s10, s3, 2"); p.I("s_and_b32 s10, s10, 7"); p.I(f"s_mul_i32 s10, s10, {7*SLOT}")
    p.I("s_add_u32 s12, s3, 1"); p.I("s_and_b32 s12, s12, 7"); p.I(f"s_mul_i32 s12, s12, {7*SLOT}")
    p.I("s_sub_u32 s12, s12, s10")
    p.I(f"s_add_u32 s10, s10, {SLOT}")
    p.I(f"v_add_u32 v{V_I16}, s10, v{V_KV}")
    p.I("s_add_u32 s10, s10, 2048")
    p.I(f"v_add_u32 v{V_I8}, s10, v1")
    p.I(f"v_mul_u32_u24 v1, {SLOT}, v0")
    p.I(f"v_add_u32 v1, s9, v1")
    p.I(f"v_mov_b32 v{V_ONE}, 0")
    p.I("s_mov_b64 exec, 0x7f")
    p.I(f"ds_write_b32 v1, v{V_ONE} offset:512")
    p.I("s_lshl_b32 s9, s3, 2"); p.I("v_mov_b32 v1, s9")
    p.I(f"ds_write_b32 v1, v{V_ONE}")
    p.I("s_mov_b64 exec, -1")
    p.I(f"v_mov_b32 v{V_ONE}, 1")
    p.I("s_waitcnt lgkmcnt(0)")
    p.I("s_barrier")
    srd(p, SQ, P_WS, 2048*1152, WS_Q); srd(p, SKV, P_WS, WS_H-WS_K0, WS_K0); srd(p, SH, P_WS, WS_END-WS_H, WS_H); srd(p, SO, P_WS, 2048*1152, WS_O)
    if TS == 2: ts(p, 1)
    p.I("s_cmp_ge_u32 s5, 18"); p.I("s_cbranch_scc1 k2_nofx1")
    if PRI: p.I("s_setprio 3")
    fixup_loads(p)
    p.L("k2_nofx1")
    ld_kx(p)
    p.I("s_mul_i32 s9, s3, 144"); p.I("s_add_u32 s9, s9, s8")
    q_loads(p, QB0, 9)
    ld_k0(p, 0); ld_k0(p, 1); ld_v(p, 0); ld_k0(p, 2); ld_v(p, 1)
    NKV = 12
    if TS == 2: ts(p, 2)
    for qb in (QB0, QB1):
        for z in (5, 7): p.I(f"v_mov_b32 v{qb+z}, 0")
    for r in range(32): p.I(f"v_mov_b32 v{O0+r}, 0")
    p.I("s_mov_b32 s4, 0")
    p.I("s_add_u32 s69, s3, 1")
    vm = VM()
    p.I("s_cmp_ge_u32 s5, 18"); p.I("s_cbranch_scc1 k2_nofx2")
    fixup_compute(p, NKV)
    p.I("s_and_b32 s9, s69, 7"); p.I("s_mul_i32 s9, s9, 144"); p.I("s_add_u32 s9, s9, s8")
    ts(p, 1 if TS == 1 else 3)
    p.I(f"s_waitcnt vmcnt({NKV-6+20+4})")
    p.I(x8(0, S0, QB0)); p.I(x16(0, S0, QB0))
    pre = [("k", 1), ("v", 0), ("v", 0), ("k", 2), ("v", 1), ("v", 1)]
    vm.q = list(pre)
    for j in range(3, 8):
        if j == 3+FXB: vm.iss("st", 4)
        vm.q += [("k", j), ("v", j-1), ("v", j-1)]
    vm.q += [("v", 7)]*2 + ["q"]*3
    emit_round(p, 0, vm, fx=True)
    if PRI: p.I("s_setprio 0")
    p.I("s_branch k2_r1")
    p.L("k2_nofx2")
    ts(p, 1 if TS == 1 else 3)
    p.I("s_and_b32 s9, s69, 7"); p.I("s_mul_i32 s9, s9, 144"); p.I("s_add_u32 s9, s9, s8")
    p.I(f"s_waitcnt vmcnt({NKV-6})")
    p.I(x8(0, S0, QB0)); p.I(x16(0, S0, QB0))
    vm.q = list(pre)
    emit_round(p, 0, vm)
    vm.q = []
    p.L("k2_r1")
    if TS: ts(p, 2 if TS == 1 else 5)
    emit_round(p, 1, vm)
    if TS == 1: ts(p, 3)
    emit_round(p, 2, vm)
    if TS == 1: ts(p, 4)
    p.L("k2_loop")
    l0 = len(p.lines)
    emit_round(p, 3, vm); emit_round(p, 4, vm)
    p2 = Prog(); emit_round(p2, 5, vm, tg="r3"); emit_round(p2, 6, vm, tg="r4")
    assert p2.lines == p.lines[l0:], "loop body not steady"
    p.I("s_add_u32 s4, s4, 1")
    p.I("s_cmp_lt_u32 s4, 2")
    p.I("s_cbranch_scc1 k2_loop")
    if TS == 1: ts(p, 5)
    emit_round(p, 7, vm)
    p.I(pv(7, 1, S1, O1))
    if "S" not in XP:
        p.L("k2_xpoll")
        p.I("s_waitcnt lgkmcnt(0)")
        p.I(f"v_readfirstlane_b32 s9, v{V_FL}")
        p.I("s_cmp_lg_u32 s9, 0"); p.I("s_cbranch_scc1 k2_xok")
        p.I("s_sleep 2")
        p.I(f"ds_read_b32 v{V_FL}, v{V_T}")
        p.I("s_branch k2_xpoll")
        p.L("k2_xok")
        p.I(f"ds_read_b128 {vr(RG+8,4)}, v{V_HF}"); p.I(f"ds_read_b128 {vr(RG+12,4)}, v{V_HF} offset:1024")
    p.I("s_add_u32 s10, s3, 7"); p.I("s_and_b32 s10, s10, 7")
    p.I("s_lshr_b32 s9, s2, 2"); p.I("s_mul_i32 s9, s9, 36864"); p.I("s_and_b32 s11, s2, 3"); p.I("s_lshl_b32 s11, s11, 7"); p.I("s_add_u32 s9, s9, s11")
    p.I("s_lshl_b32 s11, s10, 9"); p.I("s_add_u32 s11, s11, s9"); p.I("s_add_u32 s11, s11, 32768")
    p.I("s_lshl_b32 s10, s10, 12"); p.I("s_add_u32 s9, s9, s10")
    p.I(f"v_bfe_u32 v{V_Q0}, v0, 2, 3"); p.I(f"v_lshlrev_b32 v{V_Q0}, 4, v{V_Q0}")
    p.I("v_and_b32 v1, 3, v0"); p.I(f"v_lshrrev_b32 v{V_QB}, 5, v0")
    p.I(f"v_lshl_add_u32 v{V_QA}, v1, 2, v{V_Q0}"); p.I(f"v_lshl_add_u32 v{V_QA}, v{V_QB}, 28, v{V_QA}")
    p.I(f"v_lshl_add_u32 v{V_Q0}, v1, 10, v{V_Q0}"); p.I(f"v_lshl_add_u32 v{V_Q0}, v{V_QB}, 9, v{V_Q0}")
    for k in range(5): p.I(f"v_pk_add_f32 {vr(O1+2*k,2)}, {vr(O1+2*k,2)}, {vr(O0+2*k,2)}")
    p.I(f"v_mov_b32 v14, v{O1+8}"); p.I(f"v_mov_b32 v15, v{O1+8}")
    p.I("v_permlane32_swap_b32 v14, v15")
    LO, HI = f2u(2.0**-60), f2u(2.0**60)
    p.I(f"v_subrev_u32 v14, {LO}, v15")
    p.I(f"v_cmp_lt_u32 vcc, {HI-LO}, v14")
    if "S" not in XP:
        p.I("s_waitcnt lgkmcnt(0)")
        for i in range(4): p.I(f"v_pk_add_f32 {vr(ACC+2*i,2)}, {vr(ACC+2*i,2)}, {vr(RG+8+2*i,2)}")
        for g in range(2): p.I(f"buffer_store_dwordx4 {vr(ACC+4*g,4)}, v{V_CF}, s[{SOUT}:{SOUT+3}], s70 offen offset:{32*g}")
    p.I("s_cbranch_vccnz k2_slow")
    p.L("k2_fin")
    p.I("v_rcp_f32 v14, v15")
    p.I("s_nop 0")
    for k in range(5): p.I(f"v_pk_mul_f32 {vr(O1+2*k,2)}, {vr(O1+2*k,2)}, v[14:15] op_sel_hi:[1,0]")
    for k in range(5): p.I(f"v_cvt_pk_bf16_f32 v{O1+k}, v{O1+2*k}, v{O1+2*k+1}")
    p.I(f"buffer_store_dwordx4 {vr(O1,4)}, v{V_Q0}, s[{SO}:{SO+3}], s9 offen sc1")
    p.I(f"buffer_store_dword v{O1+4}, v{V_QA}, s[{SO}:{SO+3}], s11 offen sc1")
    tail(p)
    p.L(f"{name}_end")
    p.I("s_endpgm")
    p.L("k2_slow")
    p.I("v_mov_b32 v14, 0xff800000")
    for ps in range(2):
        p.I("s_mov_b32 s4, 0")
        p.L(f"k2_sp{ps}")
        kv_bases(p, 4)
        ld_kx(p)
        for j in range(8):
            ld_k0(p, j)
            if ps: ld_v(p, j)
        p.I("s_waitcnt vmcnt(0)")
        for j in range(8):
            p.I(x8(j, S0, QB1, S1 if ps else None)); p.I(x16(j, S0, QB1))
            if ps == 0:
                for k in range(8): p.I(f"v_max3_f32 v14, v14, v{S0+2*k}, v{S0+2*k+1}")
            else:
                for r in range(16): p.I(ex(S0+r))
                for k in range(8): p.I(cv(S0, k))
                p.I(pv(j, 0, S0, O1)); p.I(pv(j, 1, S0, O1))
        p.I("s_add_u32 s4, s4, 1"); p.I("s_cmp_lt_u32 s4, 8"); p.I(f"s_cbranch_scc1 k2_sp{ps}")
        if ps == 0:
            p.I("v_mov_b32 v15, v14")
            p.I("v_permlane32_swap_b32 v14, v15")
            p.I("v_max_f32 v14, v14, v15")
            for r in range(16):
                p.I(f"v_sub_f32 v{S1+r}, 0, v14"); p.I(f"v_mov_b32 v{O1+r}, 0")
    p.I(f"v_mov_b32 v14, v{O1+8}"); p.I(f"v_mov_b32 v15, v{O1+8}")
    p.I("v_permlane32_swap_b32 v14, v15")
    p.I("s_branch k2_fin")
    return (p, 256, EXB + 1024) if "S" in XP else (p, 256, EXB + 16384)
```

```python
from common import *
from k1 import gemm_entry
from k2 import VM

def gen_k3(name):
    p = Prog()
    gemm_entry(p, name, 240, 0)
    ACC, FR, XD = 16, 80, 224
    vm = VM()
    def a_addr(su, so, sx):
        p.I(f"s_and_b32 s8, s{su}, 31"); p.I("s_lshl_b32 s8, s8, 1"); p.I("s_lshr_b32 s9, s3, 2"); p.I("s_add_u32 s8, s8, s9")
        p.I(f"s_lshr_b32 s9, s{su}, 5"); p.I("s_lshl_b32 s9, s9, 1"); p.I("s_bfe_u32 s10, s3, 0x10001"); p.I("s_add_u32 s9, s9, s10")
        p.I(f"s_mul_i32 s10, s3, {9*1024}")
        for k, (r, base) in enumerate(((8, WS_H2), (8, WS_H2), (9, WS_CF), (9, WS_CF))):
            if k & 1: p.I(f"s_xor_b32 s11, s{r}, 1")
            p.I(f"s_mul_i32 s{so+k}, s{11 if k & 1 else r}, {72*1024}"); p.I(f"s_add_u32 s{so+k}, s{so+k}, s10"); p.I(f"s_add_u32 s{so+k}, s{so+k}, {base-WS_O}")
        p.I("s_lshl_b32 s9, s9, 6"); p.I("s_and_b32 s10, s3, 1"); p.I("s_lshl_b32 s10, s10, 5"); p.I(f"s_add_u32 s{sx+1}, s9, s10")
        p.I(f"s_mul_i32 s{sx}, s8, {32*1152}"); p.I(f"s_add_u32 s{sx}, s{sx}, s{sx+1}")
        p.I(f"s_mul_i32 s{sx+2}, s8, {32*4608}"); p.I(f"s_lshl_b32 s9, s{sx+1}, 1"); p.I(f"s_add_u32 s{sx+2}, s{sx+2}, s9")
    def loads(i, so, va, tag):
        if i and i % 4 == 0:
            for k in range(4): p.I(f"s_add_u32 s{so+k}, s{so+k}, 4096")
        for k in range(4):
            p.I(f"buffer_load_dwordx4 {vr(FR+16*i+4*k,4)}, v{va[k]}, s[64:67], s{so+k} offen offset:{(i%4)*1024}")
        vm.iss((tag, i), 4)
    def xd_loads(sx):
        for g in range(2):
            p.I(f"buffer_load_dwordx2 {vr(XD+2*g,2)}, v14, s[68:71], s{sx} offen offset:{16*g}")
            p.I(f"buffer_load_dwordx2 {vr(XD+4+2*g,2)}, v13, s[72:75], s{sx+1} offen offset:{16*g}")
        vm.iss("xd", 4)
    def a_unit(tag, sx, nxt):
        for i in range(9):
            vm.wait(p, (tag, i))
            f = FR + 16*i
            for r in (3, 2, 1, 0):
                p.I(mfma(ACC+16*r, f+8+4*(r & 1), f+4*(r >> 1), ACC+16*r if i else None))
            if nxt and i: nxt(i-1)
        if nxt: nxt(8)
        for r in range(7, 0, -1):
            for gl in range(2): p.I(f"ds_write_b128 v{4+r}, {vr(ACC+8*r+4*gl,4)} offset:{(r-1)*2048+gl*1024}")
        vm.wait(p, "xd")
        for i in range(4):
            p.I(f"v_and_b32 v1, 0xffff, v{XD+4+i}"); p.I(f"v_and_b32 v{XD+8}, 0xffff0000, v{XD+4+i}")
            p.I(f"v_dot2_f32_bf16 v{ACC+2*i}, v{XD+i}, v1, v{ACC+2*i}"); p.I(f"v_dot2_f32_bf16 v{ACC+2*i+1}, v{XD+i}, v{XD+8}, v{ACC+2*i+1}")
        p.I("s_waitcnt lgkmcnt(0)"); p.I("s_barrier")
        for r in range(14): p.I(f"ds_read_b128 {vr(ACC+8+4*r,4)}, v4 offset:{r*1024}")
        for r in range(14):
            p.I(f"s_waitcnt lgkmcnt({13-r})")
            for k in range(2): p.I(f"v_pk_add_f32 {vr(ACC+4*(r&1)+2*k,2)}, {vr(ACC+4*(r&1)+2*k,2)}, {vr(ACC+8+4*r+2*k,2)}")
        for g in range(2): p.I(f"buffer_store_dwordx4 {vr(ACC+4*g,4)}, v15, s[92:95], s{sx+2} offen offset:{32*g}")
        vm.iss("st", 2)
    p.I("v_lshlrev_b32 v2, 4, v0")
    p.I("s_and_b32 s60, s3, 1"); p.I("s_lshl_b32 s60, s60, 8"); p.I("v_xor_b32 v3, s60, v2")
    a_addr(2, 52, 56)
    p.I("s_waitcnt lgkmcnt(0)")
    srd(p, 64, P_WS, WS_END-WS_O, WS_O)
    for i in range(9): loads(i, 52, (2, 2, 3, 3), 1)
    srd(p, 68, P_AX, 2048*1152); srd(p, 72, P_DSK, 1152); srd(p, 92, P_OUT, 2048*4608)
    p.I("v_lshrrev_b32 v13, 5, v0"); p.I("v_lshlrev_b32 v13, 3, v13")
    p.I("v_and_b32 v12, 31, v0"); p.I("v_mul_u32_u24 v14, 1152, v12"); p.I("v_add_u32 v14, v14, v13")
    p.I("v_mul_u32_u24 v15, 4608, v12"); p.I("v_lshl_add_u32 v15, v13, 1, v15")
    xd_loads(56)
    p.I("s_lshl_b32 s60, s3, 14"); p.I("v_add_u32 v4, s60, v2")
    for r in range(1, 8): p.I(f"v_xor_b32 v{4+r}, {r << 14}, v4")
    V2 = XD + 9
    p.I("s_cmp_ge_u32 s2, 192"); p.I("s_cbranch_scc1 k3_a2")
    p.I("s_and_b32 s4, s2, 31"); p.I("s_lshl_b32 s4, s4, 1"); p.I("s_lshr_b32 s5, s3, 2"); p.I("s_add_u32 s4, s4, s5")
    p.I("s_lshr_b32 s5, s2, 5")
    p.I("s_lshl_b32 s60, s6, 7"); p.I("v_xor_b32 v12, s60, v2"); p.I(f"v_mov_b32 v{V2}, v12")
    p.I(f"s_mul_i32 s60, s6, {9*1024}")
    p.I("s_mul_i32 s96, s4, 36864"); p.I("s_add_u32 s96, s96, s60")
    p.I(f"s_mul_i32 s97, s5, {3*36864}"); p.I("s_add_u32 s97, s97, s60"); p.I(f"s_add_u32 s97, s97, {WS_WF-WS_O}")
    p.I("s_add_u32 s98, s97, 36864"); p.I("s_add_u32 s99, s98, 36864")
    p.I(f"s_mul_i32 s61, s4, {32*4608}"); p.I("s_mul_i32 s62, s5, 384"); p.I("s_add_u32 s61, s61, s62")
    p.I("s_lshl_b32 s62, s6, 5"); p.I("s_add_u32 s61, s61, s62"); p.I("s_add_u32 s61, s61, 2304")
    p.I("s_branch k3_go")
    p.L("k3_a2")
    p.I("s_add_u32 s4, s2, 48")
    a_addr(4, 96, 60)
    p.I("v_mov_b32 v12, v2"); p.I(f"v_mov_b32 v{V2}, v3")
    p.L("k3_go")
    a_unit(1, 56, lambda i: loads(i, 96, (2, 12, V2, V2), 2))
    p.I("s_cmp_ge_u32 s2, 192"); p.I("s_cbranch_scc1 k3_a3")
    q0 = list(vm.q)
    for i in range(9):
        vm.wait(p, (2, i))
        f = FR + 16*i
        for nt in range(3): p.I(mfma(ACC+16*nt, f+4+4*nt, f, ACC+16*nt if i else None))
    p.I("s_barrier")
    for nt in range(3):
        for g in range(1, 4): p.I(f"ds_write_b128 v{4+g}, {vr(ACC+16*nt+4*g,4)} offset:{((g-1)*3+nt)*1024}")
    p.I("s_waitcnt lgkmcnt(0)")
    p.I("s_barrier")
    for nt in range(3):
        for g in range(3): p.I(f"ds_read_b128 {vr(FR+12*nt+4*g,4)}, v4 offset:{(g*3+nt)*1024}")
    for nt in range(3):
        for g in range(3):
            p.I(f"s_waitcnt lgkmcnt({8-3*nt-g})")
            for k in range(2): p.I(f"v_pk_add_f32 {vr(ACC+16*nt+2*k,2)}, {vr(ACC+16*nt+2*k,2)}, {vr(FR+12*nt+4*g+2*k,2)}")
        p.I(f"buffer_store_dwordx4 {vr(ACC+16*nt,4)}, v15, s[92:95], s61 offen offset:{128*nt}")
    ts(p, 7, True); ts_flush(p, "k3o")
    p.I("s_endpgm")
    p.L("k3_a3")
    vm.q = q0
    xd_loads(60)
    p.I("s_barrier")
    a_unit(2, 60, None)
    ts(p, 7, True); ts_flush(p, "k3s")
    p.L(f"{name}_end")
    p.I("s_endpgm")
    return p, 236, 131072, 240
```

```python
from common import *

KX, K0, VV, S0, S1, O0, O1, QB0, QB1, HX = 16, 24, 56, 120, 136, 152, 168, 184, 192, 200
SLOT = 2576
V_Q0, V_QA, V_QB, V_KV, V_VA, V_O16, V_O8, V_I16, V_I8, V_ONE, V_F, V_H = 2, 3, 4, 5, 6, 7, 8, 9, 10, 11, 12, 13
SQ, SKV, SH, SO = 52, 56, 60, 64

def pk_cfma(p, d, a, b, c, t):
    if c is None: p.I(f"v_pk_mul_f32 {vr(t,2)}, {vr(a,2)}, {vr(b,2)} op_sel_hi:[1,0]")
    else: p.I(f"v_pk_fma_f32 {vr(t,2)}, {vr(a,2)}, {vr(b,2)}, {vr(c,2)} op_sel_hi:[1,0,1]")
    p.I(f"v_pk_fma_f32 {vr(d,2)}, {vr(a,2)}, {vr(b,2)}, {vr(t,2)} op_sel:[1,1,0] op_sel_hi:[0,1,1] neg_lo:[0,1,0]")

def q_loads(p, qb, soff):
    p.I(f"buffer_load_dwordx4 {vr(qb,4)}, v{V_Q0}, s[{SQ}:{SQ+3}], s{soff} offen")
    p.I(f"buffer_load_dword v{qb+4}, v{V_QA}, s[{SQ}:{SQ+3}], s{soff} offen")
    p.I(f"buffer_load_dword v{qb+6}, v{V_QB}, s[{SQ}:{SQ+3}], s{soff} offen")

def x8(j, s, qb, c=None): return mfma(s, KX + 2*(j >> 1), qb + 4 + 2*(j & 1), c, "32x32x8")
def x16(j, s, qb): return mfma(s, K0 + 4*j, qb, s)
def pv(j, m, s, o): return mfma(o, VV + 8*j + 4*m, s + 4*m, o)
def ex(r): return f"v_exp_f32 v{r}, v{r}"
def cv(s, k): return f"v_cvt_pk_bf16_f32 v{s+k}, v{s+2*k}, v{s+2*k+1}"

XP = os.environ.get("XP", "")
def kv_bases(p, g):
    p.I(f"s_lshl_b32 s13, s{g}, 13")
    p.I(f"s_lshl_b32 s14, s{g}, 14"); p.I(f"s_add_u32 s14, s14, {WS_V-WS_K0}")
    p.I(f"s_lshl_b32 s15, s{g}, 11"); p.I(f"s_add_u32 s15, s15, {WS_KX-WS_K0}")
def ld_k0(p, j):
    p.I(f"s_add_u32 s7, s13, {(j//4)*4096}")
    p.I(f"buffer_load_dwordx4 {vr(K0+4*j,4)}, v{V_KV}, s[{SKV}:{SKV+3}], s7 offen offset:{(j%4)*1024}")
def ld_v(p, j):
    p.I(f"s_add_u32 s7, s14, {(j//2)*4096}")
    p.I(f"buffer_load_dwordx4 {vr(VV+8*j,4)}, v{V_VA}, s[{SKV}:{SKV+3}], s7 offen offset:{(j%2)*2048}")
    p.I(f"buffer_load_dwordx4 {vr(VV+8*j+4,4)}, v{V_VA}, s[{SKV}:{SKV+3}], s7 offen offset:{(j%2)*2048+1024}")
def ld_kx(p):
    p.I(f"buffer_load_dwordx4 {vr(KX,4)}, v{V_KV}, s[{SKV}:{SKV+3}], s15 offen")
    p.I(f"buffer_load_dwordx4 {vr(KX+4,4)}, v{V_KV}, s[{SKV}:{SKV+3}], s15 offen offset:1024")

def fixup_loads(p):
    p.I("s_lshr_b32 s7, s2, 2")
    p.I("s_mov_b32 s9, s5")
    p.I("s_cmp_ge_u32 s9, 9"); p.I("s_cselect_b32 s10, 1, 0")
    p.I("s_mul_i32 s11, s10, 9"); p.I("s_sub_u32 s9, s9, s11")
    p.I("s_lshl_b32 s70, s9, 12"); p.I("s_lshl_b32 s11, s10, 8"); p.I("s_add_u32 s70, s70, s11")
    p.I(f"s_mul_i32 s11, s7, {72*1024}"); p.I("s_add_u32 s70, s70, s11"); p.I(f"s_add_u32 s70, s70, {WS_H2-WS_H}")
    p.I("s_lshl_b32 s9, s9, 6")
    p.I(f"v_add_u32 v{V_H}, s9, v0")
    p.I(f"v_lshlrev_b32 v14, 3, v{V_H}")
    p.I(f"v_lshlrev_b32 v{V_H}, 4, v{V_H}")
    p.I("s_lshr_b32 s68, s7, 2")
    T = HX + 16
    def ld2(d, s): p.I(f"buffer_load_dwordx2 {vr(d,2)}, v14, s[{SH}:{SH+3}], s{s} offen")
    p.I(f"s_mov_b32 s11, {WS_PW-WS_H+8*4608}"); ld2(T+6, 11)
    for jj in range(8):
        p.I(f"s_cmp_le_u32 s68, {2*jj}"); p.I("s_cbranch_scc1 k2_fx_ld")
        p.I(f"s_mov_b32 s11, {WS_A-WS_H+jj*9216}")
        p.I(f"buffer_load_dwordx4 {vr(S0+4*jj,4)}, v{V_H}, s[{SH}:{SH+3}], s11 offen")
    p.L("k2_fx_ld")
    p.I(f"s_mov_b32 s11, {WS_PW-WS_H}"); ld2(T, 11)
    p.I("s_mul_i32 s9, s10, 4608"); p.I("s_add_u32 s11, s11, s9"); ld2(T+2, 11)
    p.I("s_and_b32 s9, s7, 3"); p.I("s_mul_i32 s9, s9, 9216"); p.I("s_add_u32 s11, s11, s9"); ld2(T+4, 11)
    p.I("s_mul_i32 s11, s7, 4608"); p.I(f"s_add_u32 s11, s11, {WS_P-WS_H}"); ld2(T+8, 11)
    p.I("s_lshl_b32 s6, s7, 1"); p.I("s_add_u32 s6, s6, s10"); p.I(f"s_mul_i32 s6, s6, {2*18432}")
    for i in range(4):
        p.I(f"s_add_u32 s11, s6, {i*9216}")
        p.I(f"buffer_load_dwordx4 {vr(HX+4*i,4)}, v{V_H}, s[{SH}:{SH+3}], s11 offen")

FXB = int(os.environ.get('FXB', '0'))
FXA = FXB + 2
PRI = int(os.environ.get('PRI', '0'))
def fixup_compute(p, nyounger):
    T = HX + 16
    PW0, PWH, PWC, L128, PP, G, X, Y, TM = T, T+2, T+4, T+6, T+8, T+10, T+12, T+14, T+16
    p.I(f"v_mov_b32 v{G}, 0"); p.I(f"v_mov_b32 v{G+1}, 0")
    p.I("s_mov_b32 s10, 0x3f80"); p.I("s_mov_b32 s11, 0x3f800000")
    p.I(f"s_waitcnt vmcnt({nyounger+8})")
    for jj in range(15):
        p.I(f"s_cmp_le_u32 s68, {jj}"); p.I("s_cbranch_scc1 k2_fx_h")
        pk_cfma(p, G, G, L128, S0+2*jj, TM)
    p.L("k2_fx_h")
    for j in range(3, 3+FXB): ld_k0(p, j); ld_v(p, j-1)
    nyounger += 3*FXB
    p.I("v_bfe_u32 v14, v0, 1, 1"); p.I("v_lshlrev_b32 v14, 10, v14")
    p.I("v_lshrrev_b32 v15, 4, v0"); p.I("v_lshlrev_b32 v15, 3, v15")
    p.I("v_bfe_u32 v1, v0, 2, 2"); p.I("v_add_u32 v15, v15, v1")
    p.I("v_lshl_add_u32 v14, v15, 4, v14")
    p.I("v_and_b32 v1, 1, v0"); p.I("v_lshl_add_u32 v14, v1, 3, v14")
    p.I(f"s_mul_i32 s7, s3, {7*SLOT}"); p.I(f"s_add_u32 s7, s7, {6*SLOT}")
    p.I("v_add_u32 v14, s7, v14")
    p.I("v_and_b32 v15, 15, v0"); p.I("v_lshlrev_b32 v15, 4, v15")
    p.I("v_bfe_u32 v1, v0, 4, 1"); p.I("v_lshl_add_u32 v15, v1, 9, v15")
    p.I("v_lshrrev_b32 v1, 5, v0"); p.I("v_lshl_add_u32 v15, v1, 10, v15")
    p.I(f"s_waitcnt vmcnt({nyounger+4})")
    pk_cfma(p, X, PP, PWH, None, X)
    pk_cfma(p, L128, PW0, PW0, None, L128)
    pk_cfma(p, X, G, PWC, X, TM)
    pk_cfma(p, Y, X, PW0, None, Y)
    p.I(f"s_waitcnt vmcnt({nyounger})")
    for k in range(8):
        q, e = divmod(k, 4)
        hr, hi = HX + 8*q + e, HX + 8*q + 4 + e
        p.I(f"v_dot2_f32_bf16 v{TM}, v{hr}, s10, v{X}")
        p.I(f"v_dot2_f32_bf16 v{TM+1}, v{hr}, s11, v{Y}")
        p.I(f"v_dot2_f32_bf16 v{TM+2}, v{hi}, s10, v{X+1}")
        p.I(f"v_dot2_f32_bf16 v{TM+3}, v{hi}, s11, v{Y+1}")
        if k < 7:
            p.I(f"v_pk_mul_f32 {vr(TM+4,2)}, {vr(X,2)}, {vr(L128,2)} op_sel_hi:[1,0]")
            p.I(f"v_pk_mul_f32 {vr(TM+6,2)}, {vr(Y,2)}, {vr(L128,2)} op_sel_hi:[1,0]")
        p.I(f"v_cvt_pk_bf16_f32 v{hr}, v{TM}, v{TM+1}")
        p.I(f"v_cvt_pk_bf16_f32 v{hi}, v{TM+2}, v{TM+3}")
        if k < 7:
            for (g, t) in ((X, TM+4), (Y, TM+6)):
                p.I(f"v_pk_fma_f32 {vr(g,2)}, {vr(g,2)}, {vr(L128,2)}, {vr(t,2)} op_sel:[1,1,0] op_sel_hi:[0,1,1] neg_lo:[0,1,0]")
        if e == 3:
            for c in range(2): p.I(f"ds_write_b128 v{V_O16}, {vr(HX+8*q+4*c,4)} offset:{(5+c)*SLOT + q*1024}")
    p.I("s_waitcnt lgkmcnt(0)")
    for c in range(2):
        for m in range(2):
            for e in range(2):
                p.I(f"ds_read_b64_tr_b16 {vr(T+8*c+4*m+2*e,2)}, v14 offset:{c*SLOT + m*512 + e*64}")
    p.I(f"s_add_u32 s71, s70, {36*1024}")
    for c in range(2):
        for m in range(2):
            p.I(f"s_waitcnt lgkmcnt({6-4*c-2*m})")
            p.I(f"buffer_store_dwordx4 {vr(T+8*c+4*m,4)}, v15, s[{SH}:{SH+3}], s{70+c} offen offset:{m*2048}" + ("" if "S" in XP else " sc1"))
    for j in range(3+FXB, 8): ld_k0(p, j); ld_v(p, j-1)
    ld_v(p, 7)
    p.I("s_and_b32 s9, s69, 7"); p.I("s_mul_i32 s9, s9, 144"); p.I("s_add_u32 s9, s9, s8")
    q_loads(p, QB1, 9)

NSL = os.environ.get("NSL", "0")
_slc = [0]
def osleep(p, j, pos, kind):
    if kind == "first": return
    n = int(NSL[j % len(NSL)])
    if pos not in {0: (), 1: (1,), 2: (0, 2), 3: (0, 1, 2), 4: (0, 1, 2, 3)}[n]: return
    _slc[0] += 1
    p.I(f"s_cbranch_vccz k2_sl{_slc[0]}"); p.I("s_sleep 1"); p.L(f"k2_sl{_slc[0]}")

ACC, RG, V_HF, V_CF, V_FL, V_T = 200, 216, 248, 249, 250, 251
EXB = 57*SLOT
SOUT, SXA, SDK = 72, 92, 96
PJ = int(os.environ.get('PJ', '1'))
XD = 240
class VM:
    def __init__(s): s.q = []
    def iss(s, tag, n=1): s.q += [tag]*n
    def wait(s, p, tag):
        idx = max([i for i, t in enumerate(s.q) if t == tag], default=None)
        if idx is None: return
        p.I(f"s_waitcnt vmcnt({len(s.q)-1-idx})"); s.q = s.q[idx+1:]
def ss_load(p, vm, n):
    r = RG + 8*(n & 3)
    p.I(f"buffer_load_dwordx4 {vr(r,4)}, v{V_CF}, s[{SH}:{SH+3}], s70 offen offset:{(n&3)*1024}")
    p.I(f"buffer_load_dwordx4 {vr(r+4,4)}, v{V_HF}, s[{SH}:{SH+3}], s70 offen offset:{(n&3)*1024} sc1")
    vm.iss(("ss", n), 2)
    if n & 3 == 3: p.I("s_add_u32 s70, s70, 4096")

def emit_round(p, rho, vm, fx=False, tg=None):
    par = rho & 1
    kind = "first" if rho == 0 else ("last" if rho == 7 else "mid")
    QC, QN = (QB0, QB1) if par == 0 else (QB1, QB0)
    OC, OP = (O0, O1) if par == 0 else (O1, O0)
    lo = (1 - par) * SLOT
    tg = tg or f"r{rho}"
    prog = kind == "first" and not fx
    for j in range(8):
        A, B = (S0, S1) if j % 2 == 0 else (S1, S0)
        jn, qn = (j+1, QC) if j < 7 else (0, QN)
        nxt = not (kind == "last" and j == 7)
        n = 8*(rho-3) + j
        ss = 0 <= n < 36 and "S" not in XP
        p.I(ex(A)); p.I(ex(A+1))
        if not (kind == "first" and j == 0): p.I(pv((j-1) % 8, 1, B, OC if j else OP))
        for r in range(2, 6): p.I(ex(A+r))
        if j == 7 and nxt:
            vm.wait(p, "q")
        if nxt: p.I(x8(jn, B, qn))
        p.I(ex(A+6)); p.I(ex(A+7))
        for k in range(4): p.I(cv(A, k))
        if kind == "first" and j < 7: vm.wait(p, ("k", j+1))
        if nxt: p.I(x16(jn, B, qn))
        p.I(ex(A+8)); p.I(ex(A+9))
        if kind == "first":
            if not fx and j <= 4: ld_k0(p, j+3); vm.iss(("k", j+3))
            if not fx and j <= 5: ld_v(p, j+2); vm.iss(("v", j+2), 2)
            if fx and j == FXA and "S" not in XP:
                p.I("s_lshr_b32 s7, s2, 2"); p.I("s_lshl_b32 s7, s7, 5"); p.I("s_add_u32 s7, s7, s5"); p.I("s_lshl_b32 s7, s7, 2")
                p.I(f"s_add_u32 s7, s7, {WS_FL-WS_H}")
                vm.wait(p, "st")
                p.I("s_mov_b64 exec, 1")
                p.I(f"buffer_store_dword v{V_ONE}, v{V_KV}, s[{SH}:{SH+3}], s7 offen sc1"); vm.iss("fl")
                p.I("s_mov_b64 exec, -1")
            if j == 5 and not fx: q_loads(p, QN, 9); vm.iss("q", 3)
            if j == 7 and fx and PFK3:
                p.I("s_lshl_b32 s9, s3, 8"); p.I("s_add_u32 s9, s9, s2"); p.I(f"s_sub_u32 s9, s9, {5*256}")
                p.I("s_cmp_ge_u32 s9, 81"); p.I("s_cbranch_scc1 k2_nopf")
                p.I("s_lshl_b32 s9, s2, 13"); p.I(f"v_lshlrev_b32 v14, 7, v0")
                srd(p, 72, P_WS, 576*1152, WS_WF)
                p.I(f"buffer_load_dword v15, v14, s[72:75], s9 offen")
                p.L("k2_nopf")
        else:
            if j == 0:
                p.I(f"ds_write_b128 v{V_O16}, {vr(OP,4)} offset:{lo}")
                p.I(f"ds_write_b128 v{V_O16}, {vr(OP+4,4)} offset:{lo+1024}")
                p.I(f"ds_write_b64 v{V_O8}, {vr(OP+8,2)} offset:{lo}")
                if kind != "last":
                    p.I("s_add_u32 s69, s69, 1"); p.I("s_and_b32 s9, s69, 7"); p.I("s_mul_i32 s9, s9, 144"); p.I("s_add_u32 s9, s9, s8")
                    q_loads(p, QN, 9); vm.iss("q", 3)
            if j == 1:
                p.I("s_waitcnt lgkmcnt(0)")
                p.I("s_mov_b64 exec, 1")
                p.I(f"ds_write_b32 v{V_O8}, v{V_ONE} offset:{lo+512}")
                p.I("s_mov_b64 exec, -1")
            if rho == 1 and j == 2 and "S" not in XP:
                srd(p, SXA, P_AX, 2048*1152); srd(p, SDK, P_DSK, 1152)
                p.I("s_and_b32 s9, s2, 3"); p.I("s_lshl_b32 s9, s9, 2"); p.I("s_and_b32 s10, s3, 3"); p.I("s_add_u32 s9, s9, s10")
                p.I("s_lshl_b32 s9, s9, 6"); p.I("s_lshr_b32 s10, s3, 2"); p.I("s_lshl_b32 s10, s10, 5"); p.I("s_add_u32 s68, s9, s10")
                p.I("s_lshr_b32 s10, s2, 2"); p.I(f"s_mul_i32 s10, s10, {32*1152}"); p.I("s_add_u32 s10, s10, s68")
                p.I("v_lshrrev_b32 v14, 5, v0"); p.I("v_lshlrev_b32 v14, 3, v14")
                p.I("v_and_b32 v15, 31, v0"); p.I("v_mul_u32_u24 v15, 1152, v15"); p.I("v_add_u32 v15, v15, v14")
                for g in range(2):
                    p.I(f"buffer_load_dwordx2 {vr(XD+2*g,2)}, v15, s[{SXA}:{SXA+3}], s10 offen offset:{16*g}")
                    p.I(f"buffer_load_dwordx2 {vr(XD+4+2*g,2)}, v14, s[{SDK}:{SDK+3}], s68 offen offset:{16*g}")
                vm.iss("xd", 4)
            if rho == 2 and "S" not in XP:
                if j == PJ:
                    vm.wait(p, "xd")
                    p.I(f"buffer_load_dword v{V_T}, v{V_FL}, s[{SH}:{SH+3}], 0 offen sc1")
                    for i in range(4):
                        p.I(f"v_and_b32 v14, 0xffff, v{XD+4+i}"); p.I(f"v_and_b32 v15, 0xffff0000, v{XD+4+i}")
                        p.I(f"v_dot2_f32_bf16 v{ACC+2*i}, v{XD+i}, v14, 0")
                        p.I(f"v_dot2_f32_bf16 v{ACC+2*i+1}, v{XD+i}, v15, 0")
                    for r in range(8, 16): p.I(f"v_mov_b32 v{ACC+r}, 0")
                    p.I("s_mov_b32 s70, 0")
                if j == PJ + 2:
                    p.I("s_mov_b32 s71, 0")
                    p.L("k2_fpoll")
                    p.I("s_waitcnt vmcnt(0)"); vm.q = []
                    p.I(f"v_cmp_ne_u32 vcc, 1, v{V_T}")
                    p.I("s_cbranch_vccz k2_fok")
                    p.I("s_add_u32 s71, s71, 1"); p.I("s_cmp_gt_u32 s71, 0x40000"); p.I("s_cbranch_scc1 k2_fok")
                    p.I("s_sleep 4")
                    p.I(f"buffer_load_dword v{V_T}, v{V_FL}, s[{SH}:{SH+3}], 0 offen sc1")
                    p.I("s_branch k2_fpoll")
                    p.L("k2_fok")
                    for m in range(4): ss_load(p, vm, m)
            if rho == 7 and "S" not in XP:
                if j == 1:
                    srd(p, SOUT, P_OUT, 2048*4608)
                    p.I("s_mov_b32 s9, s68")
                    p.I(f"v_lshrrev_b32 v{V_HF}, 5, v0"); p.I(f"v_lshlrev_b32 v{V_HF}, 3, v{V_HF}")
                    p.I(f"v_and_b32 v{V_CF}, 31, v0"); p.I(f"v_mul_u32_u24 v{V_CF}, 4608, v{V_CF}"); p.I(f"v_lshl_add_u32 v{V_CF}, v{V_HF}, 1, v{V_CF}")
                    p.I("s_lshr_b32 s10, s2, 2"); p.I(f"s_mul_i32 s10, s10, {32*4608}"); p.I("s_lshl_b32 s9, s9, 1"); p.I("s_add_u32 s70, s10, s9")
                    p.I("s_lshl_b32 s9, s3, 11"); p.I(f"s_add_u32 s9, s9, {EXB}")
                    p.I(f"v_add_u32 v{V_HF}, s9, v{V_KV}")
                    p.I("s_lshl_b32 s9, s3, 2"); p.I(f"v_mov_b32 v{V_FL}, s9")
                if j == 4:
                    p.I(f"ds_write_b128 v{V_HF}, {vr(ACC+8,4)}"); p.I(f"ds_write_b128 v{V_HF}, {vr(ACC+12,4)} offset:1024")
                    p.I(f"v_xor_b32 v{V_T}, 16, v{V_FL}")
                    p.I("s_lshl_b32 s9, s3, 11"); p.I("s_xor_b32 s9, s9, 8192"); p.I(f"s_add_u32 s9, s9, {EXB}")
                    p.I(f"v_add_u32 v{V_HF}, s9, v{V_KV}")
                if j == 7: p.I(f"ds_read_b32 v{V_FL}, v{V_T}")
            if j == 4:
                p.I(f"ds_read_b32 v{V_F}, v{V_I8} offset:{lo+512}")
            if j == 5:
                p.L(f"k2_poll{tg}")
                p.I("s_waitcnt lgkmcnt(0)")
                p.I(f"v_readfirstlane_b32 s9, v{V_F}")
                p.I("s_cmp_lg_u32 s9, 0")
                p.I(f"s_cbranch_scc1 k2_ok{tg}")
                p.I("s_sleep 2")
                p.I(f"ds_read_b32 v{V_F}, v{V_I8} offset:{lo+512}")
                p.I(f"s_branch k2_poll{tg}")
                p.L(f"k2_ok{tg}")
                if rho == 7 and "S" not in XP: p.I(f"ds_write_b32 v{V_FL}, v{V_ONE}")
                p.I(f"ds_read_b128 {vr(OP,4)}, v{V_I16} offset:{lo}")
                p.I(f"ds_read_b128 {vr(OP+4,4)}, v{V_I16} offset:{lo+1024}")
                p.I(f"ds_read_b64 {vr(OP+8,2)}, v{V_I8} offset:{lo}")
            if j == 6 and par == 0:
                for r in (V_O16, V_O8): p.I(f"v_add_u32 v{r}, {2*SLOT}, v{r}")
                if rho > 2: p.I("s_cmp_eq_u32 s4, 1"); p.I("s_cselect_b32 s9, s12, 0"); p.I(f"s_add_u32 s9, s9, {2*SLOT}")
                for r in (V_I16, V_I8): p.I(f"v_add_u32 v{r}, {'s9' if rho > 2 else 2*SLOT}, v{r}")
        for r in range(10, 12 if ss else 14): p.I(ex(A+r))
        if kind == "first": vm.wait(p, ("v", j))
        if kind != "first" and j == 7: p.I("s_waitcnt lgkmcnt(0)")
        p.I(pv(j, 0, A, OC))
        for r in range(12 if ss else 14, 16): p.I(ex(A+r))
        if ss:
            vm.wait(p, ("ss", n))
            p.I(mfma(ACC, RG + 8*(n & 3), RG + 8*(n & 3) + 4, ACC))
        for k in range(4, 8): p.I(cv(A, k))
        if ss and n + 4 < 36: ss_load(p, vm, n + 4)

PFK3 = 0
def gpoll(p, tag, va):
    p.I("s_mov_b32 s71, 0x20000"); p.I("s_mov_b32 s61, 0")
    p.L(f"{tag}_p")
    p.I(f"buffer_load_dword v10, v{va}, s[68:71], 0 offen sc1")
    p.I("s_waitcnt vmcnt(0)")
    p.I("v_cmp_ne_u32 vcc, 1, v10")
    p.I(f"s_cbranch_vccz {tag}_ok")
    p.I("s_add_u32 s61, s61, 1"); p.I("s_cmp_gt_u32 s61, 0x40000"); p.I(f"s_cbranch_scc1 {tag}_ok")
    p.I(f"s_sleep {os.environ.get('PSL', '12')}")
    p.I(f"s_branch {tag}_p")
    p.L(f"{tag}_ok")

def o_flag(p, nyounger):
    srd(p, 68, P_WS, 16384, WS_FL)
    p.I("s_lshl_b32 s60, s2, 3"); p.I("s_add_u32 s60, s60, s3"); p.I("s_lshl_b32 s60, s60, 2"); p.I("s_add_u32 s60, s60, 8192")
    p.I("v_mov_b32 v10, 1")
    p.I(f"s_waitcnt vmcnt({nyounger})")
    p.I("s_mov_b64 exec, 1")
    p.I("buffer_store_dword v10, v2, s[68:71], s60 offen sc1")
    p.I("s_mov_b64 exec, -1")

def tail(p):
    if TS == 1: ts(p, 6)
    p.I("s_and_b32 s6, s3, 3")
    p.I("v_lshlrev_b32 v2, 4, v0")
    p.I(f"s_add_u32 s8, s2, {os.environ.get('ROTU', '192')}"); p.I("s_and_b32 s8, s8, 255")
    p.I("s_cmp_ge_u32 s8, 192")
    p.I("s_cbranch_scc1 k3_ssm")
    ACC, FR = 16, 64
    p.I("s_and_b32 s4, s8, 31"); p.I("s_lshl_b32 s7, s4, 8"); p.I("s_add_u32 s7, s7, 8192")
    p.I("s_lshl_b32 s4, s4, 1"); p.I("s_lshr_b32 s5, s3, 2"); p.I("s_add_u32 s4, s4, s5")
    p.I("s_lshr_b32 s5, s8, 5")
    p.I("s_lshl_b32 s60, s6, 7"); p.I("v_xor_b32 v3, s60, v2")
    p.I(f"s_mul_i32 s60, s6, {9*1024}")
    p.I("s_mul_i32 s54, s4, 36864"); p.I("s_add_u32 s54, s54, s60")
    p.I(f"s_mul_i32 s55, s5, {3*36864}"); p.I("s_add_u32 s55, s55, s60"); p.I(f"s_add_u32 s55, s55, {WS_WF-WS_O}")
    p.I("s_add_u32 s56, s55, 36864"); p.I("s_add_u32 s57, s56, 36864")
    srd(p, 64, P_WS, WS_END-WS_O, WS_O)
    WPRE = int(os.environ.get("WPRE", "0"))
    for i in range(9):
        if i == WPRE: o_flag(p, 3*WPRE)
        if i and i % 4 == 0:
            for r in (55, 56, 57): p.I(f"s_add_u32 s{r}, s{r}, 4096")
        for k in range(1, 4):
            p.I(f"buffer_load_dwordx4 {vr(FR+16*i+4*k,4)}, v3, s[64:67], s{54+k} offen offset:{(i%4)*1024}")
    srd(p, 72, P_OUT, 2048*4608)
    p.I("v_and_b32 v12, 31, v0"); p.I("v_mul_u32_u24 v12, 4608, v12"); p.I("v_lshrrev_b32 v13, 5, v0"); p.I("v_lshl_add_u32 v12, v13, 4, v12")
    p.I(f"s_mul_i32 s58, s4, {32*4608}"); p.I("s_mul_i32 s59, s5, 384"); p.I("s_add_u32 s58, s58, s59")
    p.I("s_lshl_b32 s59, s6, 5"); p.I("s_add_u32 s58, s58, s59"); p.I("s_add_u32 s58, s58, 2304")
    p.I("s_lshl_b32 s60, s3, 14"); p.I("v_add_u32 v4, s60, v2")
    for g in range(1, 4): p.I(f"v_xor_b32 v{4+g}, {g << 14}, v4")
    p.I("v_lshl_add_u32 v11, v0, 2, s7")
    if TS == 1: ts(p, 1)
    p.I("s_barrier")
    if TS == 1: ts(p, 2)
    p.I("s_cmp_lg_u32 s3, 0"); p.I("s_cbranch_scc1 k3_o_ok")
    gpoll(p, "k3_o", 11)
    p.I("s_barrier")
    if TS == 1: ts(p, 7)
    for i in range(9):
        if i and i % 4 == 0: p.I("s_add_u32 s54, s54, 4096")
        p.I(f"buffer_load_dwordx4 {vr(FR+16*i,4)}, v2, s[64:67], s54 offen offset:{(i%4)*1024} sc1")
    for i in range(9):
        p.I(f"s_waitcnt vmcnt({8-i})")
        f = FR + 16*i
        for nt in range(3): p.I(mfma(ACC+16*nt, f+4+4*nt, f, ACC+16*nt if i else None))
    for nt in range(3):
        for g in range(1, 4): p.I(f"ds_write_b128 v{4+g}, {vr(ACC+16*nt+4*g,4)} offset:{((g-1)*3+nt)*1024}")
    p.I("s_waitcnt lgkmcnt(0)")
    if TS == 1: ts(p, 3)
    p.I("s_barrier")
    for nt in range(3):
        for g in range(3): p.I(f"ds_read_b128 {vr(FR+12*nt+4*g,4)}, v4 offset:{(g*3+nt)*1024}")
    for nt in range(3):
        for g in range(3):
            p.I(f"s_waitcnt lgkmcnt({8-3*nt-g})")
            for k in range(2): p.I(f"v_pk_add_f32 {vr(ACC+16*nt+2*k,2)}, {vr(ACC+16*nt+2*k,2)}, {vr(FR+12*nt+4*g+2*k,2)}")
        p.I(f"buffer_store_dwordx4 {vr(ACC+16*nt,4)}, v12, s[72:75], s58 offen offset:{128*nt}")
    if TS != 1: ts(p, 7, True)
    else: p.I("s_waitcnt vmcnt(0)"); ts(p, 4)
    ts_flush(p, "k2o")
    p.I("s_endpgm")
    p.L("k3_ssm")
    ACC, FR = 16, 48
    p.I("s_sub_u32 s4, s8, 192")
    p.I(f"s_mul_i32 s54, s3, {9*1024}")
    p.I(f"s_mul_i32 s55, s4, {72*1024}"); p.I("s_add_u32 s55, s55, s54"); p.I(f"s_add_u32 s55, s55, {WS_H2-WS_CF}")
    p.I(f"s_add_u32 s54, s54, {16*72*1024}")
    p.I(f"s_add_u32 s56, s54, {72*1024}")
    p.I("s_lshl_b32 s7, s4, 7"); p.I("v_min_u32 v11, 17, v0"); p.I("v_lshl_add_u32 v11, v11, 2, s7")
    srd(p, 68, P_WS, 16384, WS_FL)
    gpoll(p, "k3_h", 11)
    o_flag(p, 0)
    srd(p, 64, P_WS, WS_FL-WS_CF, WS_CF)
    for i in range(9):
        if i and i % 4 == 0:
            for r in (54, 55, 56): p.I(f"s_add_u32 s{r}, s{r}, 4096")
        for k, r in enumerate((55, 54, 56)):
            p.I(f"buffer_load_dwordx4 {vr(FR+12*i+4*k,4)}, v2, s[64:67], s{r} offen offset:{(i%4)*1024}" + (" sc1" if k == 0 else ""))
    p.I("v_lshrrev_b32 v13, 5, v0"); p.I("v_lshlrev_b32 v13, 3, v13")
    p.I("v_and_b32 v12, 31, v0"); p.I("v_mul_u32_u24 v14, 1152, v12"); p.I("v_add_u32 v14, v14, v13")
    p.I("v_mul_u32_u24 v15, 4608, v12"); p.I("v_lshl_add_u32 v15, v13, 1, v15")
    p.I("s_lshl_b32 s57, s3, 4"); p.I("s_add_u32 s57, s57, 1024")
    p.I(f"s_mul_i32 s58, s4, {32*1152}"); p.I("s_add_u32 s58, s58, s57")
    p.I(f"s_mul_i32 s59, s4, {32*4608}"); p.I("s_lshl_b32 s60, s57, 1"); p.I("s_add_u32 s59, s59, s60")
    srd(p, 68, P_AX, 2048*1152); srd(p, 72, P_DSK, 1152); srd(p, 92, P_OUT, 2048*4608)
    p.I("buffer_load_dwordx2 v[4:5], v14, s[68:71], s58 offen")
    p.I("buffer_load_dwordx2 v[6:7], v13, s[72:75], s57 offen")
    p.I("s_lshl_b32 s60, s3, 13"); p.I("v_add_u32 v8, s60, v2")
    p.I("s_lshl_b32 s60, s3, 10"); p.I("v_add_u32 v9, s60, v2")
    for i in range(9):
        p.I(f"s_waitcnt vmcnt({2 + 3*(8-i)})")
        f = FR + 12*i
        p.I(mfma(ACC, f+4, f, ACC if i else None)); p.I(mfma(ACC+16, f+8, f, ACC+16 if i else None))
    p.I("s_barrier")
    for i in range(8): p.I(f"ds_write_b128 v8, {vr(ACC+4*i,4)} offset:{1024*i}")
    p.I("s_waitcnt lgkmcnt(0)")
    p.I("s_barrier")
    for i in range(8): p.I(f"ds_read_b128 {vr(FR+4*i,4)}, v9 offset:{8192*i}")
    p.I("s_waitcnt vmcnt(0)")
    for i in range(2):
        p.I(f"v_and_b32 v10, 0xffff, v{6+i}"); p.I(f"v_and_b32 v11, 0xffff0000, v{6+i}")
        p.I(f"v_dot2_f32_bf16 v{ACC+2*i}, v{4+i}, v10, 0"); p.I(f"v_dot2_f32_bf16 v{ACC+2*i+1}, v{4+i}, v11, 0")
    for i in range(8):
        p.I(f"s_waitcnt lgkmcnt({7-i})")
        for k in range(2): p.I(f"v_pk_add_f32 {vr(ACC+2*k,2)}, {vr(ACC+2*k,2)}, {vr(FR+4*i+2*k,2)}")
    p.I(f"buffer_store_dwordx4 {vr(ACC,4)}, v15, s[92:95], s59 offen")
    if TS != 1: ts(p, 7, True)
    ts_flush(p, "k2s")

def gen_k2(name):
    p = Prog()
    p.L(name)
    p.I("s_cmp_ge_u32 s2, 256")
    p.I(f"s_cbranch_scc1 {name}_end")
    load_ptrs(p)
    ts(p, 0)
    if TS != 1: ts(p, 6, True)
    p.I("v_lshrrev_b32 v1, 6, v0")
    p.I("v_and_b32 v0, 63, v0")
    p.I("v_readfirstlane_b32 s3, v1")
    p.I("v_and_b32 v14, 31, v0")
    p.I("v_lshrrev_b32 v15, 5, v0")
    p.I(f"v_lshrrev_b32 v{V_Q0}, 2, v14")
    p.I(f"v_mul_u32_u24 v{V_Q0}, 1152, v{V_Q0}")
    p.I("v_and_b32 v1, 3, v0")
    p.I(f"v_mad_u32_u24 v{V_Q0}, v1, 36, v{V_Q0}")
    p.I(f"v_lshlrev_b32 v1, 28, v15")
    p.I(f"v_add3_u32 v{V_QA}, v{V_Q0}, v1, 32")
    p.I(f"v_xor_b32 v{V_QB}, 0x10000000, v{V_QA}")
    p.I(f"v_lshl_add_u32 v{V_Q0}, v15, 4, v{V_Q0}")
    p.I(f"v_lshlrev_b32 v{V_KV}, 4, v0")
    p.I("v_cmp_lt_u32 vcc, 20, v14")
    p.I(f"v_mov_b32 v1, 0x10000000")
    p.I(f"v_cndmask_b32 v{V_VA}, v{V_KV}, v1, vcc")
    p.I(f"v_mov_b32 v{V_H}, 0")
    p.I("s_and_b32 s7, s2, 3"); p.I("s_mul_i32 s5, s7, 9"); p.I("s_add_u32 s5, s5, 1"); p.I("s_lshr_b32 s5, s5, 1")
    p.I("s_and_b32 s7, s7, 1"); p.I("s_lshl_b32 s7, s7, 5"); p.I("s_add_u32 s7, s7, 8")
    p.I("s_cmp_eq_u32 s3, 0"); p.I("s_cselect_b32 s7, s7, s3")
    p.I("s_add_u32 s5, s5, s7"); p.I("s_sub_u32 s5, s5, 4")
    p.I("s_cmp_lt_u32 s7, 4"); p.I("s_cselect_b32 s5, 99, s5")
    p.I("s_lshr_b32 s7, s3, 2"); p.I(f"s_mul_i32 s9, s7, {36*1024}")
    p.I("s_lshr_b32 s10, s2, 2"); p.I(f"s_mul_i32 s11, s10, {72*1024}"); p.I("s_add_u32 s11, s11, s9"); p.I(f"s_add_u32 s11, s11, {WS_H2-WS_H}")
    p.I(f"v_add_u32 v{V_HF}, s11, v{V_KV}")
    p.I("s_lshl_b32 s10, s10, 7"); p.I(f"s_add_u32 s10, s10, {WS_FL-WS_H}")
    p.I(f"v_min_u32 v{V_FL}, 17, v0"); p.I(f"v_lshl_add_u32 v{V_FL}, v{V_FL}, 2, s10")
    p.I("s_and_b32 s10, s2, 3"); p.I("s_lshl_b32 s10, s10, 2"); p.I("s_and_b32 s11, s3, 3"); p.I("s_add_u32 s10, s10, s11")
    p.I(f"s_mul_i32 s10, s10, {72*1024}"); p.I("s_add_u32 s10, s10, s9"); p.I(f"s_add_u32 s10, s10, {WS_CF-WS_H}")
    p.I("s_lshl_b32 s7, s7, 8"); p.I(f"v_xor_b32 v{V_CF}, s7, v{V_KV}"); p.I(f"v_add_u32 v{V_CF}, s10, v{V_CF}")
    p.I(f"s_mul_i32 s8, s2, {8*1152}")
    kv_bases(p, 3)
    p.I(f"s_mul_i32 s9, s3, {7*SLOT}"); p.I(f"s_add_u32 s9, s9, {SLOT}")
    p.I(f"v_add_u32 v{V_O16}, s9, v{V_KV}")
    p.I(f"v_lshlrev_b32 v1, 3, v0")
    p.I("s_add_u32 s9, s9, 2048")
    p.I(f"v_add_u32 v{V_O8}, s9, v1")
    p.I("s_add_u32 s10, s3, 2"); p.I("s_and_b32 s10, s10, 7"); p.I(f"s_mul_i32 s10, s10, {7*SLOT}")
    p.I("s_add_u32 s12, s3, 1"); p.I("s_and_b32 s12, s12, 7"); p.I(f"s_mul_i32 s12, s12, {7*SLOT}")
    p.I("s_sub_u32 s12, s12, s10")
    p.I(f"s_add_u32 s10, s10, {SLOT}")
    p.I(f"v_add_u32 v{V_I16}, s10, v{V_KV}")
    p.I("s_add_u32 s10, s10, 2048")
    p.I(f"v_add_u32 v{V_I8}, s10, v1")
    p.I(f"v_mul_u32_u24 v1, {SLOT}, v0")
    p.I(f"v_add_u32 v1, s9, v1")
    p.I(f"v_mov_b32 v{V_ONE}, 0")
    p.I("s_mov_b64 exec, 0x7f")
    p.I(f"ds_write_b32 v1, v{V_ONE} offset:512")
    p.I("s_lshl_b32 s9, s3, 2"); p.I("v_mov_b32 v1, s9")
    p.I(f"ds_write_b32 v1, v{V_ONE}")
    p.I("s_mov_b64 exec, -1")
    p.I(f"v_mov_b32 v{V_ONE}, 1")
    p.I("s_waitcnt lgkmcnt(0)")
    p.I("s_barrier")
    srd(p, SQ, P_WS, 2048*1152, WS_Q); srd(p, SKV, P_WS, WS_H-WS_K0, WS_K0); srd(p, SH, P_WS, WS_END-WS_H, WS_H); srd(p, SO, P_WS, 2048*1152, WS_O)
    if TS == 2: ts(p, 1)
    p.I("s_cmp_ge_u32 s5, 18"); p.I("s_cbranch_scc1 k2_nofx1")
    if PRI: p.I("s_setprio 3")
    fixup_loads(p)
    p.L("k2_nofx1")
    ld_kx(p)
    p.I("s_mul_i32 s9, s3, 144"); p.I("s_add_u32 s9, s9, s8")
    q_loads(p, QB0, 9)
    ld_k0(p, 0); ld_k0(p, 1); ld_v(p, 0); ld_k0(p, 2); ld_v(p, 1)
    NKV = 12
    if TS == 2: ts(p, 2)
    for qb in (QB0, QB1):
        for z in (5, 7): p.I(f"v_mov_b32 v{qb+z}, 0")
    for r in range(32): p.I(f"v_mov_b32 v{O0+r}, 0")
    p.I("s_mov_b32 s4, 0")
    p.I("s_add_u32 s69, s3, 1")
    vm = VM()
    p.I("s_cmp_ge_u32 s5, 18"); p.I("s_cbranch_scc1 k2_nofx2")
    fixup_compute(p, NKV)
    p.I("s_and_b32 s9, s69, 7"); p.I("s_mul_i32 s9, s9, 144"); p.I("s_add_u32 s9, s9, s8")
    ts(p, 1 if TS == 1 else 3)
    p.I(f"s_waitcnt vmcnt({NKV-6+20+4})")
    p.I(x8(0, S0, QB0)); p.I(x16(0, S0, QB0))
    pre = [("k", 1), ("v", 0), ("v", 0), ("k", 2), ("v", 1), ("v", 1)]
    vm.q = list(pre)
    for j in range(3, 8):
        if j == 3+FXB: vm.iss("st", 4)
        vm.q += [("k", j), ("v", j-1), ("v", j-1)]
    vm.q += [("v", 7)]*2 + ["q"]*3
    emit_round(p, 0, vm, fx=True)
    if PRI: p.I("s_setprio 0")
    p.I("s_branch k2_r1")
    p.L("k2_nofx2")
    ts(p, 1 if TS == 1 else 3)
    p.I("s_and_b32 s9, s69, 7"); p.I("s_mul_i32 s9, s9, 144"); p.I("s_add_u32 s9, s9, s8")
    p.I(f"s_waitcnt vmcnt({NKV-6})")
    p.I(x8(0, S0, QB0)); p.I(x16(0, S0, QB0))
    vm.q = list(pre)
    emit_round(p, 0, vm)
    vm.q = []
    p.L("k2_r1")
    if TS: ts(p, 2 if TS == 1 else 5)
    emit_round(p, 1, vm)
    if TS == 1: ts(p, 3)
    emit_round(p, 2, vm)
    if TS == 1: ts(p, 4)
    p.L("k2_loop")
    l0 = len(p.lines)
    emit_round(p, 3, vm); emit_round(p, 4, vm)
    p2 = Prog(); emit_round(p2, 5, vm, tg="r3"); emit_round(p2, 6, vm, tg="r4")
    assert p2.lines == p.lines[l0:], "loop body not steady"
    p.I("s_add_u32 s4, s4, 1")
    p.I("s_cmp_lt_u32 s4, 2")
    p.I("s_cbranch_scc1 k2_loop")
    if TS == 1: ts(p, 5)
    emit_round(p, 7, vm)
    p.I(pv(7, 1, S1, O1))
    if "S" not in XP:
        p.L("k2_xpoll")
        p.I("s_waitcnt lgkmcnt(0)")
        p.I(f"v_readfirstlane_b32 s9, v{V_FL}")
        p.I("s_cmp_lg_u32 s9, 0"); p.I("s_cbranch_scc1 k2_xok")
        p.I("s_sleep 2")
        p.I(f"ds_read_b32 v{V_FL}, v{V_T}")
        p.I("s_branch k2_xpoll")
        p.L("k2_xok")
        p.I(f"ds_read_b128 {vr(RG+8,4)}, v{V_HF}"); p.I(f"ds_read_b128 {vr(RG+12,4)}, v{V_HF} offset:1024")
    p.I("s_add_u32 s10, s3, 7"); p.I("s_and_b32 s10, s10, 7")
    p.I("s_lshr_b32 s9, s2, 2"); p.I("s_mul_i32 s9, s9, 36864"); p.I("s_and_b32 s11, s2, 3"); p.I("s_lshl_b32 s11, s11, 7"); p.I("s_add_u32 s9, s9, s11")
    p.I("s_lshl_b32 s11, s10, 9"); p.I("s_add_u32 s11, s11, s9"); p.I("s_add_u32 s11, s11, 32768")
    p.I("s_lshl_b32 s10, s10, 12"); p.I("s_add_u32 s9, s9, s10")
    p.I(f"v_bfe_u32 v{V_Q0}, v0, 2, 3"); p.I(f"v_lshlrev_b32 v{V_Q0}, 4, v{V_Q0}")
    p.I("v_and_b32 v1, 3, v0"); p.I(f"v_lshrrev_b32 v{V_QB}, 5, v0")
    p.I(f"v_lshl_add_u32 v{V_QA}, v1, 2, v{V_Q0}"); p.I(f"v_lshl_add_u32 v{V_QA}, v{V_QB}, 28, v{V_QA}")
    p.I(f"v_lshl_add_u32 v{V_Q0}, v1, 10, v{V_Q0}"); p.I(f"v_lshl_add_u32 v{V_Q0}, v{V_QB}, 9, v{V_Q0}")
    for k in range(5): p.I(f"v_pk_add_f32 {vr(O1+2*k,2)}, {vr(O1+2*k,2)}, {vr(O0+2*k,2)}")
    p.I(f"v_mov_b32 v14, v{O1+8}"); p.I(f"v_mov_b32 v15, v{O1+8}")
    p.I("v_permlane32_swap_b32 v14, v15")
    LO, HI = f2u(2.0**-60), f2u(2.0**60)
    p.I(f"v_subrev_u32 v14, {LO}, v15")
    p.I(f"v_cmp_lt_u32 vcc, {HI-LO}, v14")
    if "S" not in XP:
        p.I("s_waitcnt lgkmcnt(0)")
        for i in range(4): p.I(f"v_pk_add_f32 {vr(ACC+2*i,2)}, {vr(ACC+2*i,2)}, {vr(RG+8+2*i,2)}")
        for g in range(2): p.I(f"buffer_store_dwordx4 {vr(ACC+4*g,4)}, v{V_CF}, s[{SOUT}:{SOUT+3}], s70 offen offset:{32*g}")
    p.I("s_cbranch_vccnz k2_slow")
    p.L("k2_fin")
    p.I("v_rcp_f32 v14, v15")
    p.I("s_nop 0")
    for k in range(5): p.I(f"v_pk_mul_f32 {vr(O1+2*k,2)}, {vr(O1+2*k,2)}, v[14:15] op_sel_hi:[1,0]")
    for k in range(5): p.I(f"v_cvt_pk_bf16_f32 v{O1+k}, v{O1+2*k}, v{O1+2*k+1}")
    p.I(f"buffer_store_dwordx4 {vr(O1,4)}, v{V_Q0}, s[{SO}:{SO+3}], s9 offen sc1")
    p.I(f"buffer_store_dword v{O1+4}, v{V_QA}, s[{SO}:{SO+3}], s11 offen sc1")
    tail(p)
    p.L(f"{name}_end")
    p.I("s_endpgm")
    p.L("k2_slow")
    p.I("v_mov_b32 v14, 0xff800000")
    for ps in range(2):
        p.I("s_mov_b32 s4, 0")
        p.L(f"k2_sp{ps}")
        kv_bases(p, 4)
        ld_kx(p)
        for j in range(8):
            ld_k0(p, j)
            if ps: ld_v(p, j)
        p.I("s_waitcnt vmcnt(0)")
        for j in range(8):
            p.I(x8(j, S0, QB1, S1 if ps else None)); p.I(x16(j, S0, QB1))
            if ps == 0:
                for k in range(8): p.I(f"v_max3_f32 v14, v14, v{S0+2*k}, v{S0+2*k+1}")
            else:
                for r in range(16): p.I(ex(S0+r))
                for k in range(8): p.I(cv(S0, k))
                p.I(pv(j, 0, S0, O1)); p.I(pv(j, 1, S0, O1))
        p.I("s_add_u32 s4, s4, 1"); p.I("s_cmp_lt_u32 s4, 8"); p.I(f"s_cbranch_scc1 k2_sp{ps}")
        if ps == 0:
            p.I("v_mov_b32 v15, v14")
            p.I("v_permlane32_swap_b32 v14, v15")
            p.I("v_max_f32 v14, v14, v15")
            for r in range(16):
                p.I(f"v_sub_f32 v{S1+r}, 0, v14"); p.I(f"v_mov_b32 v{O1+r}, 0")
    p.I(f"v_mov_b32 v14, v{O1+8}"); p.I(f"v_mov_b32 v15, v{O1+8}")
    p.I("v_permlane32_swap_b32 v14, v15")
    p.I("s_branch k2_fin")
    return (p, 256, EXB + 1024) if "S" in XP else (p, 256, EXB + 16384)
```

```python
from common import *

KX, K0, VV, S0, S1, O0, O1, QB0, QB1, HX = 16, 24, 56, 120, 136, 152, 168, 184, 192, 200
SLOT = 2576
V_Q0, V_QA, V_QB, V_KV, V_VA, V_O16, V_O8, V_I16, V_I8, V_ONE, V_F, V_H = 2, 3, 4, 5, 6, 7, 8, 9, 10, 11, 12, 13
SQ, SKV, SH, SO = 52, 56, 60, 64

def pk_cfma(p, d, a, b, c, t):
    if c is None: p.I(f"v_pk_mul_f32 {vr(t,2)}, {vr(a,2)}, {vr(b,2)} op_sel_hi:[1,0]")
    else: p.I(f"v_pk_fma_f32 {vr(t,2)}, {vr(a,2)}, {vr(b,2)}, {vr(c,2)} op_sel_hi:[1,0,1]")
    p.I(f"v_pk_fma_f32 {vr(d,2)}, {vr(a,2)}, {vr(b,2)}, {vr(t,2)} op_sel:[1,1,0] op_sel_hi:[0,1,1] neg_lo:[0,1,0]")

def q_loads(p, qb, soff):
    p.I(f"buffer_load_dwordx4 {vr(qb,4)}, v{V_Q0}, s[{SQ}:{SQ+3}], s{soff} offen")
    p.I(f"buffer_load_dword v{qb+4}, v{V_QA}, s[{SQ}:{SQ+3}], s{soff} offen")
    p.I(f"buffer_load_dword v{qb+6}, v{V_QB}, s[{SQ}:{SQ+3}], s{soff} offen")

def x8(j, s, qb, c=None): return mfma(s, KX + 2*(j >> 1), qb + 4 + 2*(j & 1), c, "32x32x8")
def x16(j, s, qb): return mfma(s, K0 + 4*j, qb, s)
def pv(j, m, s, o): return mfma(o, VV + 8*j + 4*m, s + 4*m, o)
def ex(r): return f"v_exp_f32 v{r}, v{r}"
def cv(s, k): return f"v_cvt_pk_bf16_f32 v{s+k}, v{s+2*k}, v{s+2*k+1}"

XP = os.environ.get("XP", "")
def kv_bases(p, g):
    p.I(f"s_lshl_b32 s13, s{g}, 13")
    p.I(f"s_lshl_b32 s14, s{g}, 14"); p.I(f"s_add_u32 s14, s14, {WS_V-WS_K0}")
    p.I(f"s_lshl_b32 s15, s{g}, 11"); p.I(f"s_add_u32 s15, s15, {WS_KX-WS_K0}")
def ld_k0(p, j):
    p.I(f"s_add_u32 s7, s13, {(j//4)*4096}")
    p.I(f"buffer_load_dwordx4 {vr(K0+4*j,4)}, v{V_KV}, s[{SKV}:{SKV+3}], s7 offen offset:{(j%4)*1024}")
def ld_v(p, j):
    p.I(f"s_add_u32 s7, s14, {(j//2)*4096}")
    p.I(f"buffer_load_dwordx4 {vr(VV+8*j,4)}, v{V_VA}, s[{SKV}:{SKV+3}], s7 offen offset:{(j%2)*2048}")
    p.I(f"buffer_load_dwordx4 {vr(VV+8*j+4,4)}, v{V_VA}, s[{SKV}:{SKV+3}], s7 offen offset:{(j%2)*2048+1024}")
def ld_kx(p):
    p.I(f"buffer_load_dwordx4 {vr(KX,4)}, v{V_KV}, s[{SKV}:{SKV+3}], s15 offen")
    p.I(f"buffer_load_dwordx4 {vr(KX+4,4)}, v{V_KV}, s[{SKV}:{SKV+3}], s15 offen offset:1024")

def fixup_loads(p):
    p.I("s_lshr_b32 s7, s2, 2")
    p.I("s_mov_b32 s9, s5")
    p.I("s_cmp_ge_u32 s9, 9"); p.I("s_cselect_b32 s10, 1, 0")
    p.I("s_mul_i32 s11, s10, 9"); p.I("s_sub_u32 s9, s9, s11")
    p.I("s_lshl_b32 s70, s9, 12"); p.I("s_lshl_b32 s11, s10, 8"); p.I("s_add_u32 s70, s70, s11")
    p.I(f"s_mul_i32 s11, s7, {72*1024}"); p.I("s_add_u32 s70, s70, s11"); p.I(f"s_add_u32 s70, s70, {WS_H2-WS_H}")
    p.I("s_lshl_b32 s9, s9, 6")
    p.I(f"v_add_u32 v{V_H}, s9, v0")
    p.I(f"v_lshlrev_b32 v14, 3, v{V_H}")
    p.I(f"v_lshlrev_b32 v{V_H}, 4, v{V_H}")
    p.I("s_lshr_b32 s68, s7, 2")
    T = HX + 16
    def ld2(d, s): p.I(f"buffer_load_dwordx2 {vr(d,2)}, v14, s[{SH}:{SH+3}], s{s} offen")
    p.I(f"s_mov_b32 s11, {WS_PW-WS_H+8*4608}"); ld2(T+6, 11)
    for jj in range(8):
        p.I(f"s_cmp_le_u32 s68, {2*jj}"); p.I("s_cbranch_scc1 k2_fx_ld")
        p.I(f"s_mov_b32 s11, {WS_A-WS_H+jj*9216}")
        p.I(f"buffer_load_dwordx4 {vr(S0+4*jj,4)}, v{V_H}, s[{SH}:{SH+3}], s11 offen")
    p.L("k2_fx_ld")
    p.I(f"s_mov_b32 s11, {WS_PW-WS_H}"); ld2(T, 11)
    p.I("s_mul_i32 s9, s10, 4608"); p.I("s_add_u32 s11, s11, s9"); ld2(T+2, 11)
    p.I("s_and_b32 s9, s7, 3"); p.I("s_mul_i32 s9, s9, 9216"); p.I("s_add_u32 s11, s11, s9"); ld2(T+4, 11)
    p.I("s_mul_i32 s11, s7, 4608"); p.I(f"s_add_u32 s11, s11, {WS_P-WS_H}"); ld2(T+8, 11)
    p.I("s_lshl_b32 s6, s7, 1"); p.I("s_add_u32 s6, s6, s10"); p.I(f"s_mul_i32 s6, s6, {2*18432}")
    for i in range(4):
        p.I(f"s_add_u32 s11, s6, {i*9216}")
        p.I(f"buffer_load_dwordx4 {vr(HX+4*i,4)}, v{V_H}, s[{SH}:{SH+3}], s11 offen")

FXB = int(os.environ.get('FXB', '0'))
FXA = FXB + 2
PRI = int(os.environ.get('PRI', '0'))
def fixup_compute(p, nyounger):
    T = HX + 16
    PW0, PWH, PWC, L128, PP, G, X, Y, TM = T, T+2, T+4, T+6, T+8, T+10, T+12, T+14, T+16
    p.I(f"v_mov_b32 v{G}, 0"); p.I(f"v_mov_b32 v{G+1}, 0")
    p.I("s_mov_b32 s10, 0x3f80"); p.I("s_mov_b32 s11, 0x3f800000")
    p.I(f"s_waitcnt vmcnt({nyounger+8})")
    for jj in range(15):
        p.I(f"s_cmp_le_u32 s68, {jj}"); p.I("s_cbranch_scc1 k2_fx_h")
        pk_cfma(p, G, G, L128, S0+2*jj, TM)
    p.L("k2_fx_h")
    for j in range(3, 3+FXB): ld_k0(p, j); ld_v(p, j-1)
    nyounger += 3*FXB
    p.I("v_bfe_u32 v14, v0, 1, 1"); p.I("v_lshlrev_b32 v14, 10, v14")
    p.I("v_lshrrev_b32 v15, 4, v0"); p.I("v_lshlrev_b32 v15, 3, v15")
    p.I("v_bfe_u32 v1, v0, 2, 2"); p.I("v_add_u32 v15, v15, v1")
    p.I("v_lshl_add_u32 v14, v15, 4, v14")
    p.I("v_and_b32 v1, 1, v0"); p.I("v_lshl_add_u32 v14, v1, 3, v14")
    p.I(f"s_mul_i32 s7, s3, {7*SLOT}"); p.I(f"s_add_u32 s7, s7, {6*SLOT}")
    p.I("v_add_u32 v14, s7, v14")
    p.I("v_and_b32 v15, 15, v0"); p.I("v_lshlrev_b32 v15, 4, v15")
    p.I("v_bfe_u32 v1, v0, 4, 1"); p.I("v_lshl_add_u32 v15, v1, 9, v15")
    p.I("v_lshrrev_b32 v1, 5, v0"); p.I("v_lshl_add_u32 v15, v1, 10, v15")
    p.I(f"s_waitcnt vmcnt({nyounger+4})")
    pk_cfma(p, X, PP, PWH, None, X)
    pk_cfma(p, L128, PW0, PW0, None, L128)
    pk_cfma(p, X, G, PWC, X, TM)
    pk_cfma(p, Y, X, PW0, None, Y)
    p.I(f"s_waitcnt vmcnt({nyounger})")
    for k in range(8):
        q, e = divmod(k, 4)
        hr, hi = HX + 8*q + e, HX + 8*q + 4 + e
        p.I(f"v_dot2_f32_bf16 v{TM}, v{hr}, s10, v{X}")
        p.I(f"v_dot2_f32_bf16 v{TM+1}, v{hr}, s11, v{Y}")
        p.I(f"v_dot2_f32_bf16 v{TM+2}, v{hi}, s10, v{X+1}")
        p.I(f"v_dot2_f32_bf16 v{TM+3}, v{hi}, s11, v{Y+1}")
        if k < 7:
            p.I(f"v_pk_mul_f32 {vr(TM+4,2)}, {vr(X,2)}, {vr(L128,2)} op_sel_hi:[1,0]")
            p.I(f"v_pk_mul_f32 {vr(TM+6,2)}, {vr(Y,2)}, {vr(L128,2)} op_sel_hi:[1,0]")
        p.I(f"v_cvt_pk_bf16_f32 v{hr}, v{TM}, v{TM+1}")
        p.I(f"v_cvt_pk_bf16_f32 v{hi}, v{TM+2}, v{TM+3}")
        if k < 7:
            for (g, t) in ((X, TM+4), (Y, TM+6)):
                p.I(f"v_pk_fma_f32 {vr(g,2)}, {vr(g,2)}, {vr(L128,2)}, {vr(t,2)} op_sel:[1,1,0] op_sel_hi:[0,1,1] neg_lo:[0,1,0]")
        if e == 3:
            for c in range(2): p.I(f"ds_write_b128 v{V_O16}, {vr(HX+8*q+4*c,4)} offset:{(5+c)*SLOT + q*1024}")
    p.I("s_waitcnt lgkmcnt(0)")
    for c in range(2):
        for m in range(2):
            for e in range(2):
                p.I(f"ds_read_b64_tr_b16 {vr(T+8*c+4*m+2*e,2)}, v14 offset:{c*SLOT + m*512 + e*64}")
    p.I(f"s_add_u32 s71, s70, {36*1024}")
    for c in range(2):
        for m in range(2):
            p.I(f"s_waitcnt lgkmcnt({6-4*c-2*m})")
            p.I(f"buffer_store_dwordx4 {vr(T+8*c+4*m,4)}, v15, s[{SH}:{SH+3}], s{70+c} offen offset:{m*2048}" + ("" if "S" in XP else " sc1"))
    for j in range(3+FXB, 8): ld_k0(p, j); ld_v(p, j-1)
    ld_v(p, 7)
    p.I("s_and_b32 s9, s69, 7"); p.I("s_mul_i32 s9, s9, 144"); p.I("s_add_u32 s9, s9, s8")
    q_loads(p, QB1, 9)

NSL = os.environ.get("NSL", "0")
_slc = [0]
def osleep(p, j, pos, kind):
    if kind == "first": return
    n = int(NSL[j % len(NSL)])
    if pos not in {0: (), 1: (1,), 2: (0, 2), 3: (0, 1, 2), 4: (0, 1, 2, 3)}[n]: return
    _slc[0] += 1
    p.I(f"s_cbranch_vccz k2_sl{_slc[0]}"); p.I("s_sleep 1"); p.L(f"k2_sl{_slc[0]}")

ACC, RG, V_HF, V_CF, V_FL, V_T = 200, 216, 248, 249, 250, 251
EXB = 57*SLOT
SOUT, SXA, SDK = 72, 92, 96
PJ = int(os.environ.get('PJ', '1'))
XD = 240
HSC = int(os.environ.get('HSC', '1'))
class VM:
    def __init__(s): s.q = []
    def iss(s, tag, n=1): s.q += [tag]*n
    def wait(s, p, tag):
        idx = max([i for i, t in enumerate(s.q) if t == tag], default=None)
        if idx is None: return
        p.I(f"s_waitcnt vmcnt({len(s.q)-1-idx})"); s.q = s.q[idx+1:]
def ss_load(p, vm, n):
    r = RG + 8*(n & 3)
    p.I(f"buffer_load_dwordx4 {vr(r,4)}, v{V_CF}, s[{SH}:{SH+3}], s70 offen offset:{(n&3)*1024}")
    p.I(f"buffer_load_dwordx4 {vr(r+4,4)}, v{V_HF}, s[{SH}:{SH+3}], s70 offen offset:{(n&3)*1024}" + (" sc1" if HSC else ""))
    vm.iss(("ss", n), 2)
    if n & 3 == 3: p.I("s_add_u32 s70, s70, 4096")

def emit_round(p, rho, vm, fx=False, tg=None):
    par = rho & 1
    kind = "first" if rho == 0 else ("last" if rho == 7 else "mid")
    QC, QN = (QB0, QB1) if par == 0 else (QB1, QB0)
    OC, OP = (O0, O1) if par == 0 else (O1, O0)
    lo = (1 - par) * SLOT
    tg = tg or f"r{rho}"
    prog = kind == "first" and not fx
    for j in range(8):
        A, B = (S0, S1) if j % 2 == 0 else (S1, S0)
        jn, qn = (j+1, QC) if j < 7 else (0, QN)
        nxt = not (kind == "last" and j == 7)
        n = 8*(rho-3) + j
        ss = 0 <= n < 36 and "S" not in XP
        p.I(ex(A)); p.I(ex(A+1))
        if not (kind == "first" and j == 0): p.I(pv((j-1) % 8, 1, B, OC if j else OP))
        for r in range(2, 6): p.I(ex(A+r))
        if j == 7 and nxt:
            vm.wait(p, "q")
        if nxt: p.I(x8(jn, B, qn))
        p.I(ex(A+6)); p.I(ex(A+7))
        for k in range(4): p.I(cv(A, k))
        if kind == "first" and j < 7: vm.wait(p, ("k", j+1))
        if nxt: p.I(x16(jn, B, qn))
        p.I(ex(A+8)); p.I(ex(A+9))
        if kind == "first":
            if not fx and j <= 4: ld_k0(p, j+3); vm.iss(("k", j+3))
            if not fx and j <= 5: ld_v(p, j+2); vm.iss(("v", j+2), 2)
            if fx and j == FXA and "S" not in XP:
                p.I("s_lshr_b32 s7, s2, 2"); p.I("s_lshl_b32 s7, s7, 5"); p.I("s_add_u32 s7, s7, s5"); p.I("s_lshl_b32 s7, s7, 2")
                p.I(f"s_add_u32 s7, s7, {WS_FL-WS_H}")
                vm.wait(p, "st")
                p.I("s_mov_b64 exec, 1")
                p.I(f"buffer_store_dword v{V_ONE}, v{V_KV}, s[{SH}:{SH+3}], s7 offen sc1"); vm.iss("fl")
                p.I("s_mov_b64 exec, -1")
            if j == 5 and not fx: q_loads(p, QN, 9); vm.iss("q", 3)
            if j == 7 and fx and PFK3:
                p.I("s_lshl_b32 s9, s3, 8"); p.I("s_add_u32 s9, s9, s2"); p.I(f"s_sub_u32 s9, s9, {5*256}")
                p.I("s_cmp_ge_u32 s9, 81"); p.I("s_cbranch_scc1 k2_nopf")
                p.I("s_lshl_b32 s9, s2, 13"); p.I(f"v_lshlrev_b32 v14, 7, v0")
                srd(p, 72, P_WS, 576*1152, WS_WF)
                p.I(f"buffer_load_dword v15, v14, s[72:75], s9 offen")
                p.L("k2_nopf")
        else:
            if j == 0:
                p.I(f"ds_write_b128 v{V_O16}, {vr(OP,4)} offset:{lo}")
                p.I(f"ds_write_b128 v{V_O16}, {vr(OP+4,4)} offset:{lo+1024}")
                p.I(f"ds_write_b64 v{V_O8}, {vr(OP+8,2)} offset:{lo}")
                if kind != "last":
                    p.I("s_add_u32 s69, s69, 1"); p.I("s_and_b32 s9, s69, 7"); p.I("s_mul_i32 s9, s9, 144"); p.I("s_add_u32 s9, s9, s8")
                    q_loads(p, QN, 9); vm.iss("q", 3)
            if j == 1:
                p.I("s_waitcnt lgkmcnt(0)")
                p.I("s_mov_b64 exec, 1")
                p.I(f"ds_write_b32 v{V_O8}, v{V_ONE} offset:{lo+512}")
                p.I("s_mov_b64 exec, -1")
            if rho == 1 and j == 2 and "S" not in XP:
                srd(p, SXA, P_AX, 2048*1152); srd(p, SDK, P_DSK, 1152)
                p.I("s_and_b32 s9, s2, 3"); p.I("s_lshl_b32 s9, s9, 2"); p.I("s_and_b32 s10, s3, 3"); p.I("s_add_u32 s9, s9, s10")
                p.I("s_lshl_b32 s9, s9, 6"); p.I("s_lshr_b32 s10, s3, 2"); p.I("s_lshl_b32 s10, s10, 5"); p.I("s_add_u32 s68, s9, s10")
                p.I("s_lshr_b32 s10, s2, 2"); p.I(f"s_mul_i32 s10, s10, {32*1152}"); p.I("s_add_u32 s10, s10, s68")
                p.I("v_lshrrev_b32 v14, 5, v0"); p.I("v_lshlrev_b32 v14, 3, v14")
                p.I("v_and_b32 v15, 31, v0"); p.I("v_mul_u32_u24 v15, 1152, v15"); p.I("v_add_u32 v15, v15, v14")
                for g in range(2):
                    p.I(f"buffer_load_dwordx2 {vr(XD+2*g,2)}, v15, s[{SXA}:{SXA+3}], s10 offen offset:{16*g}")
                    p.I(f"buffer_load_dwordx2 {vr(XD+4+2*g,2)}, v14, s[{SDK}:{SDK+3}], s68 offen offset:{16*g}")
                vm.iss("xd", 4)
            if rho == 2 and "S" not in XP:
                if j == PJ:
                    vm.wait(p, "xd")
                    p.I(f"buffer_load_dword v{V_T}, v{V_FL}, s[{SH}:{SH+3}], 0 offen sc1")
                    for i in range(4):
                        p.I(f"v_and_b32 v14, 0xffff, v{XD+4+i}"); p.I(f"v_and_b32 v15, 0xffff0000, v{XD+4+i}")
                        p.I(f"v_dot2_f32_bf16 v{ACC+2*i}, v{XD+i}, v14, 0")
                        p.I(f"v_dot2_f32_bf16 v{ACC+2*i+1}, v{XD+i}, v15, 0")
                    for r in range(8, 16): p.I(f"v_mov_b32 v{ACC+r}, 0")
                    p.I("s_mov_b32 s70, 0")
                if j == PJ + 2:
                    p.I("s_mov_b32 s71, 0")
                    p.L("k2_fpoll")
                    p.I("s_waitcnt vmcnt(0)"); vm.q = []
                    p.I(f"v_cmp_ne_u32 vcc, 1, v{V_T}")
                    p.I("s_cbranch_vccz k2_fok")
                    p.I("s_add_u32 s71, s71, 1"); p.I("s_cmp_gt_u32 s71, 0x40000"); p.I("s_cbranch_scc1 k2_fok")
                    p.I("s_sleep 4")
                    p.I(f"buffer_load_dword v{V_T}, v{V_FL}, s[{SH}:{SH+3}], 0 offen sc1")
                    p.I("s_branch k2_fpoll")
                    p.L("k2_fok")
                    for m in range(4): ss_load(p, vm, m)
            if rho == 7 and "S" not in XP:
                if j == 1:
                    srd(p, SOUT, P_OUT, 2048*4608)
                    p.I("s_mov_b32 s9, s68")
                    p.I(f"v_lshrrev_b32 v{V_HF}, 5, v0"); p.I(f"v_lshlrev_b32 v{V_HF}, 3, v{V_HF}")
                    p.I(f"v_and_b32 v{V_CF}, 31, v0"); p.I(f"v_mul_u32_u24 v{V_CF}, 4608, v{V_CF}"); p.I(f"v_lshl_add_u32 v{V_CF}, v{V_HF}, 1, v{V_CF}")
                    p.I("s_lshr_b32 s10, s2, 2"); p.I(f"s_mul_i32 s10, s10, {32*4608}"); p.I("s_lshl_b32 s9, s9, 1"); p.I("s_add_u32 s70, s10, s9")
                    p.I("s_lshl_b32 s9, s3, 11"); p.I(f"s_add_u32 s9, s9, {EXB}")
                    p.I(f"v_add_u32 v{V_HF}, s9, v{V_KV}")
                    p.I("s_lshl_b32 s9, s3, 2"); p.I(f"v_mov_b32 v{V_FL}, s9")
                if j == 4:
                    p.I(f"ds_write_b128 v{V_HF}, {vr(ACC+8,4)}"); p.I(f"ds_write_b128 v{V_HF}, {vr(ACC+12,4)} offset:1024")
                    p.I(f"v_xor_b32 v{V_T}, 16, v{V_FL}")
                    p.I("s_lshl_b32 s9, s3, 11"); p.I("s_xor_b32 s9, s9, 8192"); p.I(f"s_add_u32 s9, s9, {EXB}")
                    p.I(f"v_add_u32 v{V_HF}, s9, v{V_KV}")
                if j == 7: p.I(f"ds_read_b32 v{V_FL}, v{V_T}")
            if j == 4:
                p.I(f"ds_read_b32 v{V_F}, v{V_I8} offset:{lo+512}")
            if j == 5:
                p.L(f"k2_poll{tg}")
                p.I("s_waitcnt lgkmcnt(0)")
                p.I(f"v_readfirstlane_b32 s9, v{V_F}")
                p.I("s_cmp_lg_u32 s9, 0")
                p.I(f"s_cbranch_scc1 k2_ok{tg}")
                p.I("s_sleep 2")
                p.I(f"ds_read_b32 v{V_F}, v{V_I8} offset:{lo+512}")
                p.I(f"s_branch k2_poll{tg}")
                p.L(f"k2_ok{tg}")
                if rho == 7 and "S" not in XP: p.I(f"ds_write_b32 v{V_FL}, v{V_ONE}")
                p.I(f"ds_read_b128 {vr(OP,4)}, v{V_I16} offset:{lo}")
                p.I(f"ds_read_b128 {vr(OP+4,4)}, v{V_I16} offset:{lo+1024}")
                p.I(f"ds_read_b64 {vr(OP+8,2)}, v{V_I8} offset:{lo}")
            if j == 6 and par == 0:
                for r in (V_O16, V_O8): p.I(f"v_add_u32 v{r}, {2*SLOT}, v{r}")
                if rho > 2: p.I("s_cmp_eq_u32 s4, 1"); p.I("s_cselect_b32 s9, s12, 0"); p.I(f"s_add_u32 s9, s9, {2*SLOT}")
                for r in (V_I16, V_I8): p.I(f"v_add_u32 v{r}, {'s9' if rho > 2 else 2*SLOT}, v{r}")
        for r in range(10, 12 if ss else 14): p.I(ex(A+r))
        if kind == "first": vm.wait(p, ("v", j))
        if kind != "first" and j == 7: p.I("s_waitcnt lgkmcnt(0)")
        p.I(pv(j, 0, A, OC))
        for r in range(12 if ss else 14, 16): p.I(ex(A+r))
        if ss:
            vm.wait(p, ("ss", n))
            p.I(mfma(ACC, RG + 8*(n & 3), RG + 8*(n & 3) + 4, ACC))
        for k in range(4, 8): p.I(cv(A, k))
        if ss and n + 4 < 36: ss_load(p, vm, n + 4)

PFK3 = 0
WR = 16
TE = int(os.environ.get('TE', '0'))
def w_loads(p, tag):
    p.I("s_cmp_ge_u32 s8, 192"); p.I(f"s_cbranch_scc1 {tag}")
    p.I("s_cmp_ge_u32 s3, 4"); p.I(f"s_cbranch_scc1 {tag}")
    srd(p, 96, P_WS, 18*36*1024, WS_WF)
    p.I("s_lshl_b32 s92, s3, 7"); p.I(f"v_xor_b32 v{V_F}, s92, v{V_KV}")
    p.I("s_lshr_b32 s92, s8, 5"); p.I(f"s_mul_i32 s92, s92, {3*36864}"); p.I(f"s_mul_i32 s93, s3, {9*1024}"); p.I("s_add_u32 s92, s92, s93")
    p.I("s_add_u32 s93, s92, 36864"); p.I("s_add_u32 s94, s93, 36864")
    for i in range(9):
        if i and i % 4 == 0:
            for r in (92, 93, 94): p.I(f"s_add_u32 s{r}, s{r}, 4096")
        for k in range(3):
            p.I(f"buffer_load_dwordx4 {vr(WR+12*i+4*k,4)}, v{V_F}, s[96:99], s{92+k} offen offset:{(i%4)*1024}")
    p.L(tag)

def gpoll(p, tag, va, ok=None):
    p.I("s_mov_b32 s71, 0x20000"); p.I("s_mov_b32 s61, 0")
    p.L(f"{tag}_p")
    p.I(f"buffer_load_dword v10, v{va}, s[68:71], 0 offen sc1")
    p.I("s_waitcnt vmcnt(0)")
    p.I("v_cmp_ne_u32 vcc, 1, v10")
    p.I(f"s_cbranch_vccz {ok or tag + '_ok'}")
    p.I("s_add_u32 s61, s61, 1"); p.I("s_cmp_gt_u32 s61, 0x40000"); p.I(f"s_cbranch_scc1 {ok or tag + '_ok'}")
    p.I(f"s_sleep {os.environ.get('PSL', '12')}")
    p.I(f"s_branch {tag}_p")
    if not ok: p.L(f"{tag}_ok")

def o_flag(p, nyounger):
    srd(p, 68, P_WS, 16384, WS_FL)
    p.I("s_lshl_b32 s60, s2, 3"); p.I("s_add_u32 s60, s60, s3"); p.I("s_lshl_b32 s60, s60, 2"); p.I("s_add_u32 s60, s60, 8192")
    p.I("v_mov_b32 v10, 1")
    p.I(f"s_waitcnt vmcnt({nyounger})")
    p.I("s_mov_b64 exec, 1")
    p.I("buffer_store_dword v10, v2, s[68:71], s60 offen sc1")
    p.I("s_mov_b64 exec, -1")

def tail(p):
    if TS == 1: ts(p, 6)
    if TE: ts(p, 7, True)
    p.I("s_and_b32 s6, s3, 3")
    p.I("v_lshlrev_b32 v2, 4, v0")
    p.I("s_cmp_ge_u32 s8, 192")
    p.I("s_cbranch_scc1 k3_ssm")
    ACC, FO = 160, 124
    o_flag(p, 0)
    p.I("s_cmp_eq_u32 s100, 0"); p.I("s_cbranch_scc1 k3_wok")
    w_loads(p, "k3_w2")
    p.L("k3_wok")
    p.I("s_and_b32 s4, s8, 31"); p.I("s_lshl_b32 s7, s4, 8"); p.I("s_add_u32 s7, s7, 8192")
    p.I("s_lshl_b32 s4, s4, 1"); p.I("s_lshr_b32 s5, s3, 2"); p.I("s_add_u32 s4, s4, s5")
    p.I("s_lshr_b32 s5, s8, 5")
    p.I(f"s_mul_i32 s60, s6, {9*1024}")
    p.I("s_mul_i32 s54, s4, 36864"); p.I("s_add_u32 s54, s54, s60")
    srd(p, 64, P_WS, 2048*1152, WS_O)
    srd(p, 72, P_OUT, 2048*4608)
    p.I("v_and_b32 v12, 31, v0"); p.I("v_mul_u32_u24 v12, 4608, v12"); p.I("v_lshrrev_b32 v13, 5, v0"); p.I("v_lshl_add_u32 v12, v13, 4, v12")
    p.I(f"s_mul_i32 s58, s4, {32*4608}"); p.I("s_mul_i32 s59, s5, 384"); p.I("s_add_u32 s58, s58, s59")
    p.I("s_lshl_b32 s59, s6, 5"); p.I("s_add_u32 s58, s58, s59"); p.I("s_add_u32 s58, s58, 2304")
    p.I("s_lshl_b32 s60, s3, 14"); p.I("v_add_u32 v4, s60, v2")
    for g in range(1, 4): p.I(f"v_xor_b32 v{4+g}, {g << 14}, v4")
    p.I("v_lshl_add_u32 v11, v0, 2, s7")
    p.I(f"s_mul_i32 s60, s6, {27*1024}"); p.I("v_add_u32 v8, s60, v2")
    if TS == 1: ts(p, 1)
    p.I("s_barrier")
    if TS == 1: ts(p, 2)
    p.I("s_cmp_ge_u32 s3, 4"); p.I("s_cbranch_scc1 k3_wrd")
    p.I("s_waitcnt vmcnt(0)")
    for n in range(27): p.I(f"ds_write_b128 v8, {vr(WR+4*n,4)} offset:{1024*n}")
    p.I("s_waitcnt lgkmcnt(0)")
    p.I("s_barrier")
    p.I("s_cmp_lg_u32 s3, 0"); p.I("s_cbranch_scc1 k3_o_ok")
    gpoll(p, "k3_o", 11, "k3_o_ok")
    p.L("k3_wrd")
    p.I("s_barrier")
    for n in range(27): p.I(f"ds_read_b128 {vr(WR+4*n,4)}, v8 offset:{1024*n}")
    p.I("s_waitcnt lgkmcnt(0)")
    p.L("k3_o_ok")
    p.I("s_barrier")
    if TS == 1: ts(p, 7)
    for i in range(9):
        if i and i % 4 == 0: p.I("s_add_u32 s54, s54, 4096")
        p.I(f"buffer_load_dwordx4 {vr(FO+4*i,4)}, v2, s[64:67], s54 offen offset:{(i%4)*1024} sc1")
    for i in range(9):
        p.I(f"s_waitcnt vmcnt({8-i})")
        for nt in range(3): p.I(mfma(ACC+16*nt, WR+12*i+4*nt, FO+4*i, ACC+16*nt if i else None))
    for nt in range(3):
        for g in range(1, 4): p.I(f"ds_write_b128 v{4+g}, {vr(ACC+16*nt+4*g,4)} offset:{((g-1)*3+nt)*1024}")
    p.I("s_waitcnt lgkmcnt(0)")
    if TS == 1: ts(p, 3)
    p.I("s_barrier")
    for nt in range(3):
        for g in range(3): p.I(f"ds_read_b128 {vr(WR+12*nt+4*g,4)}, v4 offset:{(g*3+nt)*1024}")
    for nt in range(3):
        for g in range(3):
            p.I(f"s_waitcnt lgkmcnt({8-3*nt-g})")
            for k in range(2): p.I(f"v_pk_add_f32 {vr(ACC+16*nt+2*k,2)}, {vr(ACC+16*nt+2*k,2)}, {vr(WR+12*nt+4*g+2*k,2)}")
        p.I(f"buffer_store_dwordx4 {vr(ACC+16*nt,4)}, v12, s[72:75], s58 offen offset:{128*nt}")
    if TS != 1 and not TE: ts(p, 7, True)
    elif TS == 1: p.I("s_waitcnt vmcnt(0)"); ts(p, 4)
    ts_flush(p, "k2o")
    p.I("s_endpgm")
    p.L("k3_ssm")
    ACC, FR = 16, 48
    p.I("s_sub_u32 s4, s8, 192")
    p.I(f"s_mul_i32 s54, s3, {9*1024}")
    p.I(f"s_mul_i32 s55, s4, {72*1024}"); p.I("s_add_u32 s55, s55, s54"); p.I(f"s_add_u32 s55, s55, {WS_H2-WS_CF}")
    p.I(f"s_add_u32 s54, s54, {16*72*1024}")
    p.I(f"s_add_u32 s56, s54, {72*1024}")
    p.I("s_lshl_b32 s7, s4, 7"); p.I("v_min_u32 v11, 17, v0"); p.I("v_lshl_add_u32 v11, v11, 2, s7")
    srd(p, 68, P_WS, 16384, WS_FL)
    gpoll(p, "k3_h", 11)
    o_flag(p, 0)
    p.I("s_barrier")
    srd(p, 64, P_WS, WS_FL-WS_CF, WS_CF)
    for i in range(9):
        if i and i % 4 == 0:
            for r in (54, 55, 56): p.I(f"s_add_u32 s{r}, s{r}, 4096")
        for k, r in enumerate((55, 54, 56)):
            p.I(f"buffer_load_dwordx4 {vr(FR+12*i+4*k,4)}, v2, s[64:67], s{r} offen offset:{(i%4)*1024}" + (" sc1" if k == 0 else ""))
    p.I("v_lshrrev_b32 v13, 5, v0"); p.I("v_lshlrev_b32 v13, 3, v13")
    p.I("v_and_b32 v12, 31, v0"); p.I("v_mul_u32_u24 v14, 1152, v12"); p.I("v_add_u32 v14, v14, v13")
    p.I("v_mul_u32_u24 v15, 4608, v12"); p.I("v_lshl_add_u32 v15, v13, 1, v15")
    p.I("s_lshl_b32 s57, s3, 4"); p.I("s_add_u32 s57, s57, 1024")
    p.I(f"s_mul_i32 s58, s4, {32*1152}"); p.I("s_add_u32 s58, s58, s57")
    p.I(f"s_mul_i32 s59, s4, {32*4608}"); p.I("s_lshl_b32 s60, s57, 1"); p.I("s_add_u32 s59, s59, s60")
    srd(p, 68, P_AX, 2048*1152); srd(p, 72, P_DSK, 1152); srd(p, 92, P_OUT, 2048*4608)
    p.I("buffer_load_dwordx2 v[4:5], v14, s[68:71], s58 offen")
    p.I("buffer_load_dwordx2 v[6:7], v13, s[72:75], s57 offen")
    p.I("s_lshl_b32 s60, s3, 13"); p.I("v_add_u32 v8, s60, v2")
    p.I("s_lshl_b32 s60, s3, 10"); p.I("v_add_u32 v9, s60, v2")
    for i in range(9):
        p.I(f"s_waitcnt vmcnt({2 + 3*(8-i)})")
        f = FR + 12*i
        p.I(mfma(ACC, f+4, f, ACC if i else None)); p.I(mfma(ACC+16, f+8, f, ACC+16 if i else None))
    for i in range(8): p.I(f"ds_write_b128 v8, {vr(ACC+4*i,4)} offset:{1024*i}")
    p.I("s_waitcnt lgkmcnt(0)")
    p.I("s_barrier")
    for i in range(8): p.I(f"ds_read_b128 {vr(FR+4*i,4)}, v9 offset:{8192*i}")
    p.I("s_waitcnt vmcnt(0)")
    for i in range(2):
        p.I(f"v_and_b32 v10, 0xffff, v{6+i}"); p.I(f"v_and_b32 v11, 0xffff0000, v{6+i}")
        p.I(f"v_dot2_f32_bf16 v{ACC+2*i}, v{4+i}, v10, 0"); p.I(f"v_dot2_f32_bf16 v{ACC+2*i+1}, v{4+i}, v11, 0")
    for i in range(8):
        p.I(f"s_waitcnt lgkmcnt({7-i})")
        for k in range(2): p.I(f"v_pk_add_f32 {vr(ACC+2*k,2)}, {vr(ACC+2*k,2)}, {vr(FR+4*i+2*k,2)}")
    p.I(f"buffer_store_dwordx4 {vr(ACC,4)}, v15, s[92:95], s59 offen")
    if TS != 1 and not TE: ts(p, 7, True)
    ts_flush(p, "k2s")

def gen_k2(name):
    p = Prog()
    p.L(name)
    p.I("s_cmp_ge_u32 s2, 256")
    p.I(f"s_cbranch_scc1 {name}_end")
    load_ptrs(p)
    ts(p, 0)
    if TS != 1: ts(p, 6, True)
    p.I("v_lshrrev_b32 v1, 6, v0")
    p.I("v_and_b32 v0, 63, v0")
    p.I("v_readfirstlane_b32 s3, v1")
    p.I("v_and_b32 v14, 31, v0")
    p.I("v_lshrrev_b32 v15, 5, v0")
    p.I(f"v_lshrrev_b32 v{V_Q0}, 2, v14")
    p.I(f"v_mul_u32_u24 v{V_Q0}, 1152, v{V_Q0}")
    p.I("v_and_b32 v1, 3, v0")
    p.I(f"v_mad_u32_u24 v{V_Q0}, v1, 36, v{V_Q0}")
    p.I(f"v_lshlrev_b32 v1, 28, v15")
    p.I(f"v_add3_u32 v{V_QA}, v{V_Q0}, v1, 32")
    p.I(f"v_xor_b32 v{V_QB}, 0x10000000, v{V_QA}")
    p.I(f"v_lshl_add_u32 v{V_Q0}, v15, 4, v{V_Q0}")
    p.I(f"v_lshlrev_b32 v{V_KV}, 4, v0")
    p.I("v_cmp_lt_u32 vcc, 20, v14")
    p.I(f"v_mov_b32 v1, 0x10000000")
    p.I(f"v_cndmask_b32 v{V_VA}, v{V_KV}, v1, vcc")
    p.I(f"v_mov_b32 v{V_H}, 0")
    p.I("s_and_b32 s7, s2, 3"); p.I("s_mul_i32 s5, s7, 9"); p.I("s_add_u32 s5, s5, 1"); p.I("s_lshr_b32 s5, s5, 1")
    p.I("s_and_b32 s7, s7, 1"); p.I("s_lshl_b32 s7, s7, 5"); p.I("s_add_u32 s7, s7, 8")
    p.I("s_cmp_eq_u32 s3, 0"); p.I("s_cselect_b32 s7, s7, s3")
    p.I("s_add_u32 s5, s5, s7"); p.I("s_sub_u32 s5, s5, 4")
    p.I("s_cmp_lt_u32 s7, 4"); p.I("s_cselect_b32 s5, 99, s5")
    p.I("s_lshr_b32 s7, s3, 2"); p.I(f"s_mul_i32 s9, s7, {36*1024}")
    p.I("s_lshr_b32 s10, s2, 2"); p.I(f"s_mul_i32 s11, s10, {72*1024}"); p.I("s_add_u32 s11, s11, s9"); p.I(f"s_add_u32 s11, s11, {WS_H2-WS_H}")
    p.I(f"v_add_u32 v{V_HF}, s11, v{V_KV}")
    p.I("s_lshl_b32 s10, s10, 7"); p.I(f"s_add_u32 s10, s10, {WS_FL-WS_H}")
    p.I(f"v_min_u32 v{V_FL}, 17, v0"); p.I(f"v_lshl_add_u32 v{V_FL}, v{V_FL}, 2, s10")
    p.I("s_and_b32 s10, s2, 3"); p.I("s_lshl_b32 s10, s10, 2"); p.I("s_and_b32 s11, s3, 3"); p.I("s_add_u32 s10, s10, s11")
    p.I(f"s_mul_i32 s10, s10, {72*1024}"); p.I("s_add_u32 s10, s10, s9"); p.I(f"s_add_u32 s10, s10, {WS_CF-WS_H}")
    p.I("s_lshl_b32 s7, s7, 8"); p.I(f"v_xor_b32 v{V_CF}, s7, v{V_KV}"); p.I(f"v_add_u32 v{V_CF}, s10, v{V_CF}")
    p.I(f"s_mul_i32 s8, s2, {8*1152}")
    kv_bases(p, 3)
    p.I(f"s_mul_i32 s9, s3, {7*SLOT}"); p.I(f"s_add_u32 s9, s9, {SLOT}")
    p.I(f"v_add_u32 v{V_O16}, s9, v{V_KV}")
    p.I(f"v_lshlrev_b32 v1, 3, v0")
    p.I("s_add_u32 s9, s9, 2048")
    p.I(f"v_add_u32 v{V_O8}, s9, v1")
    p.I("s_add_u32 s10, s3, 2"); p.I("s_and_b32 s10, s10, 7"); p.I(f"s_mul_i32 s10, s10, {7*SLOT}")
    p.I("s_add_u32 s12, s3, 1"); p.I("s_and_b32 s12, s12, 7"); p.I(f"s_mul_i32 s12, s12, {7*SLOT}")
    p.I("s_sub_u32 s12, s12, s10")
    p.I(f"s_add_u32 s10, s10, {SLOT}")
    p.I(f"v_add_u32 v{V_I16}, s10, v{V_KV}")
    p.I("s_add_u32 s10, s10, 2048")
    p.I(f"v_add_u32 v{V_I8}, s10, v1")
    p.I(f"v_mul_u32_u24 v1, {SLOT}, v0")
    p.I(f"v_add_u32 v1, s9, v1")
    p.I(f"v_mov_b32 v{V_ONE}, 0")
    p.I("s_mov_b64 exec, 0x7f")
    p.I(f"ds_write_b32 v1, v{V_ONE} offset:512")
    p.I("s_lshl_b32 s9, s3, 2"); p.I("v_mov_b32 v1, s9")
    p.I(f"ds_write_b32 v1, v{V_ONE}")
    p.I("s_mov_b64 exec, -1")
    p.I(f"v_mov_b32 v{V_ONE}, 1")
    p.I("s_waitcnt lgkmcnt(0)")
    p.I("s_barrier")
    srd(p, SQ, P_WS, 2048*1152, WS_Q); srd(p, SKV, P_WS, WS_H-WS_K0, WS_K0); srd(p, SH, P_WS, WS_END-WS_H, WS_H); srd(p, SO, P_WS, 2048*1152, WS_O)
    if TS == 2: ts(p, 1)
    p.I("s_cmp_ge_u32 s5, 18"); p.I("s_cbranch_scc1 k2_nofx1")
    if PRI: p.I("s_setprio 3")
    fixup_loads(p)
    p.L("k2_nofx1")
    ld_kx(p)
    p.I("s_mul_i32 s9, s3, 144"); p.I("s_add_u32 s9, s9, s8")
    q_loads(p, QB0, 9)
    ld_k0(p, 0); ld_k0(p, 1); ld_v(p, 0); ld_k0(p, 2); ld_v(p, 1)
    NKV = 12
    if TS == 2: ts(p, 2)
    for qb in (QB0, QB1):
        for z in (5, 7): p.I(f"v_mov_b32 v{qb+z}, 0")
    for r in range(32): p.I(f"v_mov_b32 v{O0+r}, 0")
    p.I("s_mov_b32 s4, 0")
    p.I("s_add_u32 s69, s3, 1")
    vm = VM()
    p.I("s_cmp_ge_u32 s5, 18"); p.I("s_cbranch_scc1 k2_nofx2")
    fixup_compute(p, NKV)
    p.I("s_and_b32 s9, s69, 7"); p.I("s_mul_i32 s9, s9, 144"); p.I("s_add_u32 s9, s9, s8")
    ts(p, 1 if TS == 1 else 3)
    p.I(f"s_waitcnt vmcnt({NKV-6+20+4})")
    p.I(x8(0, S0, QB0)); p.I(x16(0, S0, QB0))
    pre = [("k", 1), ("v", 0), ("v", 0), ("k", 2), ("v", 1), ("v", 1)]
    vm.q = list(pre)
    for j in range(3, 8):
        if j == 3+FXB: vm.iss("st", 4)
        vm.q += [("k", j), ("v", j-1), ("v", j-1)]
    vm.q += [("v", 7)]*2 + ["q"]*3
    emit_round(p, 0, vm, fx=True)
    if PRI: p.I("s_setprio 0")
    p.I("s_branch k2_r1")
    p.L("k2_nofx2")
    ts(p, 1 if TS == 1 else 3)
    p.I("s_and_b32 s9, s69, 7"); p.I("s_mul_i32 s9, s9, 144"); p.I("s_add_u32 s9, s9, s8")
    p.I(f"s_waitcnt vmcnt({NKV-6})")
    p.I(x8(0, S0, QB0)); p.I(x16(0, S0, QB0))
    vm.q = list(pre)
    emit_round(p, 0, vm)
    vm.q = []
    p.L("k2_r1")
    if TS: ts(p, 2 if TS == 1 else 5)
    emit_round(p, 1, vm)
    if TS == 1: ts(p, 3)
    emit_round(p, 2, vm)
    if TS == 1: ts(p, 4)
    p.L("k2_loop")
    l0 = len(p.lines)
    emit_round(p, 3, vm); emit_round(p, 4, vm)
    p2 = Prog(); emit_round(p2, 5, vm, tg="r3"); emit_round(p2, 6, vm, tg="r4")
    assert p2.lines == p.lines[l0:], "loop body not steady"
    p.I("s_add_u32 s4, s4, 1")
    p.I("s_cmp_lt_u32 s4, 2")
    p.I("s_cbranch_scc1 k2_loop")
    if TS == 1: ts(p, 5)
    emit_round(p, 7, vm)
    p.I(pv(7, 1, S1, O1))
    p.I("s_add_u32 s8, s2, 192"); p.I("s_and_b32 s8, s8, 255"); p.I("s_mov_b32 s100, 0")
    w_loads(p, "k3_w1")
    if "S" not in XP:
        p.L("k2_xpoll")
        p.I("s_waitcnt lgkmcnt(0)")
        p.I(f"v_readfirstlane_b32 s9, v{V_FL}")
        p.I("s_cmp_lg_u32 s9, 0"); p.I("s_cbranch_scc1 k2_xok")
        p.I("s_sleep 2")
        p.I(f"ds_read_b32 v{V_FL}, v{V_T}")
        p.I("s_branch k2_xpoll")
        p.L("k2_xok")
        p.I(f"ds_read_b128 {vr(RG+8,4)}, v{V_HF}"); p.I(f"ds_read_b128 {vr(RG+12,4)}, v{V_HF} offset:1024")
    p.I("s_add_u32 s10, s3, 7"); p.I("s_and_b32 s10, s10, 7")
    p.I("s_lshr_b32 s9, s2, 2"); p.I("s_mul_i32 s9, s9, 36864"); p.I("s_and_b32 s11, s2, 3"); p.I("s_lshl_b32 s11, s11, 7"); p.I("s_add_u32 s9, s9, s11")
    p.I("s_lshl_b32 s11, s10, 9"); p.I("s_add_u32 s11, s11, s9"); p.I("s_add_u32 s11, s11, 32768")
    p.I("s_lshl_b32 s10, s10, 12"); p.I("s_add_u32 s9, s9, s10")
    p.I(f"v_bfe_u32 v{V_Q0}, v0, 2, 3"); p.I(f"v_lshlrev_b32 v{V_Q0}, 4, v{V_Q0}")
    p.I("v_and_b32 v1, 3, v0"); p.I(f"v_lshrrev_b32 v{V_QB}, 5, v0")
    p.I(f"v_lshl_add_u32 v{V_QA}, v1, 2, v{V_Q0}"); p.I(f"v_lshl_add_u32 v{V_QA}, v{V_QB}, 28, v{V_QA}")
    p.I(f"v_lshl_add_u32 v{V_Q0}, v1, 10, v{V_Q0}"); p.I(f"v_lshl_add_u32 v{V_Q0}, v{V_QB}, 9, v{V_Q0}")
    for k in range(5): p.I(f"v_pk_add_f32 {vr(O1+2*k,2)}, {vr(O1+2*k,2)}, {vr(O0+2*k,2)}")
    p.I(f"v_mov_b32 v14, v{O1+8}"); p.I(f"v_mov_b32 v15, v{O1+8}")
    p.I("v_permlane32_swap_b32 v14, v15")
    LO, HI = f2u(2.0**-60), f2u(2.0**60)
    p.I(f"v_subrev_u32 v14, {LO}, v15")
    p.I(f"v_cmp_lt_u32 vcc, {HI-LO}, v14")
    if "S" not in XP:
        p.I("s_waitcnt lgkmcnt(0)")
        for i in range(4): p.I(f"v_pk_add_f32 {vr(ACC+2*i,2)}, {vr(ACC+2*i,2)}, {vr(RG+8+2*i,2)}")
        for g in range(2): p.I(f"buffer_store_dwordx4 {vr(ACC+4*g,4)}, v{V_CF}, s[{SOUT}:{SOUT+3}], s70 offen offset:{32*g}")
    p.I("s_cbranch_vccnz k2_slow")
    p.L("k2_fin")
    p.I("v_rcp_f32 v14, v15")
    p.I("s_nop 0")
    for k in range(5): p.I(f"v_pk_mul_f32 {vr(O1+2*k,2)}, {vr(O1+2*k,2)}, v[14:15] op_sel_hi:[1,0]")
    for k in range(5): p.I(f"v_cvt_pk_bf16_f32 v{O1+k}, v{O1+2*k}, v{O1+2*k+1}")
    p.I(f"buffer_store_dwordx4 {vr(O1,4)}, v{V_Q0}, s[{SO}:{SO+3}], s9 offen sc1")
    p.I(f"buffer_store_dword v{O1+4}, v{V_QA}, s[{SO}:{SO+3}], s11 offen sc1")
    tail(p)
    p.L(f"{name}_end")
    p.I("s_endpgm")
    p.L("k2_slow")
    p.I("v_mov_b32 v14, 0xff800000")
    for ps in range(2):
        p.I("s_mov_b32 s4, 0")
        p.L(f"k2_sp{ps}")
        kv_bases(p, 4)
        ld_kx(p)
        for j in range(8):
            ld_k0(p, j)
            if ps: ld_v(p, j)
        p.I("s_waitcnt vmcnt(0)")
        for j in range(8):
            p.I(x8(j, S0, QB1, S1 if ps else None)); p.I(x16(j, S0, QB1))
            if ps == 0:
                for k in range(8): p.I(f"v_max3_f32 v14, v14, v{S0+2*k}, v{S0+2*k+1}")
            else:
                for r in range(16): p.I(ex(S0+r))
                for k in range(8): p.I(cv(S0, k))
                p.I(pv(j, 0, S0, O1)); p.I(pv(j, 1, S0, O1))
        p.I("s_add_u32 s4, s4, 1"); p.I("s_cmp_lt_u32 s4, 8"); p.I(f"s_cbranch_scc1 k2_sp{ps}")
        if ps == 0:
            p.I("v_mov_b32 v15, v14")
            p.I("v_permlane32_swap_b32 v14, v15")
            p.I("v_max_f32 v14, v14, v15")
            for r in range(16):
                p.I(f"v_sub_f32 v{S1+r}, 0, v14"); p.I(f"v_mov_b32 v{O1+r}, 0")
    p.I(f"v_mov_b32 v14, v{O1+8}"); p.I(f"v_mov_b32 v15, v{O1+8}")
    p.I("v_permlane32_swap_b32 v14, v15")
    p.I("s_mov_b32 s100, 1")
    p.I("s_branch k2_fin")
    return (p, 256, EXB + 1024) if "S" in XP else (p, 256, EXB + 16384)
```

```python
from asmlib import *
import math, struct

import os
TS = int(os.environ.get("TS", "0"))
TSWG = int(os.environ.get("TSWG", "5"))
def ts(p, idx, real=False):
    if not TS: return
    if TS >= 3 and not real: return
    p.I(f"s_{'memrealtime' if real else 'memtime'} s[80:81]")
    p.I("s_waitcnt lgkmcnt(0)")
    p.I(f"s_mov_b32 s{84+idx}, s80")
def ts_flush(p, tag, n=8):
    if not TS: return
    if TS == 4:
        kidx = int(tag[1]) - 1
        p.I("s_load_dwordx2 s[80:81], s[0:1], 120")
        p.I("s_waitcnt lgkmcnt(0)")
        p.I(f"s_sub_u32 s76, s80, {kidx*512}"); p.I("s_subb_u32 s77, s81, 0"); p.I("s_and_b32 s77, s77, 0xffff"); p.I("s_mov_b32 s78, 256"); p.I("s_mov_b32 s79, 0x20000")
        p.I("s_not_b32 s82, s90")
        p.I("s_mov_b64 exec, 1")
        p.I("v_mov_b32 v1, 0"); p.I("v_mov_b32 v2, s82"); p.I("v_mov_b32 v3, s91"); p.I("v_mov_b32 v4, s90")
        p.I(f"buffer_atomic_umax v2, v1, s[76:79], 0 offen offset:{kidx*16}")
        p.I(f"buffer_atomic_umax v4, v1, s[76:79], 0 offen offset:{kidx*16+4}")
        p.I(f"buffer_atomic_umax v3, v1, s[76:79], 0 offen offset:{kidx*16+8}")
        return
    if TS == 3:
        kidx = int(tag[1]) - 1
        p.I("s_load_dwordx2 s[80:81], s[0:1], 128")
        p.I("s_waitcnt lgkmcnt(0)")
        p.I(f"s_add_u32 s76, s80, {(48<<20) + kidx*65536}"); p.I("s_addc_u32 s77, s81, 0"); p.I("s_and_b32 s77, s77, 0xffff"); p.I("s_mov_b32 s78, 65536"); p.I("s_mov_b32 s79, 0x20000")
        p.I("s_lshl_b32 s82, s2, 3"); p.I("s_add_u32 s82, s82, s3"); p.I("s_lshl_b32 s82, s82, 3")
        p.I("v_mov_b32 v1, 0"); p.I("v_mov_b32 v2, s90"); p.I("v_mov_b32 v3, s91")
        p.I("buffer_store_dwordx2 v[2:3], v1, s[76:79], s82 offen")
        return
    p.I(f"s_cmp_lg_u32 s2, {TSWG}"); p.I(f"s_cbranch_scc1 {tag}_nots")
    p.I("s_load_dwordx2 s[80:81], s[0:1], 120")
    p.I("s_waitcnt lgkmcnt(0)")
    p.I("s_mov_b32 s76, s80"); p.I("s_and_b32 s77, s81, 0xffff"); p.I("s_mov_b32 s78, 256"); p.I("s_mov_b32 s79, 0x20000")
    p.I("s_lshl_b32 s82, s3, 5")
    p.I("v_mov_b32 v1, 0")
    for i in range(n):
        p.I(f"v_mov_b32 v2, s{84+i}")
        p.I(f"buffer_store_dword v2, v1, s[76:79], s82 offen offset:{4*i}")
    p.L(f"{tag}_nots")

WS_Q   = 0
WS_O   = WS_Q + 2048*576*2
WS_K0  = WS_O + 2048*576*2
WS_KX  = WS_K0 + 65536
WS_V   = WS_KX + 16384
WS_H   = WS_V + 131072
WS_P   = WS_H + 64*4*1152*16
WS_A   = WS_P + 64*576*8
WS_PW  = WS_A + 16*576*8
WS_CF  = WS_PW + 9*576*8
WS_CF  = (WS_CF + 4095)//4096*4096
WS_H2  = WS_CF + 18*72*1024
WS_FL  = WS_H2 + 64*72*1024
WS_WF  = WS_FL + 16384
WS_END = WS_WF + 18*36*1024
WS_SIZE = 268435456
P_AX, P_LRE, P_LIM, P_BRE, P_BIM, P_CRE, P_CIM, P_LDT, P_DSK, P_BX, P_WQ, P_WK, P_WV, P_WO, P_OUT, P_DBG, P_WS = [16+2*i for i in range(17)]
def f2u(f): return struct.unpack("<I", struct.pack("<f", f))[0]
QSCALE = math.log2(math.e) / math.sqrt(18.0)

def load_ptrs(p):
    p.I("s_load_dwordx16 s[16:31], s[0:1], 0")
    p.I("s_load_dwordx16 s[32:47], s[0:1], 64")
    p.I("s_load_dwordx2 s[48:49], s[0:1], 128")

def srd(p, d, ptr, nbytes, off=0):
    if off:
        p.I(f"s_add_u32 s{d}, s{ptr}, {off}")
        p.I(f"s_addc_u32 s{d+1}, s{ptr+1}, 0")
        p.I(f"s_and_b32 s{d+1}, s{d+1}, 0xffff")
    else:
        p.I(f"s_mov_b32 s{d}, s{ptr}")
        p.I(f"s_and_b32 s{d+1}, s{ptr+1}, 0xffff")
    p.I(f"s_mov_b32 s{d+2}, {nbytes}")
    p.I(f"s_mov_b32 s{d+3}, 0x20000")

def mfma(d, a, b, c=None, kind="32x32x16"):
    na = 4 if kind in ("32x32x16", "16x16x32") else 2
    nd = 16 if kind.startswith("32x32") else 4
    cs = "0" if c is None else vr(c, nd)
    return f"v_mfma_f32_{kind}_bf16 {vr(d,nd)}, {vr(a,na)}, {vr(b,na)}, {cs}"

def cf_issue(p, tag, ldsbase):
    p.I("s_lshl_b32 s56, s7, 4"); p.I("s_add_u32 s56, s56, s4")
    p.I("s_cmp_ge_u32 s56, 54")
    p.I(f"s_cselect_b32 s72, s{P_CIM}, s{P_CRE}"); p.I(f"s_cselect_b32 s73, s{P_CIM+1}, s{P_CRE+1}")
    p.I("s_cselect_b32 s58, 36, 0"); p.I("s_cselect_b32 s59, 54, 0")
    p.I("s_and_b32 s73, s73, 0xffff"); p.I(f"s_mov_b32 s74, {576*1152}"); p.I("s_mov_b32 s75, 0x20000")
    p.I("s_sub_u32 s59, s56, s59")
    p.I("s_mul_i32 s60, s59, 43"); p.I("s_lshr_b32 s60, s60, 7")
    p.I("s_mul_i32 s61, s60, 3"); p.I("s_sub_u32 s59, s59, s61")
    p.I("s_mul_i32 s59, s59, 3"); p.I("s_add_u32 s59, s59, s6")
    p.I("s_mul_i32 s61, s60, 72"); p.I("s_add_u32 s58, s58, s61"); p.I("s_lshl_b32 s61, s59, 2"); p.I("s_add_u32 s58, s58, s61")
    p.I("s_lshl_b32 s58, s58, 10")
    p.I(f"s_mul_i32 s60, s60, {32*1152}"); p.I("s_lshl_b32 s59, s59, 7"); p.I("s_add_u32 s60, s60, s59")
    p.I("s_cmp_lt_u32 s56, 108"); p.I("s_cselect_b32 s56, 0, 1")
    p.I("s_cmp_eq_u32 s6, 3"); p.I("s_cselect_b32 s56, 1, s56")
    p.I("s_cmp_eq_u32 s56, 1"); p.I("s_cselect_b32 s60, 0x10000000, s60")
    p.I("v_lshrrev_b32 v20, 3, v0"); p.I("v_lshrrev_b32 v21, 4, v0"); p.I("v_and_b32 v22, 7, v0")
    p.I("v_xor_b32 v22, v22, v21"); p.I("v_lshlrev_b32 v22, 4, v22")
    p.I("v_mad_u32_u24 v20, v20, 1152, v22") if False else (p.I("v_mul_u32_u24 v20, 1152, v20"), p.I("v_add_u32 v20, v20, v22"))
    p.I("v_xor_b32 v21, 64, v20")
    p.I(f"s_lshl_b32 s61, s6, 12"); p.I(f"s_add_u32 s61, s61, {ldsbase}")
    for i in range(4):
        p.I(f"s_add_u32 m0, s61, {i*1024}")
        p.I(f"s_add_u32 s59, s60, {i*8*1152}")
        p.I(f"buffer_load_dwordx4 v{20 + (i & 1)}, s[72:75], s59 offen lds")

def cf_finish(p, tag):
    p.I("s_cmp_eq_u32 s56, 1"); p.I(f"s_cbranch_scc1 {tag}_cfx")
    kc_addr_setup(p, 24, 0, 22)
    p.I("v_add_u32 v24, s61, v24")
    kc_addr_finish(p, 24)
    srd(p, 72, P_WS, 18*72*1024, WS_CF)
    p.I("v_lshlrev_b32 v20, 4, v0")
    p.I("s_waitcnt vmcnt(0)")
    for s_ in range(4): p.I(kc_read(32+4*s_, 24, s_, 0))
    for s_ in range(4):
        p.I(f"s_waitcnt lgkmcnt({3-s_})")
        p.I(f"buffer_store_dwordx4 {vr(32+4*s_,4)}, v20, s[72:75], s58 offen offset:{1024*s_}")
    p.I(f"s_branch {tag}_cfy")
    p.L(f"{tag}_cfx")
    p.I("s_lshl_b32 s59, s7, 4"); p.I("s_add_u32 s59, s59, s4")
    p.I("s_cmp_ge_u32 s59, 64"); p.I(f"s_cbranch_scc1 {tag}_cfy")
    srd(p, 72, P_WS, 16384, WS_FL)
    p.I("s_lshl_b32 s59, s59, 8")
    p.I("v_lshlrev_b32 v20, 2, v0"); p.I("v_mov_b32 v21, 0")
    p.I("buffer_store_dword v21, v20, s[72:75], s59 offen")
    if int(os.environ.get("CPF", "0")):
        p.I("s_getpc_b64 s[50:51]")
        p.L(f"{tag}_pc")
        p.I(f"s_add_u32 s50, s50, k2_kernel-{tag}_pc"); p.I("s_addc_u32 s51, s51, 0")
        p.I("v_lshlrev_b32 v20, 7, v0")
        for i in range(4):
            if i: p.I("v_add_u32 v20, 8192, v20")
            p.I(f"global_load_dword v{22+i}, v20, s[50:51]")
        p.I("s_waitcnt vmcnt(0)")
    p.L(f"{tag}_cfy")

def wf_issue(p):
    srd(p, 64, P_WO, 576*1152); srd(p, 68, P_WS, 18*36*1024, WS_WF)
    p.I("s_lshl_b32 s54, s2, 2"); p.I("s_add_u32 s54, s54, s6")
    p.I("v_and_b32 v20, 31, v0"); p.I("v_lshlrev_b32 v20, 1, v20"); p.I("v_lshrrev_b32 v21, 5, v0")
    for r in range(2):
        if r: p.I("s_add_u32 s54, s54, 576")
        p.I("s_mul_i32 s55, s54, 1821"); p.I("s_lshr_b32 s55, s55, 16")
        p.I("s_mul_i32 s56, s55, 36"); p.I("s_sub_u32 s56, s54, s56")
        p.I("s_mul_i32 s58, s56, 18"); p.I("s_mul_i32 s59, s56, 144"); p.I(f"s_sub_u32 s59, s59, {144*32-16}")
        p.I("s_cmp_lt_u32 s56, 32")
        p.I("s_cselect_b32 s58, s58, s59"); p.I("s_cselect_b32 s60, 1, 9"); p.I(f"s_mul_i32 s59, s60, {8*1152}"); p.I(f"s_mul_i32 s60, s60, {2*1152}")
        p.I("s_mul_i32 s58, s58, 1152"); p.I("s_lshl_b32 s55, s55, 6"); p.I("s_add_u32 s58, s58, s55")
        p.I("s_cmp_lt_u32 s54, 648"); p.I("s_cselect_b32 s58, s58, 0x10000000")
        p.I(f"v_mad_u32_u24 v{22+r}, v21, s59, v20")
        for q in range(4):
            if q: p.I("s_add_u32 s58, s58, s60")
            for e in range(2): p.I(f"buffer_load_ushort v{32+8*r+2*q+e}, v{22+r}, s[64:67], s58 offen offset:{1152*e}")

def wf_finish(p):
    p.I("v_lshlrev_b32 v20, 4, v0")
    p.I("s_lshl_b32 s54, s54, 10")
    p.I(f"s_sub_u32 s55, s54, {576*1024}")
    for r in range(2):
        p.I(f"s_waitcnt vmcnt({8 if r == 0 else 1})")
        for q in range(4): p.I(f"v_lshl_or_b32 v{24+4*r+q}, v{33+8*r+2*q}, 16, v{32+8*r+2*q}")
        p.I(f"buffer_store_dwordx4 {vr(24+4*r,4)}, v20, s[68:71], s{55-r} offen")

def gemm_loader(p, tag, nch, nslots, slot_bytes, pieces, runs, s_wb, pre_issue=None, hook=None, rot=False, cf=None):
    P = len(pieces)
    wbs = sorted({(pc[6] if len(pc) > 6 else s_wb) for pc in pieces})
    if pre_issue: pre_issue()
    ROT = os.environ.get("ROT", "y")
    if rot and ROT != "0":
        if ROT == "x": p.I("s_and_b32 s56, s2, 7")
        elif ROT == "z":
            p.I("s_and_b32 s56, s2, 7"); p.I("s_add_u32 s56, s56, s5"); p.I("s_and_b32 s59, s4, 1"); p.I("s_lshl_b32 s59, s59, 2"); p.I("s_add_u32 s56, s56, s59")
            p.I("s_mul_i32 s59, s56, 57"); p.I("s_lshr_b32 s59, s59, 9"); p.I("s_mul_i32 s59, s59, 9"); p.I("s_sub_u32 s56, s56, s59")
        else:
            p.I("s_and_b32 s56, s2, 7"); p.I("s_lshr_b32 s59, s2, 3"); p.I("s_add_u32 s56, s56, s59"); p.I("s_and_b32 s56, s56, 7")
        for r, st in runs.items():
            p.I(f"s_mul_i32 s59, s56, {st}"); p.I(f"s_add_u32 s{r}, s{r}, s59")
        def hook():
            p.I("s_add_u32 s56, s56, 1"); p.I(f"s_cmp_lg_u32 s56, {nch}"); p.I(f"s_cbranch_scc1 {tag}_nw")
            for r, st in runs.items(): p.I(f"s_sub_u32 s{r}, s{r}, {st*nch}")
            p.L(f"{tag}_nw")
    p.I("s_mov_b32 s57, 0"); p.I("s_mov_b32 s58, 0")
    p.L(f"{tag}_lp")
    p.I(f"s_cmp_lt_u32 s57, {nslots-1}"); p.I(f"s_cbranch_scc1 {tag}_lnw")
    p.I(f"s_waitcnt vmcnt({(nslots-2)*P})")
    if TS == 1:
        p.I(f"s_cmp_lg_u32 s57, {nslots-1}"); p.I(f"s_cbranch_scc1 {tag}_lts"); ts(p, 2); p.L(f"{tag}_lts")
    p.I("s_barrier")
    p.L(f"{tag}_lnw")
    for pc in pieces:
        (sd, vo, run, sc, lo, op) = pc[:6]
        wb = pc[6] if len(pc) > 6 else s_wb
        if lo: p.I(f"s_add_u32 m0, s{wb}, {lo}")
        else: p.I(f"s_mov_b32 m0, s{wb}")
        if sc:
            p.I(f"s_add_u32 s60, s{run}, {sc}"); so = 60
        else: so = run; p.I("s_nop 0")
        p.I(f"{op} v{vo}, s[{sd}:{sd+3}], s{so} offen lds")
    for r, st in runs.items(): p.I(f"s_add_u32 s{r}, s{r}, {st}")
    p.I("s_add_u32 s57, s57, 1")
    p.I("s_add_u32 s58, s58, 1"); p.I(f"s_cmp_eq_u32 s58, {nslots}"); p.I("s_cselect_b32 s58, 0, s58")
    p.I(f"s_mov_b32 s59, {slot_bytes}")
    p.I(f"s_cselect_b32 s59, {(-(nslots-1)*slot_bytes) & 0xffffffff}, s59")
    for wb in wbs: p.I(f"s_add_u32 s{wb}, s{wb}, s59")
    if hook: hook()
    p.I(f"s_cmp_lt_u32 s57, {nch}"); p.I(f"s_cbranch_scc1 {tag}_lp")
    ts(p, 3)
    if cf == "wf": wf_issue(p)
    elif cf: cf_issue(p, tag, cf)
    for k in range(nslots-2, -1, -1):
        p.I(f"s_waitcnt vmcnt({k*P + (16 if cf == 'wf' else 4 if cf else 0)})")
        if k == 0: ts(p, 5)
        p.I("s_barrier")
    if cf == "wf": wf_finish(p)
    elif cf: cf_finish(p, tag)
    ts(p, 7, True); ts_flush(p, tag + "_ld")
    p.I("s_endpgm")

def gemm_compute(p, tag, nch, nslots, slot_bytes, reads, mfmas, aregs, extra=None):
    ts(p, 1)
    p.I("s_mov_b32 s57, 1"); p.I("s_mov_b32 s58, 0")
    p.I("s_waitcnt lgkmcnt(0)")
    p.I("s_barrier")
    ts(p, 2)
    p.ext(reads(0, 0))
    p.L(f"{tag}_cl")
    for s in range(3):
        r = reads(s+1, (s+1) & 1)
        p.ext(r)
        if s == 2:
            p.I("s_add_u32 s58, s58, 1"); p.I(f"s_cmp_eq_u32 s58, {nslots}"); p.I("s_cselect_b32 s58, 0, s58")
            p.I(f"s_mov_b32 s59, {slot_bytes}")
            p.I(f"s_cselect_b32 s59, {(-(nslots-1)*slot_bytes) & 0xffffffff}, s59")
            for a in aregs: p.I(f"v_add_u32 v{a}, s59, v{a}")
            for (a, st) in (extra or []): p.I(f"v_add_u32 v{a}, {st}, v{a}")
        p.I(f"s_waitcnt lgkmcnt({len(r)})")
        p.ext(mfmas(s, s & 1))
    p.I("s_waitcnt lgkmcnt(0)")
    p.I(f"s_cmp_eq_u32 s57, {nch}"); p.I(f"s_cbranch_scc1 {tag}_cx")
    p.I("s_add_u32 s57, s57, 1")
    p.I("s_barrier")
    p.ext(reads(0, 0))
    p.ext(mfmas(3, 1))
    p.I(f"s_branch {tag}_cl")
    p.L(f"{tag}_cx")
    p.ext(mfmas(3, 1))
    ts(p, 4)

def code_prefetch(p, nkb, vd):
    p.I("s_getpc_b64 s[50:51]")
    p.I(f"v_lshlrev_b32 v{vd}, 4, v0")
    for i in range(nkb):
        if i: p.I(f"v_add_u32 v{vd}, 8192, v{vd}")
        p.I(f"global_load_dwordx4 v[{vd+2}:{vd+5}], v{vd}, s[50:51]")

def kc_addr_setup(p, vbase, vl, vt):
    p.I(f"v_and_b32 v{vt}, 31, v{vl}")
    p.I(f"v_lshrrev_b32 v{vt+1}, 1, v{vt}")
    p.I(f"v_and_b32 v{vt+1}, 7, v{vt+1}")
    p.I(f"v_lshrrev_b32 v{vbase}, 5, v{vl}")
    p.I(f"v_xor_b32 v{vt+1}, v{vt+1}, v{vbase}")
    p.I(f"v_lshlrev_b32 v{vt+1}, 4, v{vt+1}")
    p.I(f"v_lshl_add_u32 v{vbase}, v{vt}, 7, v{vt+1}")

def kc_addr_finish(p, vbase, nwin=1):
    for s in range(1, 4): p.I(f"v_xor_b32 v{vbase+s}, {32*s}, v{vbase}")
    for w in range(1, nwin):
        for s in range(4): p.I(f"v_add_u32 v{vbase+4*w+s}, {65536*w}, v{vbase+s}")

def kc_read(dst, vbase, s, off):
    w, o = divmod(off, 65536)
    return f"ds_read_b128 {vr(dst,4)}, v{vbase+4*w+s} offset:{o}"

def kc_dma_voff(p, vd, vl, s_lw, vt, pitch, rowfn_a, wave_rows):
    p.I(f"v_lshrrev_b32 v{vt}, 3, v{vl}")
    p.I(f"v_lshrrev_b32 v{vt+1}, 4, v{vl}")
    p.I(f"s_and_b32 s61, s{s_lw}, 1")
    p.I(f"s_lshl_b32 s61, s61, 2")
    p.I(f"v_add_u32 v{vt+1}, s61, v{vt+1}")
    p.I(f"v_and_b32 v{vd}, 7, v{vl}")
    p.I(f"v_xor_b32 v{vd}, v{vd}, v{vt+1}")
    p.I(f"v_lshlrev_b32 v{vd}, 4, v{vd}")
    if rowfn_a == "scan":
        p.I(f"v_lshrrev_b32 v{vt+1}, 2, v{vt}")
        p.I(f"v_lshlrev_b32 v{vt+1}, 5, v{vt+1}")
        p.I(f"v_and_b32 v{vt}, 3, v{vt}")
        p.I(f"v_add_u32 v{vt}, v{vt}, v{vt+1}")
    p.I(f"s_mul_i32 s61, s{s_lw}, {wave_rows}")
    p.I(f"v_add_u32 v{vt}, s61, v{vt}")
    p.I(f"v_mul_u32_u24 v{vt}, {pitch}, v{vt}")
    p.I(f"v_add_u32 v{vd}, v{vd}, v{vt}")

def cmul(p, dr, di, ar, ai, br, bi, t):
    p.I(f"v_mul_f32 v{t}, v{ai}, v{bi}")
    p.I(f"v_mul_f32 v{t+1}, v{ai}, v{br}")
    p.I(f"v_fma_f32 v{t}, v{ar}, v{br}, -v{t}")
    p.I(f"v_fma_f32 v{di}, v{ar}, v{bi}, v{t+1}")
    p.I(f"v_mov_b32 v{dr}, v{t}")
```

```python
from common import *

KX, K0, VV, S0, S1, O0, O1, QB0, QB1, HX = 16, 24, 56, 120, 136, 152, 168, 184, 192, 200
SLOT = 2576
V_Q0, V_QA, V_QB, V_KV, V_VA, V_O16, V_O8, V_I16, V_I8, V_ONE, V_F, V_H = 2, 3, 4, 5, 6, 7, 8, 9, 10, 11, 12, 13
SQ, SKV, SH, SO = 52, 56, 60, 64

def pk_cfma(p, d, a, b, c, t):
    if c is None: p.I(f"v_pk_mul_f32 {vr(t,2)}, {vr(a,2)}, {vr(b,2)} op_sel_hi:[1,0]")
    else: p.I(f"v_pk_fma_f32 {vr(t,2)}, {vr(a,2)}, {vr(b,2)}, {vr(c,2)} op_sel_hi:[1,0,1]")
    p.I(f"v_pk_fma_f32 {vr(d,2)}, {vr(a,2)}, {vr(b,2)}, {vr(t,2)} op_sel:[1,1,0] op_sel_hi:[0,1,1] neg_lo:[0,1,0]")

def q_loads(p, qb, soff):
    p.I(f"buffer_load_dwordx4 {vr(qb,4)}, v{V_Q0}, s[{SQ}:{SQ+3}], s{soff} offen")
    p.I(f"buffer_load_dword v{qb+4}, v{V_QA}, s[{SQ}:{SQ+3}], s{soff} offen")
    p.I(f"buffer_load_dword v{qb+6}, v{V_QB}, s[{SQ}:{SQ+3}], s{soff} offen")

def x8(j, s, qb, c=None): return mfma(s, KX + 2*(j >> 1), qb + 4 + 2*(j & 1), c, "32x32x8")
def x16(j, s, qb): return mfma(s, K0 + 4*j, qb, s)
def pv(j, m, s, o): return mfma(o, VV + 8*j + 4*m, s + 4*m, o)
def ex(r): return f"v_exp_f32 v{r}, v{r}"
def cv(s, k): return f"v_cvt_pk_bf16_f32 v{s+k}, v{s+2*k}, v{s+2*k+1}"

XP = os.environ.get("XP", "")
def kv_bases(p, g):
    p.I(f"s_lshl_b32 s13, s{g}, 13")
    p.I(f"s_lshl_b32 s14, s{g}, 14"); p.I(f"s_add_u32 s14, s14, {WS_V-WS_K0}")
    p.I(f"s_lshl_b32 s15, s{g}, 11"); p.I(f"s_add_u32 s15, s15, {WS_KX-WS_K0}")
def ld_k0(p, j):
    p.I(f"s_add_u32 s7, s13, {(j//4)*4096}")
    p.I(f"buffer_load_dwordx4 {vr(K0+4*j,4)}, v{V_KV}, s[{SKV}:{SKV+3}], s7 offen offset:{(j%4)*1024}")
def ld_v(p, j):
    p.I(f"s_add_u32 s7, s14, {(j//2)*4096}")
    p.I(f"buffer_load_dwordx4 {vr(VV+8*j,4)}, v{V_VA}, s[{SKV}:{SKV+3}], s7 offen offset:{(j%2)*2048}")
    p.I(f"buffer_load_dwordx4 {vr(VV+8*j+4,4)}, v{V_VA}, s[{SKV}:{SKV+3}], s7 offen offset:{(j%2)*2048+1024}")
def ld_kx(p):
    p.I(f"buffer_load_dwordx4 {vr(KX,4)}, v{V_KV}, s[{SKV}:{SKV+3}], s15 offen")
    p.I(f"buffer_load_dwordx4 {vr(KX+4,4)}, v{V_KV}, s[{SKV}:{SKV+3}], s15 offen offset:1024")

def fixup_loads(p):
    p.I("s_lshr_b32 s7, s2, 2")
    p.I("s_mov_b32 s9, s5")
    p.I("s_cmp_ge_u32 s9, 9"); p.I("s_cselect_b32 s10, 1, 0")
    p.I("s_mul_i32 s11, s10, 9"); p.I("s_sub_u32 s9, s9, s11")
    p.I("s_lshl_b32 s70, s9, 12"); p.I("s_lshl_b32 s11, s10, 8"); p.I("s_add_u32 s70, s70, s11")
    p.I(f"s_mul_i32 s11, s7, {72*1024}"); p.I("s_add_u32 s70, s70, s11"); p.I(f"s_add_u32 s70, s70, {WS_H2-WS_H}")
    p.I("s_lshl_b32 s9, s9, 6")
    p.I(f"v_add_u32 v{V_H}, s9, v0")
    p.I(f"v_lshlrev_b32 v14, 3, v{V_H}")
    p.I(f"v_lshlrev_b32 v{V_H}, 4, v{V_H}")
    p.I("s_lshr_b32 s68, s7, 2")
    T = HX + 16
    def ld2(d, s): p.I(f"buffer_load_dwordx2 {vr(d,2)}, v14, s[{SH}:{SH+3}], s{s} offen")
    p.I(f"s_mov_b32 s11, {WS_PW-WS_H+8*4608}"); ld2(T+6, 11)
    for jj in range(8):
        p.I(f"s_cmp_le_u32 s68, {2*jj}"); p.I("s_cbranch_scc1 k2_fx_ld")
        p.I(f"s_mov_b32 s11, {WS_A-WS_H+jj*9216}")
        p.I(f"buffer_load_dwordx4 {vr(S0+4*jj,4)}, v{V_H}, s[{SH}:{SH+3}], s11 offen")
    p.L("k2_fx_ld")
    p.I(f"s_mov_b32 s11, {WS_PW-WS_H}"); ld2(T, 11)
    p.I("s_mul_i32 s9, s10, 4608"); p.I("s_add_u32 s11, s11, s9"); ld2(T+2, 11)
    p.I("s_and_b32 s9, s7, 3"); p.I("s_mul_i32 s9, s9, 9216"); p.I("s_add_u32 s11, s11, s9"); ld2(T+4, 11)
    p.I("s_mul_i32 s11, s7, 4608"); p.I(f"s_add_u32 s11, s11, {WS_P-WS_H}"); ld2(T+8, 11)
    p.I("s_lshl_b32 s6, s7, 1"); p.I("s_add_u32 s6, s6, s10"); p.I(f"s_mul_i32 s6, s6, {2*18432}")
    for i in range(4):
        p.I(f"s_add_u32 s11, s6, {i*9216}")
        p.I(f"buffer_load_dwordx4 {vr(HX+4*i,4)}, v{V_H}, s[{SH}:{SH+3}], s11 offen")

FXB = int(os.environ.get('FXB', '0'))
FXA = FXB + 2
PRI = int(os.environ.get('PRI', '0'))
def fixup_compute(p, nyounger):
    T = HX + 16
    PW0, PWH, PWC, L128, PP, G, X, Y, TM = T, T+2, T+4, T+6, T+8, T+10, T+12, T+14, T+16
    p.I(f"v_mov_b32 v{G}, 0"); p.I(f"v_mov_b32 v{G+1}, 0")
    p.I("s_mov_b32 s10, 0x3f80"); p.I("s_mov_b32 s11, 0x3f800000")
    p.I(f"s_waitcnt vmcnt({nyounger+8})")
    for jj in range(15):
        p.I(f"s_cmp_le_u32 s68, {jj}"); p.I("s_cbranch_scc1 k2_fx_h")
        pk_cfma(p, G, G, L128, S0+2*jj, TM)
    p.L("k2_fx_h")
    for j in range(3, 3+FXB): ld_k0(p, j); ld_v(p, j-1)
    nyounger += 3*FXB
    p.I("v_bfe_u32 v14, v0, 1, 1"); p.I("v_lshlrev_b32 v14, 10, v14")
    p.I("v_lshrrev_b32 v15, 4, v0"); p.I("v_lshlrev_b32 v15, 3, v15")
    p.I("v_bfe_u32 v1, v0, 2, 2"); p.I("v_add_u32 v15, v15, v1")
    p.I("v_lshl_add_u32 v14, v15, 4, v14")
    p.I("v_and_b32 v1, 1, v0"); p.I("v_lshl_add_u32 v14, v1, 3, v14")
    p.I(f"s_mul_i32 s7, s3, {7*SLOT}"); p.I(f"s_add_u32 s7, s7, {6*SLOT}")
    p.I("v_add_u32 v14, s7, v14")
    p.I("v_and_b32 v15, 15, v0"); p.I("v_lshlrev_b32 v15, 4, v15")
    p.I("v_bfe_u32 v1, v0, 4, 1"); p.I("v_lshl_add_u32 v15, v1, 9, v15")
    p.I("v_lshrrev_b32 v1, 5, v0"); p.I("v_lshl_add_u32 v15, v1, 10, v15")
    p.I(f"s_waitcnt vmcnt({nyounger+4})")
    pk_cfma(p, X, PP, PWH, None, X)
    pk_cfma(p, L128, PW0, PW0, None, L128)
    pk_cfma(p, X, G, PWC, X, TM)
    pk_cfma(p, Y, X, PW0, None, Y)
    p.I(f"s_waitcnt vmcnt({nyounger})")
    for k in range(8):
        q, e = divmod(k, 4)
        hr, hi = HX + 8*q + e, HX + 8*q + 4 + e
        p.I(f"v_dot2_f32_bf16 v{TM}, v{hr}, s10, v{X}")
        p.I(f"v_dot2_f32_bf16 v{TM+1}, v{hr}, s11, v{Y}")
        p.I(f"v_dot2_f32_bf16 v{TM+2}, v{hi}, s10, v{X+1}")
        p.I(f"v_dot2_f32_bf16 v{TM+3}, v{hi}, s11, v{Y+1}")
        if k < 7:
            p.I(f"v_pk_mul_f32 {vr(TM+4,2)}, {vr(X,2)}, {vr(L128,2)} op_sel_hi:[1,0]")
            p.I(f"v_pk_mul_f32 {vr(TM+6,2)}, {vr(Y,2)}, {vr(L128,2)} op_sel_hi:[1,0]")
        p.I(f"v_cvt_pk_bf16_f32 v{hr}, v{TM}, v{TM+1}")
        p.I(f"v_cvt_pk_bf16_f32 v{hi}, v{TM+2}, v{TM+3}")
        if k < 7:
            for (g, t) in ((X, TM+4), (Y, TM+6)):
                p.I(f"v_pk_fma_f32 {vr(g,2)}, {vr(g,2)}, {vr(L128,2)}, {vr(t,2)} op_sel:[1,1,0] op_sel_hi:[0,1,1] neg_lo:[0,1,0]")
        if e == 3:
            for c in range(2): p.I(f"ds_write_b128 v{V_O16}, {vr(HX+8*q+4*c,4)} offset:{(5+c)*SLOT + q*1024}")
    p.I("s_waitcnt lgkmcnt(0)")
    for c in range(2):
        for m in range(2):
            for e in range(2):
                p.I(f"ds_read_b64_tr_b16 {vr(T+8*c+4*m+2*e,2)}, v14 offset:{c*SLOT + m*512 + e*64}")
    p.I(f"s_add_u32 s71, s70, {36*1024}")
    for c in range(2):
        for m in range(2):
            p.I(f"s_waitcnt lgkmcnt({6-4*c-2*m})")
            p.I(f"buffer_store_dwordx4 {vr(T+8*c+4*m,4)}, v15, s[{SH}:{SH+3}], s{70+c} offen offset:{m*2048}" + ("" if "S" in XP else " sc1"))
    for j in range(3+FXB, 8): ld_k0(p, j); ld_v(p, j-1)
    ld_v(p, 7)
    p.I("s_and_b32 s9, s69, 7"); p.I("s_mul_i32 s9, s9, 144"); p.I("s_add_u32 s9, s9, s8")
    q_loads(p, QB1, 9)

NSL = os.environ.get("NSL", "0")
_slc = [0]
def osleep(p, j, pos, kind):
    if kind == "first": return
    n = int(NSL[j % len(NSL)])
    if pos not in {0: (), 1: (1,), 2: (0, 2), 3: (0, 1, 2), 4: (0, 1, 2, 3)}[n]: return
    _slc[0] += 1
    p.I(f"s_cbranch_vccz k2_sl{_slc[0]}"); p.I("s_sleep 1"); p.L(f"k2_sl{_slc[0]}")

ACC, RG, V_HF, V_CF, V_FL, V_T = 200, 216, 248, 249, 250, 251
EXB = 57*SLOT
SOUT, SXA, SDK = 72, 92, 96
PJ = int(os.environ.get('PJ', '3'))
XD = 240
HSC = int(os.environ.get('HSC', '1'))
class VM:
    def __init__(s): s.q = []
    def iss(s, tag, n=1): s.q += [tag]*n
    def wait(s, p, tag):
        idx = max([i for i, t in enumerate(s.q) if t == tag], default=None)
        if idx is None: return
        p.I(f"s_waitcnt vmcnt({len(s.q)-1-idx})"); s.q = s.q[idx+1:]
def ss_load(p, vm, n):
    r = RG + 8*(n & 3)
    p.I(f"buffer_load_dwordx4 {vr(r,4)}, v{V_CF}, s[{SH}:{SH+3}], s70 offen offset:{(n&3)*1024}")
    p.I(f"buffer_load_dwordx4 {vr(r+4,4)}, v{V_HF}, s[{SH}:{SH+3}], s70 offen offset:{(n&3)*1024}" + (" sc1" if HSC else ""))
    vm.iss(("ss", n), 2)
    if n & 3 == 3: p.I("s_add_u32 s70, s70, 4096")

def emit_round(p, rho, vm, fx=False, tg=None):
    par = rho & 1
    kind = "first" if rho == 0 else ("last" if rho == 7 else "mid")
    QC, QN = (QB0, QB1) if par == 0 else (QB1, QB0)
    OC, OP = (O0, O1) if par == 0 else (O1, O0)
    lo = (1 - par) * SLOT
    tg = tg or f"r{rho}"
    prog = kind == "first" and not fx
    for j in range(8):
        A, B = (S0, S1) if j % 2 == 0 else (S1, S0)
        jn, qn = (j+1, QC) if j < 7 else (0, QN)
        nxt = not (kind == "last" and j == 7)
        n = 8*(rho-3) + j
        ss = 0 <= n < 36 and "S" not in XP
        p.I(ex(A)); p.I(ex(A+1))
        if not (kind == "first" and j == 0): p.I(pv((j-1) % 8, 1, B, OC if j else OP))
        for r in range(2, 6): p.I(ex(A+r))
        if j == 7 and nxt:
            vm.wait(p, "q")
        if nxt: p.I(x8(jn, B, qn))
        p.I(ex(A+6)); p.I(ex(A+7))
        for k in range(4): p.I(cv(A, k))
        if kind == "first" and j < 7: vm.wait(p, ("k", j+1))
        if nxt: p.I(x16(jn, B, qn))
        p.I(ex(A+8)); p.I(ex(A+9))
        if kind == "first":
            if not fx and j <= 4: ld_k0(p, j+3); vm.iss(("k", j+3))
            if not fx and j <= 5: ld_v(p, j+2); vm.iss(("v", j+2), 2)
            if fx and j == FXA and "S" not in XP:
                p.I("s_lshr_b32 s7, s2, 2"); p.I("s_lshl_b32 s7, s7, 5"); p.I("s_add_u32 s7, s7, s5"); p.I("s_lshl_b32 s7, s7, 2")
                p.I(f"s_add_u32 s7, s7, {WS_FL-WS_H}")
                vm.wait(p, "st")
                p.I("s_mov_b64 exec, 1")
                p.I(f"buffer_store_dword v{V_ONE}, v{V_KV}, s[{SH}:{SH+3}], s7 offen sc1"); vm.iss("fl")
                p.I("s_mov_b64 exec, -1")
            if j == 5 and not fx: q_loads(p, QN, 9); vm.iss("q", 3)
            if j == 7 and fx and PFK3:
                p.I("s_lshl_b32 s9, s3, 8"); p.I("s_add_u32 s9, s9, s2"); p.I(f"s_sub_u32 s9, s9, {5*256}")
                p.I("s_cmp_ge_u32 s9, 81"); p.I("s_cbranch_scc1 k2_nopf")
                p.I("s_lshl_b32 s9, s2, 13"); p.I(f"v_lshlrev_b32 v14, 7, v0")
                srd(p, 72, P_WS, 576*1152, WS_WF)
                p.I(f"buffer_load_dword v15, v14, s[72:75], s9 offen")
                p.L("k2_nopf")
        else:
            if j == 0:
                p.I(f"ds_write_b128 v{V_O16}, {vr(OP,4)} offset:{lo}")
                p.I(f"ds_write_b128 v{V_O16}, {vr(OP+4,4)} offset:{lo+1024}")
                p.I(f"ds_write_b64 v{V_O8}, {vr(OP+8,2)} offset:{lo}")
                if kind != "last":
                    p.I("s_add_u32 s69, s69, 1"); p.I("s_and_b32 s9, s69, 7"); p.I("s_mul_i32 s9, s9, 144"); p.I("s_add_u32 s9, s9, s8")
                    q_loads(p, QN, 9); vm.iss("q", 3)
            if j == 1:
                p.I("s_waitcnt lgkmcnt(0)")
                p.I("s_mov_b64 exec, 1")
                p.I(f"ds_write_b32 v{V_O8}, v{V_ONE} offset:{lo+512}")
                p.I("s_mov_b64 exec, -1")
            if rho == 1 and j == 2 and "S" not in XP:
                srd(p, SXA, P_AX, 2048*1152); srd(p, SDK, P_DSK, 1152)
                p.I("s_and_b32 s9, s2, 3"); p.I("s_lshl_b32 s9, s9, 2"); p.I("s_and_b32 s10, s3, 3"); p.I("s_add_u32 s9, s9, s10")
                p.I("s_lshl_b32 s9, s9, 6"); p.I("s_lshr_b32 s10, s3, 2"); p.I("s_lshl_b32 s10, s10, 5"); p.I("s_add_u32 s68, s9, s10")
                p.I("s_lshr_b32 s10, s2, 2"); p.I(f"s_mul_i32 s10, s10, {32*1152}"); p.I("s_add_u32 s10, s10, s68")
                p.I("v_lshrrev_b32 v14, 5, v0"); p.I("v_lshlrev_b32 v14, 3, v14")
                p.I("v_and_b32 v15, 31, v0"); p.I("v_mul_u32_u24 v15, 1152, v15"); p.I("v_add_u32 v15, v15, v14")
                for g in range(2):
                    p.I(f"buffer_load_dwordx2 {vr(XD+2*g,2)}, v15, s[{SXA}:{SXA+3}], s10 offen offset:{16*g}")
                    p.I(f"buffer_load_dwordx2 {vr(XD+4+2*g,2)}, v14, s[{SDK}:{SDK+3}], s68 offen offset:{16*g}")
                vm.iss("xd", 4)
            if rho == 2 and "S" not in XP:
                if j == PJ:
                    vm.wait(p, "xd")
                    p.I(f"buffer_load_dword v{V_T}, v{V_FL}, s[{SH}:{SH+3}], 0 offen sc1")
                    for i in range(4):
                        p.I(f"v_and_b32 v14, 0xffff, v{XD+4+i}"); p.I(f"v_and_b32 v15, 0xffff0000, v{XD+4+i}")
                        p.I(f"v_dot2_f32_bf16 v{ACC+2*i}, v{XD+i}, v14, 0")
                        p.I(f"v_dot2_f32_bf16 v{ACC+2*i+1}, v{XD+i}, v15, 0")
                    for r in range(8, 16): p.I(f"v_mov_b32 v{ACC+r}, 0")
                    p.I("s_mov_b32 s70, 0")
                if j == PJ + 2:
                    p.I("s_mov_b32 s71, 0")
                    p.L("k2_fpoll")
                    p.I("s_waitcnt vmcnt(0)"); vm.q = []
                    p.I(f"v_cmp_ne_u32 vcc, 1, v{V_T}")
                    p.I("s_cbranch_vccz k2_fok")
                    p.I("s_add_u32 s71, s71, 1"); p.I("s_cmp_gt_u32 s71, 0x40000"); p.I("s_cbranch_scc1 k2_fok")
                    p.I("s_sleep 4")
                    p.I(f"buffer_load_dword v{V_T}, v{V_FL}, s[{SH}:{SH+3}], 0 offen sc1")
                    p.I("s_branch k2_fpoll")
                    p.L("k2_fok")
                    for m in range(4): ss_load(p, vm, m)
            if rho == 7 and "S" not in XP:
                if j == 1:
                    srd(p, SOUT, P_OUT, 2048*4608)
                    p.I("s_mov_b32 s9, s68")
                    p.I(f"v_lshrrev_b32 v{V_HF}, 5, v0"); p.I(f"v_lshlrev_b32 v{V_HF}, 3, v{V_HF}")
                    p.I(f"v_and_b32 v{V_CF}, 31, v0"); p.I(f"v_mul_u32_u24 v{V_CF}, 4608, v{V_CF}"); p.I(f"v_lshl_add_u32 v{V_CF}, v{V_HF}, 1, v{V_CF}")
                    p.I("s_lshr_b32 s10, s2, 2"); p.I(f"s_mul_i32 s10, s10, {32*4608}"); p.I("s_lshl_b32 s9, s9, 1"); p.I("s_add_u32 s70, s10, s9")
                    p.I("s_lshl_b32 s9, s3, 11"); p.I(f"s_add_u32 s9, s9, {EXB}")
                    p.I(f"v_add_u32 v{V_HF}, s9, v{V_KV}")
                    p.I("s_lshl_b32 s9, s3, 2"); p.I(f"v_mov_b32 v{V_FL}, s9")
                if j == 4:
                    p.I(f"ds_write_b128 v{V_HF}, {vr(ACC+8,4)}"); p.I(f"ds_write_b128 v{V_HF}, {vr(ACC+12,4)} offset:1024")
                    p.I(f"v_xor_b32 v{V_T}, 16, v{V_FL}")
                    p.I("s_lshl_b32 s9, s3, 11"); p.I("s_xor_b32 s9, s9, 8192"); p.I(f"s_add_u32 s9, s9, {EXB}")
                    p.I(f"v_add_u32 v{V_HF}, s9, v{V_KV}")
                if j == 7: p.I(f"ds_read_b32 v{V_FL}, v{V_T}")
            if j == 4:
                p.I(f"ds_read_b32 v{V_F}, v{V_I8} offset:{lo+512}")
            if j == 5:
                p.L(f"k2_poll{tg}")
                p.I("s_waitcnt lgkmcnt(0)")
                p.I(f"v_readfirstlane_b32 s9, v{V_F}")
                p.I("s_cmp_lg_u32 s9, 0")
                p.I(f"s_cbranch_scc1 k2_ok{tg}")
                p.I("s_sleep 2")
                p.I(f"ds_read_b32 v{V_F}, v{V_I8} offset:{lo+512}")
                p.I(f"s_branch k2_poll{tg}")
                p.L(f"k2_ok{tg}")
                if rho == 7 and "S" not in XP: p.I(f"ds_write_b32 v{V_FL}, v{V_ONE}")
                p.I(f"ds_read_b128 {vr(OP,4)}, v{V_I16} offset:{lo}")
                p.I(f"ds_read_b128 {vr(OP+4,4)}, v{V_I16} offset:{lo+1024}")
                p.I(f"ds_read_b64 {vr(OP+8,2)}, v{V_I8} offset:{lo}")
            if j == 6 and par == 0:
                for r in (V_O16, V_O8): p.I(f"v_add_u32 v{r}, {2*SLOT}, v{r}")
                if rho > 2: p.I("s_cmp_eq_u32 s4, 1"); p.I("s_cselect_b32 s9, s12, 0"); p.I(f"s_add_u32 s9, s9, {2*SLOT}")
                for r in (V_I16, V_I8): p.I(f"v_add_u32 v{r}, {'s9' if rho > 2 else 2*SLOT}, v{r}")
        for r in range(10, 12 if ss else 14): p.I(ex(A+r))
        if kind == "first": vm.wait(p, ("v", j))
        if kind != "first" and j == 7: p.I("s_waitcnt lgkmcnt(0)")
        p.I(pv(j, 0, A, OC))
        for r in range(12 if ss else 14, 16): p.I(ex(A+r))
        if ss:
            vm.wait(p, ("ss", n))
            p.I(mfma(ACC, RG + 8*(n & 3), RG + 8*(n & 3) + 4, ACC))
        for k in range(4, 8): p.I(cv(A, k))
        if ss and n + 4 < 36: ss_load(p, vm, n + 4)

PFK3 = 0
WR = 16
WL = int(os.environ.get('WL', '0'))
TE = int(os.environ.get('TE', '0'))
def w_loads(p, tag):
    p.I("s_cmp_ge_u32 s8, 192"); p.I(f"s_cbranch_scc1 {tag}")
    p.I("s_cmp_ge_u32 s3, 4"); p.I(f"s_cbranch_scc1 {tag}")
    srd(p, 96, P_WS, 18*36*1024, WS_WF)
    p.I("s_lshl_b32 s92, s3, 7"); p.I(f"v_xor_b32 v{V_F}, s92, v{V_KV}")
    p.I("s_lshr_b32 s92, s8, 5"); p.I(f"s_mul_i32 s92, s92, {3*36864}"); p.I(f"s_mul_i32 s93, s3, {9*1024}"); p.I("s_add_u32 s92, s92, s93")
    p.I("s_add_u32 s93, s92, 36864"); p.I("s_add_u32 s94, s93, 36864")
    for i in range(9):
        if i and i % 4 == 0:
            for r in (92, 93, 94): p.I(f"s_add_u32 s{r}, s{r}, 4096")
        for k in range(3):
            p.I(f"buffer_load_dwordx4 {vr(WR+12*i+4*k,4)}, v{V_F}, s[96:99], s{92+k} offen offset:{(i%4)*1024}")
    p.L(tag)

def gpoll(p, tag, va, ok=None):
    p.I("s_mov_b32 s71, 0x20000"); p.I("s_mov_b32 s61, 0")
    p.L(f"{tag}_p")
    p.I(f"buffer_load_dword v10, v{va}, s[68:71], 0 offen sc1")
    p.I("s_waitcnt vmcnt(0)")
    p.I("v_cmp_ne_u32 vcc, 1, v10")
    p.I(f"s_cbranch_vccz {ok or tag + '_ok'}")
    p.I("s_add_u32 s61, s61, 1"); p.I("s_cmp_gt_u32 s61, 0x40000"); p.I(f"s_cbranch_scc1 {ok or tag + '_ok'}")
    p.I(f"s_sleep {os.environ.get('PSL', '12')}")
    p.I(f"s_branch {tag}_p")
    if not ok: p.L(f"{tag}_ok")

def o_flag(p, nyounger):
    srd(p, 68, P_WS, 16384, WS_FL)
    p.I("s_lshl_b32 s60, s2, 3"); p.I("s_add_u32 s60, s60, s3"); p.I("s_lshl_b32 s60, s60, 2"); p.I("s_add_u32 s60, s60, 8192")
    p.I("v_mov_b32 v10, 1")
    p.I(f"s_waitcnt vmcnt({nyounger})")
    p.I("s_mov_b64 exec, 1")
    p.I("buffer_store_dword v10, v2, s[68:71], s60 offen sc1")
    p.I("s_mov_b64 exec, -1")

def tail(p):
    if TS == 1: ts(p, 6)
    if TE: ts(p, 7, True)
    p.I("s_and_b32 s6, s3, 3")
    p.I("v_lshlrev_b32 v2, 4, v0")
    p.I("s_cmp_ge_u32 s8, 192")
    p.I("s_cbranch_scc1 k3_ssm")
    ACC, FO = 160, 124
    o_flag(p, 0)
    p.I("s_cmp_eq_u32 s100, 0"); p.I("s_cbranch_scc1 k3_wok")
    w_loads(p, "k3_w2")
    p.L("k3_wok")
    p.I("s_and_b32 s4, s8, 31"); p.I("s_lshl_b32 s7, s4, 8"); p.I("s_add_u32 s7, s7, 8192")
    p.I("s_lshl_b32 s4, s4, 1"); p.I("s_lshr_b32 s5, s3, 2"); p.I("s_add_u32 s4, s4, s5")
    p.I("s_lshr_b32 s5, s8, 5")
    p.I(f"s_mul_i32 s60, s6, {9*1024}")
    p.I("s_mul_i32 s54, s4, 36864"); p.I("s_add_u32 s54, s54, s60")
    srd(p, 64, P_WS, 2048*1152, WS_O)
    srd(p, 72, P_OUT, 2048*4608)
    p.I("v_and_b32 v12, 31, v0"); p.I("v_mul_u32_u24 v12, 4608, v12"); p.I("v_lshrrev_b32 v13, 5, v0"); p.I("v_lshl_add_u32 v12, v13, 4, v12")
    p.I(f"s_mul_i32 s58, s4, {32*4608}"); p.I("s_mul_i32 s59, s5, 384"); p.I("s_add_u32 s58, s58, s59")
    p.I("s_lshl_b32 s59, s6, 5"); p.I("s_add_u32 s58, s58, s59"); p.I("s_add_u32 s58, s58, 2304")
    p.I("s_lshl_b32 s60, s3, 14"); p.I("v_add_u32 v4, s60, v2")
    for g in range(1, 4): p.I(f"v_xor_b32 v{4+g}, {g << 14}, v4")
    p.I("v_lshl_add_u32 v11, v0, 2, s7")
    p.I(f"s_mul_i32 s60, s6, {27*1024}"); p.I("v_add_u32 v8, s60, v2")
    if TS == 1: ts(p, 1)
    p.I("s_barrier")
    if TS == 1: ts(p, 2)
    p.I("s_cmp_ge_u32 s3, 4"); p.I("s_cbranch_scc1 k3_wrd")
    p.I("s_waitcnt vmcnt(0)")
    for n in range(27): p.I(f"ds_write_b128 v8, {vr(WR+4*n,4)} offset:{1024*n}")
    p.I("s_waitcnt lgkmcnt(0)")
    p.I("s_barrier")
    p.I("s_cmp_lg_u32 s3, 0"); p.I("s_cbranch_scc1 k3_o_ok")
    gpoll(p, "k3_o", 11, "k3_o_ok")
    p.L("k3_wrd")
    p.I("s_barrier")
    for n in range(27): p.I(f"ds_read_b128 {vr(WR+4*n,4)}, v8 offset:{1024*n}")
    p.I("s_waitcnt lgkmcnt(0)")
    p.L("k3_o_ok")
    p.I("s_barrier")
    if TS == 1: ts(p, 7)
    for i in range(9):
        if i and i % 4 == 0: p.I("s_add_u32 s54, s54, 4096")
        p.I(f"buffer_load_dwordx4 {vr(FO+4*i,4)}, v2, s[64:67], s54 offen offset:{(i%4)*1024} sc1")
    for i in range(9):
        p.I(f"s_waitcnt vmcnt({8-i})")
        for nt in range(3): p.I(mfma(ACC+16*nt, WR+12*i+4*nt, FO+4*i, ACC+16*nt if i else None))
    for nt in range(3):
        for g in range(1, 4): p.I(f"ds_write_b128 v{4+g}, {vr(ACC+16*nt+4*g,4)} offset:{((g-1)*3+nt)*1024}")
    p.I("s_waitcnt lgkmcnt(0)")
    if TS == 1: ts(p, 3)
    p.I("s_barrier")
    for nt in range(3):
        for g in range(3): p.I(f"ds_read_b128 {vr(WR+12*nt+4*g,4)}, v4 offset:{(g*3+nt)*1024}")
    for nt in range(3):
        for g in range(3):
            p.I(f"s_waitcnt lgkmcnt({8-3*nt-g})")
            for k in range(2): p.I(f"v_pk_add_f32 {vr(ACC+16*nt+2*k,2)}, {vr(ACC+16*nt+2*k,2)}, {vr(WR+12*nt+4*g+2*k,2)}")
        p.I(f"buffer_store_dwordx4 {vr(ACC+16*nt,4)}, v12, s[72:75], s58 offen offset:{128*nt}")
    if TS != 1 and not TE: ts(p, 7, True)
    elif TS == 1: p.I("s_waitcnt vmcnt(0)"); ts(p, 4)
    ts_flush(p, "k2o")
    p.I("s_endpgm")
    p.L("k3_ssm")
    ACC, FR = 16, 48
    p.I("s_sub_u32 s4, s8, 192")
    p.I(f"s_mul_i32 s54, s3, {9*1024}")
    p.I(f"s_mul_i32 s55, s4, {72*1024}"); p.I("s_add_u32 s55, s55, s54"); p.I(f"s_add_u32 s55, s55, {WS_H2-WS_CF}")
    p.I(f"s_add_u32 s54, s54, {16*72*1024}")
    p.I(f"s_add_u32 s56, s54, {72*1024}")
    p.I("s_lshl_b32 s7, s4, 7"); p.I("v_min_u32 v11, 17, v0"); p.I("v_lshl_add_u32 v11, v11, 2, s7")
    srd(p, 68, P_WS, 16384, WS_FL)
    gpoll(p, "k3_h", 11)
    o_flag(p, 0)
    p.I("s_barrier")
    srd(p, 64, P_WS, WS_FL-WS_CF, WS_CF)
    for i in range(9):
        if i and i % 4 == 0:
            for r in (54, 55, 56): p.I(f"s_add_u32 s{r}, s{r}, 4096")
        for k, r in enumerate((55, 54, 56)):
            p.I(f"buffer_load_dwordx4 {vr(FR+12*i+4*k,4)}, v2, s[64:67], s{r} offen offset:{(i%4)*1024}" + (" sc1" if k == 0 else ""))
    p.I("v_lshrrev_b32 v13, 5, v0"); p.I("v_lshlrev_b32 v13, 3, v13")
    p.I("v_and_b32 v12, 31, v0"); p.I("v_mul_u32_u24 v14, 1152, v12"); p.I("v_add_u32 v14, v14, v13")
    p.I("v_mul_u32_u24 v15, 4608, v12"); p.I("v_lshl_add_u32 v15, v13, 1, v15")
    p.I("s_lshl_b32 s57, s3, 4"); p.I("s_add_u32 s57, s57, 1024")
    p.I(f"s_mul_i32 s58, s4, {32*1152}"); p.I("s_add_u32 s58, s58, s57")
    p.I(f"s_mul_i32 s59, s4, {32*4608}"); p.I("s_lshl_b32 s60, s57, 1"); p.I("s_add_u32 s59, s59, s60")
    srd(p, 68, P_AX, 2048*1152); srd(p, 72, P_DSK, 1152); srd(p, 92, P_OUT, 2048*4608)
    p.I("buffer_load_dwordx2 v[4:5], v14, s[68:71], s58 offen")
    p.I("buffer_load_dwordx2 v[6:7], v13, s[72:75], s57 offen")
    p.I("s_lshl_b32 s60, s3, 13"); p.I("v_add_u32 v8, s60, v2")
    p.I("s_lshl_b32 s60, s3, 10"); p.I("v_add_u32 v9, s60, v2")
    for i in range(9):
        p.I(f"s_waitcnt vmcnt({2 + 3*(8-i)})")
        f = FR + 12*i
        p.I(mfma(ACC, f+4, f, ACC if i else None)); p.I(mfma(ACC+16, f+8, f, ACC+16 if i else None))
    for i in range(8): p.I(f"ds_write_b128 v8, {vr(ACC+4*i,4)} offset:{1024*i}")
    p.I("s_waitcnt lgkmcnt(0)")
    p.I("s_barrier")
    for i in range(8): p.I(f"ds_read_b128 {vr(FR+4*i,4)}, v9 offset:{8192*i}")
    p.I("s_waitcnt vmcnt(0)")
    for i in range(2):
        p.I(f"v_and_b32 v10, 0xffff, v{6+i}"); p.I(f"v_and_b32 v11, 0xffff0000, v{6+i}")
        p.I(f"v_dot2_f32_bf16 v{ACC+2*i}, v{4+i}, v10, 0"); p.I(f"v_dot2_f32_bf16 v{ACC+2*i+1}, v{4+i}, v11, 0")
    for i in range(8):
        p.I(f"s_waitcnt lgkmcnt({7-i})")
        for k in range(2): p.I(f"v_pk_add_f32 {vr(ACC+2*k,2)}, {vr(ACC+2*k,2)}, {vr(FR+4*i+2*k,2)}")
    p.I(f"buffer_store_dwordx4 {vr(ACC,4)}, v15, s[92:95], s59 offen")
    if TS != 1 and not TE: ts(p, 7, True)
    ts_flush(p, "k2s")

def gen_k2(name):
    p = Prog()
    p.L(name)
    p.I("s_cmp_ge_u32 s2, 256")
    p.I(f"s_cbranch_scc1 {name}_end")
    load_ptrs(p)
    ts(p, 0)
    if TS != 1: ts(p, 6, True)
    p.I("v_lshrrev_b32 v1, 6, v0")
    p.I("v_and_b32 v0, 63, v0")
    p.I("v_readfirstlane_b32 s3, v1")
    p.I("v_and_b32 v14, 31, v0")
    p.I("v_lshrrev_b32 v15, 5, v0")
    p.I(f"v_lshrrev_b32 v{V_Q0}, 2, v14")
    p.I(f"v_mul_u32_u24 v{V_Q0}, 1152, v{V_Q0}")
    p.I("v_and_b32 v1, 3, v0")
    p.I(f"v_mad_u32_u24 v{V_Q0}, v1, 36, v{V_Q0}")
    p.I(f"v_lshlrev_b32 v1, 28, v15")
    p.I(f"v_add3_u32 v{V_QA}, v{V_Q0}, v1, 32")
    p.I(f"v_xor_b32 v{V_QB}, 0x10000000, v{V_QA}")
    p.I(f"v_lshl_add_u32 v{V_Q0}, v15, 4, v{V_Q0}")
    p.I(f"v_lshlrev_b32 v{V_KV}, 4, v0")
    p.I("v_cmp_lt_u32 vcc, 20, v14")
    p.I(f"v_mov_b32 v1, 0x10000000")
    p.I(f"v_cndmask_b32 v{V_VA}, v{V_KV}, v1, vcc")
    p.I(f"v_mov_b32 v{V_H}, 0")
    p.I("s_and_b32 s7, s2, 3"); p.I("s_mul_i32 s5, s7, 9"); p.I("s_add_u32 s5, s5, 1"); p.I("s_lshr_b32 s5, s5, 1")
    p.I("s_and_b32 s7, s7, 1"); p.I("s_lshl_b32 s7, s7, 5"); p.I("s_add_u32 s7, s7, 8")
    p.I("s_cmp_eq_u32 s3, 0"); p.I("s_cselect_b32 s7, s7, s3")
    p.I("s_add_u32 s5, s5, s7"); p.I("s_sub_u32 s5, s5, 4")
    p.I("s_cmp_lt_u32 s7, 4"); p.I("s_cselect_b32 s5, 99, s5")
    p.I("s_lshr_b32 s7, s3, 2"); p.I(f"s_mul_i32 s9, s7, {36*1024}")
    p.I("s_lshr_b32 s10, s2, 2"); p.I(f"s_mul_i32 s11, s10, {72*1024}"); p.I("s_add_u32 s11, s11, s9"); p.I(f"s_add_u32 s11, s11, {WS_H2-WS_H}")
    p.I(f"v_add_u32 v{V_HF}, s11, v{V_KV}")
    p.I("s_lshl_b32 s10, s10, 7"); p.I(f"s_add_u32 s10, s10, {WS_FL-WS_H}")
    p.I(f"v_min_u32 v{V_FL}, 17, v0"); p.I(f"v_lshl_add_u32 v{V_FL}, v{V_FL}, 2, s10")
    p.I("s_and_b32 s10, s2, 3"); p.I("s_lshl_b32 s10, s10, 2"); p.I("s_and_b32 s11, s3, 3"); p.I("s_add_u32 s10, s10, s11")
    p.I(f"s_mul_i32 s10, s10, {72*1024}"); p.I("s_add_u32 s10, s10, s9"); p.I(f"s_add_u32 s10, s10, {WS_CF-WS_H}")
    p.I("s_lshl_b32 s7, s7, 8"); p.I(f"v_xor_b32 v{V_CF}, s7, v{V_KV}"); p.I(f"v_add_u32 v{V_CF}, s10, v{V_CF}")
    p.I(f"s_mul_i32 s8, s2, {8*1152}")
    kv_bases(p, 3)
    p.I(f"s_mul_i32 s9, s3, {7*SLOT}"); p.I(f"s_add_u32 s9, s9, {SLOT}")
    p.I(f"v_add_u32 v{V_O16}, s9, v{V_KV}")
    p.I(f"v_lshlrev_b32 v1, 3, v0")
    p.I("s_add_u32 s9, s9, 2048")
    p.I(f"v_add_u32 v{V_O8}, s9, v1")
    p.I("s_add_u32 s10, s3, 2"); p.I("s_and_b32 s10, s10, 7"); p.I(f"s_mul_i32 s10, s10, {7*SLOT}")
    p.I("s_add_u32 s12, s3, 1"); p.I("s_and_b32 s12, s12, 7"); p.I(f"s_mul_i32 s12, s12, {7*SLOT}")
    p.I("s_sub_u32 s12, s12, s10")
    p.I(f"s_add_u32 s10, s10, {SLOT}")
    p.I(f"v_add_u32 v{V_I16}, s10, v{V_KV}")
    p.I("s_add_u32 s10, s10, 2048")
    p.I(f"v_add_u32 v{V_I8}, s10, v1")
    p.I(f"v_mul_u32_u24 v1, {SLOT}, v0")
    p.I(f"v_add_u32 v1, s9, v1")
    p.I(f"v_mov_b32 v{V_ONE}, 0")
    p.I("s_mov_b64 exec, 0x7f")
    p.I(f"ds_write_b32 v1, v{V_ONE} offset:512")
    p.I("s_lshl_b32 s9, s3, 2"); p.I("v_mov_b32 v1, s9")
    p.I(f"ds_write_b32 v1, v{V_ONE}")
    p.I("s_mov_b64 exec, -1")
    p.I(f"v_mov_b32 v{V_ONE}, 1")
    p.I("s_waitcnt lgkmcnt(0)")
    p.I("s_barrier")
    srd(p, SQ, P_WS, 2048*1152, WS_Q); srd(p, SKV, P_WS, WS_H-WS_K0, WS_K0); srd(p, SH, P_WS, WS_END-WS_H, WS_H); srd(p, SO, P_WS, 2048*1152, WS_O)
    if TS == 2: ts(p, 1)
    p.I("s_cmp_ge_u32 s5, 18"); p.I("s_cbranch_scc1 k2_nofx1")
    if PRI: p.I("s_setprio 3")
    fixup_loads(p)
    p.L("k2_nofx1")
    ld_kx(p)
    p.I("s_mul_i32 s9, s3, 144"); p.I("s_add_u32 s9, s9, s8")
    q_loads(p, QB0, 9)
    ld_k0(p, 0); ld_k0(p, 1); ld_v(p, 0); ld_k0(p, 2); ld_v(p, 1)
    NKV = 12
    if TS == 2: ts(p, 2)
    for qb in (QB0, QB1):
        for z in (5, 7): p.I(f"v_mov_b32 v{qb+z}, 0")
    for r in range(32): p.I(f"v_mov_b32 v{O0+r}, 0")
    p.I("s_mov_b32 s4, 0")
    p.I("s_add_u32 s69, s3, 1")
    vm = VM()
    p.I("s_cmp_ge_u32 s5, 18"); p.I("s_cbranch_scc1 k2_nofx2")
    fixup_compute(p, NKV)
    p.I("s_and_b32 s9, s69, 7"); p.I("s_mul_i32 s9, s9, 144"); p.I("s_add_u32 s9, s9, s8")
    ts(p, 1 if TS == 1 else 3)
    p.I(f"s_waitcnt vmcnt({NKV-6+20+4})")
    p.I(x8(0, S0, QB0)); p.I(x16(0, S0, QB0))
    pre = [("k", 1), ("v", 0), ("v", 0), ("k", 2), ("v", 1), ("v", 1)]
    vm.q = list(pre)
    for j in range(3, 8):
        if j == 3+FXB: vm.iss("st", 4)
        vm.q += [("k", j), ("v", j-1), ("v", j-1)]
    vm.q += [("v", 7)]*2 + ["q"]*3
    emit_round(p, 0, vm, fx=True)
    if PRI: p.I("s_setprio 0")
    p.I("s_branch k2_r1")
    p.L("k2_nofx2")
    ts(p, 1 if TS == 1 else 3)
    p.I("s_and_b32 s9, s69, 7"); p.I("s_mul_i32 s9, s9, 144"); p.I("s_add_u32 s9, s9, s8")
    p.I(f"s_waitcnt vmcnt({NKV-6})")
    p.I(x8(0, S0, QB0)); p.I(x16(0, S0, QB0))
    vm.q = list(pre)
    emit_round(p, 0, vm)
    vm.q = []
    p.L("k2_r1")
    if TS: ts(p, 2 if TS == 1 else 5)
    emit_round(p, 1, vm)
    if TS == 1: ts(p, 3)
    emit_round(p, 2, vm)
    if TS == 1: ts(p, 4)
    p.L("k2_loop")
    l0 = len(p.lines)
    emit_round(p, 3, vm); emit_round(p, 4, vm)
    p2 = Prog(); emit_round(p2, 5, vm, tg="r3"); emit_round(p2, 6, vm, tg="r4")
    assert p2.lines == p.lines[l0:], "loop body not steady"
    p.I("s_add_u32 s4, s4, 1")
    p.I("s_cmp_lt_u32 s4, 2")
    p.I("s_cbranch_scc1 k2_loop")
    if TS == 1: ts(p, 5)
    emit_round(p, 7, vm)
    p.I(pv(7, 1, S1, O1))
    p.I("s_add_u32 s8, s2, 192"); p.I("s_and_b32 s8, s8, 255"); p.I(f"s_mov_b32 s100, {WL}")
    if not WL: w_loads(p, "k3_w1")
    if "S" not in XP:
        p.L("k2_xpoll")
        p.I("s_waitcnt lgkmcnt(0)")
        p.I(f"v_readfirstlane_b32 s9, v{V_FL}")
        p.I("s_cmp_lg_u32 s9, 0"); p.I("s_cbranch_scc1 k2_xok")
        p.I("s_sleep 2")
        p.I(f"ds_read_b32 v{V_FL}, v{V_T}")
        p.I("s_branch k2_xpoll")
        p.L("k2_xok")
        p.I(f"ds_read_b128 {vr(RG+8,4)}, v{V_HF}"); p.I(f"ds_read_b128 {vr(RG+12,4)}, v{V_HF} offset:1024")
    p.I("s_add_u32 s10, s3, 7"); p.I("s_and_b32 s10, s10, 7")
    p.I("s_lshr_b32 s9, s2, 2"); p.I("s_mul_i32 s9, s9, 36864"); p.I("s_and_b32 s11, s2, 3"); p.I("s_lshl_b32 s11, s11, 7"); p.I("s_add_u32 s9, s9, s11")
    p.I("s_lshl_b32 s11, s10, 9"); p.I("s_add_u32 s11, s11, s9"); p.I("s_add_u32 s11, s11, 32768")
    p.I("s_lshl_b32 s10, s10, 12"); p.I("s_add_u32 s9, s9, s10")
    p.I(f"v_bfe_u32 v{V_Q0}, v0, 2, 3"); p.I(f"v_lshlrev_b32 v{V_Q0}, 4, v{V_Q0}")
    p.I("v_and_b32 v1, 3, v0"); p.I(f"v_lshrrev_b32 v{V_QB}, 5, v0")
    p.I(f"v_lshl_add_u32 v{V_QA}, v1, 2, v{V_Q0}"); p.I(f"v_lshl_add_u32 v{V_QA}, v{V_QB}, 28, v{V_QA}")
    p.I(f"v_lshl_add_u32 v{V_Q0}, v1, 10, v{V_Q0}"); p.I(f"v_lshl_add_u32 v{V_Q0}, v{V_QB}, 9, v{V_Q0}")
    for k in range(5): p.I(f"v_pk_add_f32 {vr(O1+2*k,2)}, {vr(O1+2*k,2)}, {vr(O0+2*k,2)}")
    p.I(f"v_mov_b32 v14, v{O1+8}"); p.I(f"v_mov_b32 v15, v{O1+8}")
    p.I("v_permlane32_swap_b32 v14, v15")
    LO, HI = f2u(2.0**-60), f2u(2.0**60)
    p.I(f"v_subrev_u32 v14, {LO}, v15")
    p.I(f"v_cmp_lt_u32 vcc, {HI-LO}, v14")
    if "S" not in XP:
        p.I("s_waitcnt lgkmcnt(0)")
        for i in range(4): p.I(f"v_pk_add_f32 {vr(ACC+2*i,2)}, {vr(ACC+2*i,2)}, {vr(RG+8+2*i,2)}")
        for g in range(2): p.I(f"buffer_store_dwordx4 {vr(ACC+4*g,4)}, v{V_CF}, s[{SOUT}:{SOUT+3}], s70 offen offset:{32*g}")
    p.I("s_cbranch_vccnz k2_slow")
    p.L("k2_fin")
    p.I("v_rcp_f32 v14, v15")
    p.I("s_nop 0")
    for k in range(5): p.I(f"v_pk_mul_f32 {vr(O1+2*k,2)}, {vr(O1+2*k,2)}, v[14:15] op_sel_hi:[1,0]")
    for k in range(5): p.I(f"v_cvt_pk_bf16_f32 v{O1+k}, v{O1+2*k}, v{O1+2*k+1}")
    p.I(f"buffer_store_dwordx4 {vr(O1,4)}, v{V_Q0}, s[{SO}:{SO+3}], s9 offen sc1")
    p.I(f"buffer_store_dword v{O1+4}, v{V_QA}, s[{SO}:{SO+3}], s11 offen sc1")
    tail(p)
    p.L(f"{name}_end")
    p.I("s_endpgm")
    p.L("k2_slow")
    p.I("v_mov_b32 v14, 0xff800000")
    for ps in range(2):
        p.I("s_mov_b32 s4, 0")
        p.L(f"k2_sp{ps}")
        kv_bases(p, 4)
        ld_kx(p)
        for j in range(8):
            ld_k0(p, j)
            if ps: ld_v(p, j)
        p.I("s_waitcnt vmcnt(0)")
        for j in range(8):
            p.I(x8(j, S0, QB1, S1 if ps else None)); p.I(x16(j, S0, QB1))
            if ps == 0:
                for k in range(8): p.I(f"v_max3_f32 v14, v14, v{S0+2*k}, v{S0+2*k+1}")
            else:
                for r in range(16): p.I(ex(S0+r))
                for k in range(8): p.I(cv(S0, k))
                p.I(pv(j, 0, S0, O1)); p.I(pv(j, 1, S0, O1))
        p.I("s_add_u32 s4, s4, 1"); p.I("s_cmp_lt_u32 s4, 8"); p.I(f"s_cbranch_scc1 k2_sp{ps}")
        if ps == 0:
            p.I("v_mov_b32 v15, v14")
            p.I("v_permlane32_swap_b32 v14, v15")
            p.I("v_max_f32 v14, v14, v15")
            for r in range(16):
                p.I(f"v_sub_f32 v{S1+r}, 0, v14"); p.I(f"v_mov_b32 v{O1+r}, 0")
    p.I(f"v_mov_b32 v14, v{O1+8}"); p.I(f"v_mov_b32 v15, v{O1+8}")
    p.I("v_permlane32_swap_b32 v14, v15")
    p.I("s_mov_b32 s100, 1")
    p.I("s_branch k2_fin")
    return (p, 256, EXB + 1024) if "S" in XP else (p, 256, EXB + 16384)
```

```python
from common import *

KX, K0, VV, S0, S1, O0, O1, QB0, QB1, HX = 16, 24, 56, 120, 136, 152, 168, 184, 192, 200
SLOT = 2576
V_Q0, V_QA, V_QB, V_KV, V_VA, V_O16, V_O8, V_I16, V_I8, V_ONE, V_F, V_H = 2, 3, 4, 5, 6, 7, 8, 9, 10, 11, 12, 13
SQ, SKV, SH, SO = 52, 56, 60, 64

def pk_cfma(p, d, a, b, c, t):
    if c is None: p.I(f"v_pk_mul_f32 {vr(t,2)}, {vr(a,2)}, {vr(b,2)} op_sel_hi:[1,0]")
    else: p.I(f"v_pk_fma_f32 {vr(t,2)}, {vr(a,2)}, {vr(b,2)}, {vr(c,2)} op_sel_hi:[1,0,1]")
    p.I(f"v_pk_fma_f32 {vr(d,2)}, {vr(a,2)}, {vr(b,2)}, {vr(t,2)} op_sel:[1,1,0] op_sel_hi:[0,1,1] neg_lo:[0,1,0]")

def q_loads(p, qb, soff):
    p.I(f"buffer_load_dwordx4 {vr(qb,4)}, v{V_Q0}, s[{SQ}:{SQ+3}], s{soff} offen")
    p.I(f"buffer_load_dword v{qb+4}, v{V_QA}, s[{SQ}:{SQ+3}], s{soff} offen")
    p.I(f"buffer_load_dword v{qb+6}, v{V_QB}, s[{SQ}:{SQ+3}], s{soff} offen")

def x8(j, s, qb, c=None): return mfma(s, KX + 2*(j >> 1), qb + 4 + 2*(j & 1), c, "32x32x8")
def x16(j, s, qb): return mfma(s, K0 + 4*j, qb, s)
def pv(j, m, s, o): return mfma(o, VV + 8*j + 4*m, s + 4*m, o)
def ex(r): return f"v_exp_f32 v{r}, v{r}"
def cv(s, k): return f"v_cvt_pk_bf16_f32 v{s+k}, v{s+2*k}, v{s+2*k+1}"

XP = os.environ.get("XP", "")
def kv_bases(p, g):
    p.I(f"s_lshl_b32 s13, s{g}, 13")
    p.I(f"s_lshl_b32 s14, s{g}, 14"); p.I(f"s_add_u32 s14, s14, {WS_V-WS_K0}")
    p.I(f"s_lshl_b32 s15, s{g}, 11"); p.I(f"s_add_u32 s15, s15, {WS_KX-WS_K0}")
def ld_k0(p, j):
    p.I(f"s_add_u32 s7, s13, {(j//4)*4096}")
    p.I(f"buffer_load_dwordx4 {vr(K0+4*j,4)}, v{V_KV}, s[{SKV}:{SKV+3}], s7 offen offset:{(j%4)*1024}")
def ld_v(p, j):
    p.I(f"s_add_u32 s7, s14, {(j//2)*4096}")
    p.I(f"buffer_load_dwordx4 {vr(VV+8*j,4)}, v{V_VA}, s[{SKV}:{SKV+3}], s7 offen offset:{(j%2)*2048}")
    p.I(f"buffer_load_dwordx4 {vr(VV+8*j+4,4)}, v{V_VA}, s[{SKV}:{SKV+3}], s7 offen offset:{(j%2)*2048+1024}")
def ld_kx(p):
    p.I(f"buffer_load_dwordx4 {vr(KX,4)}, v{V_KV}, s[{SKV}:{SKV+3}], s15 offen")
    p.I(f"buffer_load_dwordx4 {vr(KX+4,4)}, v{V_KV}, s[{SKV}:{SKV+3}], s15 offen offset:1024")

def fixup_loads(p):
    p.I("s_lshr_b32 s7, s2, 2")
    p.I("s_mov_b32 s9, s5")
    p.I("s_cmp_ge_u32 s9, 9"); p.I("s_cselect_b32 s10, 1, 0")
    p.I("s_mul_i32 s11, s10, 9"); p.I("s_sub_u32 s9, s9, s11")
    p.I("s_lshl_b32 s70, s9, 12"); p.I("s_lshl_b32 s11, s10, 8"); p.I("s_add_u32 s70, s70, s11")
    p.I(f"s_mul_i32 s11, s7, {72*1024}"); p.I("s_add_u32 s70, s70, s11"); p.I(f"s_add_u32 s70, s70, {WS_H2-WS_H}")
    p.I("s_lshl_b32 s9, s9, 6")
    p.I(f"v_add_u32 v{V_H}, s9, v0")
    p.I(f"v_lshlrev_b32 v14, 3, v{V_H}")
    p.I(f"v_lshlrev_b32 v{V_H}, 4, v{V_H}")
    p.I("s_lshr_b32 s68, s7, 2")
    T = HX + 16
    def ld2(d, s): p.I(f"buffer_load_dwordx2 {vr(d,2)}, v14, s[{SH}:{SH+3}], s{s} offen")
    p.I(f"s_mov_b32 s11, {WS_PW-WS_H+8*4608}"); ld2(T+6, 11)
    for jj in range(8):
        p.I(f"s_cmp_le_u32 s68, {2*jj}"); p.I("s_cbranch_scc1 k2_fx_ld")
        p.I(f"s_mov_b32 s11, {WS_A-WS_H+jj*9216}")
        p.I(f"buffer_load_dwordx4 {vr(S0+4*jj,4)}, v{V_H}, s[{SH}:{SH+3}], s11 offen")
    p.L("k2_fx_ld")
    p.I(f"s_mov_b32 s11, {WS_PW-WS_H}"); ld2(T, 11)
    p.I("s_mul_i32 s9, s10, 4608"); p.I("s_add_u32 s11, s11, s9"); ld2(T+2, 11)
    p.I("s_and_b32 s9, s7, 3"); p.I("s_mul_i32 s9, s9, 9216"); p.I("s_add_u32 s11, s11, s9"); ld2(T+4, 11)
    p.I("s_mul_i32 s11, s7, 4608"); p.I(f"s_add_u32 s11, s11, {WS_P-WS_H}"); ld2(T+8, 11)
    p.I("s_lshl_b32 s6, s7, 1"); p.I("s_add_u32 s6, s6, s10"); p.I(f"s_mul_i32 s6, s6, {2*18432}")
    for i in range(4):
        p.I(f"s_add_u32 s11, s6, {i*9216}")
        p.I(f"buffer_load_dwordx4 {vr(HX+4*i,4)}, v{V_H}, s[{SH}:{SH+3}], s11 offen")

FXB = int(os.environ.get('FXB', '1'))
FXA = FXB + 2
PRI = int(os.environ.get('PRI', '0'))
def fixup_compute(p, nyounger):
    T = HX + 16
    PW0, PWH, PWC, L128, PP, G, X, Y, TM = T, T+2, T+4, T+6, T+8, T+10, T+12, T+14, T+16
    p.I(f"v_mov_b32 v{G}, 0"); p.I(f"v_mov_b32 v{G+1}, 0")
    p.I("s_mov_b32 s10, 0x3f80"); p.I("s_mov_b32 s11, 0x3f800000")
    p.I(f"s_waitcnt vmcnt({nyounger+8})")
    for jj in range(15):
        p.I(f"s_cmp_le_u32 s68, {jj}"); p.I("s_cbranch_scc1 k2_fx_h")
        pk_cfma(p, G, G, L128, S0+2*jj, TM)
    p.L("k2_fx_h")
    for j in range(3, 3+FXB): ld_k0(p, j); ld_v(p, j-1)
    nyounger += 3*FXB
    p.I("v_bfe_u32 v14, v0, 1, 1"); p.I("v_lshlrev_b32 v14, 10, v14")
    p.I("v_lshrrev_b32 v15, 4, v0"); p.I("v_lshlrev_b32 v15, 3, v15")
    p.I("v_bfe_u32 v1, v0, 2, 2"); p.I("v_add_u32 v15, v15, v1")
    p.I("v_lshl_add_u32 v14, v15, 4, v14")
    p.I("v_and_b32 v1, 1, v0"); p.I("v_lshl_add_u32 v14, v1, 3, v14")
    p.I(f"s_mul_i32 s7, s3, {7*SLOT}"); p.I(f"s_add_u32 s7, s7, {6*SLOT}")
    p.I("v_add_u32 v14, s7, v14")
    p.I("v_and_b32 v15, 15, v0"); p.I("v_lshlrev_b32 v15, 4, v15")
    p.I("v_bfe_u32 v1, v0, 4, 1"); p.I("v_lshl_add_u32 v15, v1, 9, v15")
    p.I("v_lshrrev_b32 v1, 5, v0"); p.I("v_lshl_add_u32 v15, v1, 10, v15")
    p.I(f"s_waitcnt vmcnt({nyounger+4})")
    pk_cfma(p, X, PP, PWH, None, X)
    pk_cfma(p, L128, PW0, PW0, None, L128)
    pk_cfma(p, X, G, PWC, X, TM)
    pk_cfma(p, Y, X, PW0, None, Y)
    p.I(f"s_waitcnt vmcnt({nyounger})")
    for k in range(8):
        q, e = divmod(k, 4)
        hr, hi = HX + 8*q + e, HX + 8*q + 4 + e
        p.I(f"v_dot2_f32_bf16 v{TM}, v{hr}, s10, v{X}")
        p.I(f"v_dot2_f32_bf16 v{TM+1}, v{hr}, s11, v{Y}")
        p.I(f"v_dot2_f32_bf16 v{TM+2}, v{hi}, s10, v{X+1}")
        p.I(f"v_dot2_f32_bf16 v{TM+3}, v{hi}, s11, v{Y+1}")
        if k < 7:
            p.I(f"v_pk_mul_f32 {vr(TM+4,2)}, {vr(X,2)}, {vr(L128,2)} op_sel_hi:[1,0]")
            p.I(f"v_pk_mul_f32 {vr(TM+6,2)}, {vr(Y,2)}, {vr(L128,2)} op_sel_hi:[1,0]")
        p.I(f"v_cvt_pk_bf16_f32 v{hr}, v{TM}, v{TM+1}")
        p.I(f"v_cvt_pk_bf16_f32 v{hi}, v{TM+2}, v{TM+3}")
        if k < 7:
            for (g, t) in ((X, TM+4), (Y, TM+6)):
                p.I(f"v_pk_fma_f32 {vr(g,2)}, {vr(g,2)}, {vr(L128,2)}, {vr(t,2)} op_sel:[1,1,0] op_sel_hi:[0,1,1] neg_lo:[0,1,0]")
        if e == 3:
            for c in range(2): p.I(f"ds_write_b128 v{V_O16}, {vr(HX+8*q+4*c,4)} offset:{(5+c)*SLOT + q*1024}")
    p.I("s_waitcnt lgkmcnt(0)")
    for c in range(2):
        for m in range(2):
            for e in range(2):
                p.I(f"ds_read_b64_tr_b16 {vr(T+8*c+4*m+2*e,2)}, v14 offset:{c*SLOT + m*512 + e*64}")
    p.I(f"s_add_u32 s71, s70, {36*1024}")
    for c in range(2):
        for m in range(2):
            p.I(f"s_waitcnt lgkmcnt({6-4*c-2*m})")
            p.I(f"buffer_store_dwordx4 {vr(T+8*c+4*m,4)}, v15, s[{SH}:{SH+3}], s{70+c} offen offset:{m*2048}" + ("" if "S" in XP else " sc1"))
    for j in range(3+FXB, 8): ld_k0(p, j); ld_v(p, j-1)
    ld_v(p, 7)
    p.I("s_and_b32 s9, s69, 7"); p.I("s_mul_i32 s9, s9, 144"); p.I("s_add_u32 s9, s9, s8")
    q_loads(p, QB1, 9)

NSL = os.environ.get("NSL", "0")
_slc = [0]
def osleep(p, j, pos, kind):
    if kind == "first": return
    n = int(NSL[j % len(NSL)])
    if pos not in {0: (), 1: (1,), 2: (0, 2), 3: (0, 1, 2), 4: (0, 1, 2, 3)}[n]: return
    _slc[0] += 1
    p.I(f"s_cbranch_vccz k2_sl{_slc[0]}"); p.I("s_sleep 1"); p.L(f"k2_sl{_slc[0]}")

ACC, RG, V_HF, V_CF, V_FL, V_T = 200, 216, 248, 249, 250, 251
EXB = 57*SLOT
SOUT, SXA, SDK = 72, 92, 96
PJ = int(os.environ.get('PJ', '3'))
XD = 240
HSC = int(os.environ.get('HSC', '1'))
class VM:
    def __init__(s): s.q = []
    def iss(s, tag, n=1): s.q += [tag]*n
    def wait(s, p, tag):
        idx = max([i for i, t in enumerate(s.q) if t == tag], default=None)
        if idx is None: return
        p.I(f"s_waitcnt vmcnt({len(s.q)-1-idx})"); s.q = s.q[idx+1:]
def ss_load(p, vm, n):
    r = RG + 8*(n & 3)
    p.I(f"buffer_load_dwordx4 {vr(r,4)}, v{V_CF}, s[{SH}:{SH+3}], s70 offen offset:{(n&3)*1024}")
    p.I(f"buffer_load_dwordx4 {vr(r+4,4)}, v{V_HF}, s[{SH}:{SH+3}], s70 offen offset:{(n&3)*1024}" + (" sc1" if HSC else ""))
    vm.iss(("ss", n), 2)
    if n & 3 == 3: p.I("s_add_u32 s70, s70, 4096")

WE = int(os.environ.get("WE", "0"))
def w_part(p, j):
    ns = {3: [2, 3, 4, 5, 6] + list(range(10, 16)), 4: [7, 16, 17], 5: [8, 18, 19], 6: [9, 20, 21, 0, 1], 7: [22, 23], 8: [24, 25, 26]}[j]
    p.I("s_cmp_eq_u32 s101, 0"); p.I(f"s_cbranch_scc1 k2_wp{j}")
    for n in ns:
        i, k = divmod(n, 3)
        p.I(f"s_add_u32 s95, s{92+k}, {i*1024}")
        p.I(f"buffer_load_dwordx4 {vr(16+4*n,4)}, v{V_H}, s[96:99], s95 offen")
    p.L(f"k2_wp{j}")

def emit_round(p, rho, vm, fx=False, tg=None):
    par = rho & 1
    kind = "first" if rho == 0 else ("last" if rho == 7 else "mid")
    QC, QN = (QB0, QB1) if par == 0 else (QB1, QB0)
    OC, OP = (O0, O1) if par == 0 else (O1, O0)
    lo = (1 - par) * SLOT
    tg = tg or f"r{rho}"
    prog = kind == "first" and not fx
    for j in range(8):
        A, B = (S0, S1) if j % 2 == 0 else (S1, S0)
        jn, qn = (j+1, QC) if j < 7 else (0, QN)
        nxt = not (kind == "last" and j == 7)
        n = 8*(rho-3) + j
        ss = 0 <= n < 36 and "S" not in XP
        p.I(ex(A)); p.I(ex(A+1))
        if not (kind == "first" and j == 0): p.I(pv((j-1) % 8, 1, B, OC if j else OP))
        for r in range(2, 6): p.I(ex(A+r))
        if j == 7 and nxt:
            vm.wait(p, "q")
        if nxt: p.I(x8(jn, B, qn))
        p.I(ex(A+6)); p.I(ex(A+7))
        for k in range(4): p.I(cv(A, k))
        if kind == "first" and j < 7: vm.wait(p, ("k", j+1))
        if nxt: p.I(x16(jn, B, qn))
        p.I(ex(A+8)); p.I(ex(A+9))
        if kind == "first":
            if not fx and j <= 4: ld_k0(p, j+3); vm.iss(("k", j+3))
            if not fx and j <= 5: ld_v(p, j+2); vm.iss(("v", j+2), 2)
            if fx and j == FXA and "S" not in XP:
                p.I("s_lshr_b32 s7, s2, 2"); p.I("s_lshl_b32 s7, s7, 5"); p.I("s_add_u32 s7, s7, s5"); p.I("s_lshl_b32 s7, s7, 2")
                p.I(f"s_add_u32 s7, s7, {WS_FL-WS_H}")
                vm.wait(p, "st")
                p.I("s_mov_b64 exec, 1")
                p.I(f"buffer_store_dword v{V_ONE}, v{V_KV}, s[{SH}:{SH+3}], s7 offen sc1"); vm.iss("fl")
                p.I("s_mov_b64 exec, -1")
            if j == 5 and not fx: q_loads(p, QN, 9); vm.iss("q", 3)
            if j == 7 and fx and PFK3:
                p.I("s_lshl_b32 s9, s3, 8"); p.I("s_add_u32 s9, s9, s2"); p.I(f"s_sub_u32 s9, s9, {5*256}")
                p.I("s_cmp_ge_u32 s9, 81"); p.I("s_cbranch_scc1 k2_nopf")
                p.I("s_lshl_b32 s9, s2, 13"); p.I(f"v_lshlrev_b32 v14, 7, v0")
                srd(p, 72, P_WS, 576*1152, WS_WF)
                p.I(f"buffer_load_dword v15, v14, s[72:75], s9 offen")
                p.L("k2_nopf")
        else:
            if j == 0:
                p.I(f"ds_write_b128 v{V_O16}, {vr(OP,4)} offset:{lo}")
                p.I(f"ds_write_b128 v{V_O16}, {vr(OP+4,4)} offset:{lo+1024}")
                p.I(f"ds_write_b64 v{V_O8}, {vr(OP+8,2)} offset:{lo}")
                if kind != "last":
                    p.I("s_add_u32 s69, s69, 1"); p.I("s_and_b32 s9, s69, 7"); p.I("s_mul_i32 s9, s9, 144"); p.I("s_add_u32 s9, s9, s8")
                    q_loads(p, QN, 9); vm.iss("q", 3)
            if j == 1:
                p.I("s_waitcnt lgkmcnt(0)")
                p.I("s_mov_b64 exec, 1")
                p.I(f"ds_write_b32 v{V_O8}, v{V_ONE} offset:{lo+512}")
                p.I("s_mov_b64 exec, -1")
            if rho == 1 and j == 2 and "S" not in XP:
                srd(p, SXA, P_AX, 2048*1152); srd(p, SDK, P_DSK, 1152)
                p.I("s_and_b32 s9, s2, 3"); p.I("s_lshl_b32 s9, s9, 2"); p.I("s_and_b32 s10, s3, 3"); p.I("s_add_u32 s9, s9, s10")
                p.I("s_lshl_b32 s9, s9, 6"); p.I("s_lshr_b32 s10, s3, 2"); p.I("s_lshl_b32 s10, s10, 5"); p.I("s_add_u32 s68, s9, s10")
                p.I("s_lshr_b32 s10, s2, 2"); p.I(f"s_mul_i32 s10, s10, {32*1152}"); p.I("s_add_u32 s10, s10, s68")
                p.I("v_lshrrev_b32 v14, 5, v0"); p.I("v_lshlrev_b32 v14, 3, v14")
                p.I("v_and_b32 v15, 31, v0"); p.I("v_mul_u32_u24 v15, 1152, v15"); p.I("v_add_u32 v15, v15, v14")
                for g in range(2):
                    p.I(f"buffer_load_dwordx2 {vr(XD+2*g,2)}, v15, s[{SXA}:{SXA+3}], s10 offen offset:{16*g}")
                    p.I(f"buffer_load_dwordx2 {vr(XD+4+2*g,2)}, v14, s[{SDK}:{SDK+3}], s68 offen offset:{16*g}")
                vm.iss("xd", 4)
            if rho == 2 and "S" not in XP:
                if j == PJ:
                    vm.wait(p, "xd")
                    p.I(f"buffer_load_dword v{V_T}, v{V_FL}, s[{SH}:{SH+3}], 0 offen sc1")
                    for i in range(4):
                        p.I(f"v_and_b32 v14, 0xffff, v{XD+4+i}"); p.I(f"v_and_b32 v15, 0xffff0000, v{XD+4+i}")
                        p.I(f"v_dot2_f32_bf16 v{ACC+2*i}, v{XD+i}, v14, 0")
                        p.I(f"v_dot2_f32_bf16 v{ACC+2*i+1}, v{XD+i}, v15, 0")
                    for r in range(8, 16): p.I(f"v_mov_b32 v{ACC+r}, 0")
                    p.I("s_mov_b32 s70, 0")
                if j == PJ + 2:
                    p.I("s_mov_b32 s71, 0")
                    p.L("k2_fpoll")
                    p.I("s_waitcnt vmcnt(0)"); vm.q = []
                    p.I(f"v_cmp_ne_u32 vcc, 1, v{V_T}")
                    p.I("s_cbranch_vccz k2_fok")
                    p.I("s_add_u32 s71, s71, 1"); p.I("s_cmp_gt_u32 s71, 0x40000"); p.I("s_cbranch_scc1 k2_fok")
                    p.I("s_sleep 4")
                    p.I(f"buffer_load_dword v{V_T}, v{V_FL}, s[{SH}:{SH+3}], 0 offen sc1")
                    p.I("s_branch k2_fpoll")
                    p.L("k2_fok")
                    for m in range(4): ss_load(p, vm, m)
            if rho == 7 and "S" not in XP:
                if j == 1:
                    srd(p, SOUT, P_OUT, 2048*4608)
                    p.I("s_mov_b32 s9, s68")
                    p.I(f"v_lshrrev_b32 v{V_HF}, 5, v0"); p.I(f"v_lshlrev_b32 v{V_HF}, 3, v{V_HF}")
                    p.I(f"v_and_b32 v{V_CF}, 31, v0"); p.I(f"v_mul_u32_u24 v{V_CF}, 4608, v{V_CF}"); p.I(f"v_lshl_add_u32 v{V_CF}, v{V_HF}, 1, v{V_CF}")
                    p.I("s_lshr_b32 s10, s2, 2"); p.I(f"s_mul_i32 s10, s10, {32*4608}"); p.I("s_lshl_b32 s9, s9, 1"); p.I("s_add_u32 s70, s10, s9")
                    p.I("s_lshl_b32 s9, s3, 11"); p.I(f"s_add_u32 s9, s9, {EXB}")
                    p.I(f"v_add_u32 v{V_HF}, s9, v{V_KV}")
                    p.I("s_lshl_b32 s9, s3, 2"); p.I(f"v_mov_b32 v{V_FL}, s9")
                if j == 4:
                    p.I(f"ds_write_b128 v{V_HF}, {vr(ACC+8,4)}"); p.I(f"ds_write_b128 v{V_HF}, {vr(ACC+12,4)} offset:1024")
                    p.I(f"v_xor_b32 v{V_T}, 16, v{V_FL}")
                    p.I("s_lshl_b32 s9, s3, 11"); p.I("s_xor_b32 s9, s9, 8192"); p.I(f"s_add_u32 s9, s9, {EXB}")
                    p.I(f"v_add_u32 v{V_HF}, s9, v{V_KV}")
                if j == 7: p.I(f"ds_read_b32 v{V_FL}, v{V_T}")
            if j == 4:
                p.I(f"ds_read_b32 v{V_F}, v{V_I8} offset:{lo+512}")
            if j == 5:
                p.L(f"k2_poll{tg}")
                p.I("s_waitcnt lgkmcnt(0)")
                p.I(f"v_readfirstlane_b32 s9, v{V_F}")
                p.I("s_cmp_lg_u32 s9, 0")
                p.I(f"s_cbranch_scc1 k2_ok{tg}")
                p.I("s_sleep 2")
                p.I(f"ds_read_b32 v{V_F}, v{V_I8} offset:{lo+512}")
                p.I(f"s_branch k2_poll{tg}")
                p.L(f"k2_ok{tg}")
                if rho == 7 and "S" not in XP: p.I(f"ds_write_b32 v{V_FL}, v{V_ONE}")
                p.I(f"ds_read_b128 {vr(OP,4)}, v{V_I16} offset:{lo}")
                p.I(f"ds_read_b128 {vr(OP+4,4)}, v{V_I16} offset:{lo+1024}")
                p.I(f"ds_read_b64 {vr(OP+8,2)}, v{V_I8} offset:{lo}")
            if j == 6 and par == 0:
                for r in (V_O16, V_O8): p.I(f"v_add_u32 v{r}, {2*SLOT}, v{r}")
                if rho > 2: p.I("s_cmp_eq_u32 s4, 1"); p.I("s_cselect_b32 s9, s12, 0"); p.I(f"s_add_u32 s9, s9, {2*SLOT}")
                for r in (V_I16, V_I8): p.I(f"v_add_u32 v{r}, {'s9' if rho > 2 else 2*SLOT}, v{r}")
        for r in range(10, 12 if ss else 14): p.I(ex(A+r))
        if kind == "first": vm.wait(p, ("v", j))
        if kind != "first" and j == 7: p.I("s_waitcnt lgkmcnt(0)")
        p.I(pv(j, 0, A, OC))
        for r in range(12 if ss else 14, 16): p.I(ex(A+r))
        if ss:
            vm.wait(p, ("ss", n))
            p.I(mfma(ACC, RG + 8*(n & 3), RG + 8*(n & 3) + 4, ACC))
        for k in range(4, 8): p.I(cv(A, k))
        if ss and n + 4 < 36: ss_load(p, vm, n + 4)
        if rho == 7 and WE >= 0:
            if j == 2:
                p.I("s_add_u32 s8, s2, 192"); p.I("s_and_b32 s8, s8, 255")
                p.I("s_cmp_lt_u32 s8, 192"); p.I("s_cselect_b32 s101, 1, 0")
                p.I("s_cmp_lt_u32 s3, 4"); p.I("s_cselect_b32 s101, s101, 0")
                srd(p, 96, P_WS, 18*36*1024, WS_WF)
                p.I("s_lshl_b32 s92, s3, 7"); p.I(f"v_xor_b32 v{V_H}, s92, v{V_KV}")
                p.I("s_lshr_b32 s92, s8, 5"); p.I(f"s_mul_i32 s92, s92, {3*36864}"); p.I(f"s_mul_i32 s93, s3, {9*1024}"); p.I("s_add_u32 s92, s92, s93")
                p.I("s_add_u32 s93, s92, 36864"); p.I("s_add_u32 s94, s93, 36864")
            if j >= 3: w_part(p, j)

PFK3 = 0
WR = 16
WL = int(os.environ.get('WL', '0'))
TE = int(os.environ.get('TE', '0'))
def w_loads(p, tag):
    p.I("s_cmp_ge_u32 s8, 192"); p.I(f"s_cbranch_scc1 {tag}")
    p.I("s_cmp_ge_u32 s3, 4"); p.I(f"s_cbranch_scc1 {tag}")
    srd(p, 96, P_WS, 18*36*1024, WS_WF)
    p.I("s_lshl_b32 s92, s3, 7"); p.I(f"v_xor_b32 v{V_F}, s92, v{V_KV}")
    p.I("s_lshr_b32 s92, s8, 5"); p.I(f"s_mul_i32 s92, s92, {3*36864}"); p.I(f"s_mul_i32 s93, s3, {9*1024}"); p.I("s_add_u32 s92, s92, s93")
    p.I("s_add_u32 s93, s92, 36864"); p.I("s_add_u32 s94, s93, 36864")
    for i in range(9):
        if i and i % 4 == 0:
            for r in (92, 93, 94): p.I(f"s_add_u32 s{r}, s{r}, 4096")
        for k in range(3):
            p.I(f"buffer_load_dwordx4 {vr(WR+12*i+4*k,4)}, v{V_F}, s[96:99], s{92+k} offen offset:{(i%4)*1024}")
    p.L(tag)

def gpoll(p, tag, va, ok=None):
    p.I("s_mov_b32 s71, 0x20000"); p.I("s_mov_b32 s61, 0")
    p.L(f"{tag}_p")
    p.I(f"buffer_load_dword v10, v{va}, s[68:71], 0 offen sc1")
    p.I("s_waitcnt vmcnt(0)")
    p.I("v_cmp_ne_u32 vcc, 1, v10")
    p.I(f"s_cbranch_vccz {ok or tag + '_ok'}")
    p.I("s_add_u32 s61, s61, 1"); p.I("s_cmp_gt_u32 s61, 0x40000"); p.I(f"s_cbranch_scc1 {ok or tag + '_ok'}")
    p.I(f"s_sleep {os.environ.get('PSL', '12')}")
    p.I(f"s_branch {tag}_p")
    if not ok: p.L(f"{tag}_ok")

def o_flag(p, nyounger):
    srd(p, 68, P_WS, 16384, WS_FL)
    p.I("s_lshl_b32 s60, s2, 3"); p.I("s_add_u32 s60, s60, s3"); p.I("s_lshl_b32 s60, s60, 2"); p.I("s_add_u32 s60, s60, 8192")
    p.I("v_mov_b32 v10, 1")
    p.I(f"s_waitcnt vmcnt({nyounger})")
    p.I("s_mov_b64 exec, 1")
    p.I("buffer_store_dword v10, v2, s[68:71], s60 offen sc1")
    p.I("s_mov_b64 exec, -1")

def tail(p):
    if TS == 1: ts(p, 6)
    if TE: ts(p, 7, True)
    p.I("s_and_b32 s6, s3, 3")
    p.I("v_lshlrev_b32 v2, 4, v0")
    p.I("s_cmp_ge_u32 s8, 192")
    p.I("s_cbranch_scc1 k3_ssm")
    ACC, FO = 160, 124
    o_flag(p, 0)
    p.I("s_cmp_eq_u32 s100, 0"); p.I("s_cbranch_scc1 k3_wok")
    w_loads(p, "k3_w2")
    p.L("k3_wok")
    p.I("s_and_b32 s4, s8, 31"); p.I("s_lshl_b32 s7, s4, 8"); p.I("s_add_u32 s7, s7, 8192")
    p.I("s_lshl_b32 s4, s4, 1"); p.I("s_lshr_b32 s5, s3, 2"); p.I("s_add_u32 s4, s4, s5")
    p.I("s_lshr_b32 s5, s8, 5")
    p.I(f"s_mul_i32 s60, s6, {9*1024}")
    p.I("s_mul_i32 s54, s4, 36864"); p.I("s_add_u32 s54, s54, s60")
    srd(p, 64, P_WS, 2048*1152, WS_O)
    srd(p, 72, P_OUT, 2048*4608)
    p.I("v_and_b32 v12, 31, v0"); p.I("v_mul_u32_u24 v12, 4608, v12"); p.I("v_lshrrev_b32 v13, 5, v0"); p.I("v_lshl_add_u32 v12, v13, 4, v12")
    p.I(f"s_mul_i32 s58, s4, {32*4608}"); p.I("s_mul_i32 s59, s5, 384"); p.I("s_add_u32 s58, s58, s59")
    p.I("s_lshl_b32 s59, s6, 5"); p.I("s_add_u32 s58, s58, s59"); p.I("s_add_u32 s58, s58, 2304")
    p.I("s_lshl_b32 s60, s3, 14"); p.I("v_add_u32 v4, s60, v2")
    for g in range(1, 4): p.I(f"v_xor_b32 v{4+g}, {g << 14}, v4")
    p.I("v_lshl_add_u32 v11, v0, 2, s7")
    p.I(f"s_mul_i32 s60, s6, {27*1024}"); p.I("v_add_u32 v8, s60, v2")
    if TS == 1: ts(p, 1)
    p.I("s_barrier")
    if TS == 1: ts(p, 2)
    p.I("s_cmp_ge_u32 s3, 4"); p.I("s_cbranch_scc1 k3_wrd")
    p.I("s_waitcnt vmcnt(0)")
    for n in range(27): p.I(f"ds_write_b128 v8, {vr(WR+4*n,4)} offset:{1024*n}")
    p.I("s_waitcnt lgkmcnt(0)")
    p.I("s_barrier")
    p.I("s_cmp_lg_u32 s3, 0"); p.I("s_cbranch_scc1 k3_o_ok")
    gpoll(p, "k3_o", 11, "k3_o_ok")
    p.L("k3_wrd")
    p.I("s_barrier")
    for n in range(27): p.I(f"ds_read_b128 {vr(WR+4*n,4)}, v8 offset:{1024*n}")
    p.I("s_waitcnt lgkmcnt(0)")
    p.L("k3_o_ok")
    p.I("s_barrier")
    if TS == 1: ts(p, 7)
    for i in range(9):
        if i and i % 4 == 0: p.I("s_add_u32 s54, s54, 4096")
        p.I(f"buffer_load_dwordx4 {vr(FO+4*i,4)}, v2, s[64:67], s54 offen offset:{(i%4)*1024} sc1")
    for i in range(9):
        p.I(f"s_waitcnt vmcnt({8-i})")
        for nt in range(3): p.I(mfma(ACC+16*nt, WR+12*i+4*nt, FO+4*i, ACC+16*nt if i else None))
    for nt in range(3):
        for g in range(1, 4): p.I(f"ds_write_b128 v{4+g}, {vr(ACC+16*nt+4*g,4)} offset:{((g-1)*3+nt)*1024}")
    p.I("s_waitcnt lgkmcnt(0)")
    if TS == 1: ts(p, 3)
    p.I("s_barrier")
    for nt in range(3):
        for g in range(3): p.I(f"ds_read_b128 {vr(WR+12*nt+4*g,4)}, v4 offset:{(g*3+nt)*1024}")
    for nt in range(3):
        for g in range(3):
            p.I(f"s_waitcnt lgkmcnt({8-3*nt-g})")
            for k in range(2): p.I(f"v_pk_add_f32 {vr(ACC+16*nt+2*k,2)}, {vr(ACC+16*nt+2*k,2)}, {vr(WR+12*nt+4*g+2*k,2)}")
        p.I(f"buffer_store_dwordx4 {vr(ACC+16*nt,4)}, v12, s[72:75], s58 offen offset:{128*nt}")
    if TS != 1 and not TE: ts(p, 7, True)
    elif TS == 1: p.I("s_waitcnt vmcnt(0)"); ts(p, 4)
    ts_flush(p, "k2o")
    p.I("s_endpgm")
    p.L("k3_ssm")
    ACC, FR = 16, 48
    p.I("s_sub_u32 s4, s8, 192")
    p.I(f"s_mul_i32 s54, s3, {9*1024}")
    p.I(f"s_mul_i32 s55, s4, {72*1024}"); p.I("s_add_u32 s55, s55, s54"); p.I(f"s_add_u32 s55, s55, {WS_H2-WS_CF}")
    p.I(f"s_add_u32 s54, s54, {16*72*1024}")
    p.I(f"s_add_u32 s56, s54, {72*1024}")
    p.I("s_lshl_b32 s7, s4, 7"); p.I("v_min_u32 v11, 17, v0"); p.I("v_lshl_add_u32 v11, v11, 2, s7")
    srd(p, 68, P_WS, 16384, WS_FL)
    gpoll(p, "k3_h", 11)
    o_flag(p, 0)
    p.I("s_barrier")
    srd(p, 64, P_WS, WS_FL-WS_CF, WS_CF)
    for i in range(9):
        if i and i % 4 == 0:
            for r in (54, 55, 56): p.I(f"s_add_u32 s{r}, s{r}, 4096")
        for k, r in enumerate((55, 54, 56)):
            p.I(f"buffer_load_dwordx4 {vr(FR+12*i+4*k,4)}, v2, s[64:67], s{r} offen offset:{(i%4)*1024}" + (" sc1" if k == 0 else ""))
    p.I("v_lshrrev_b32 v13, 5, v0"); p.I("v_lshlrev_b32 v13, 3, v13")
    p.I("v_and_b32 v12, 31, v0"); p.I("v_mul_u32_u24 v14, 1152, v12"); p.I("v_add_u32 v14, v14, v13")
    p.I("v_mul_u32_u24 v15, 4608, v12"); p.I("v_lshl_add_u32 v15, v13, 1, v15")
    p.I("s_lshl_b32 s57, s3, 4"); p.I("s_add_u32 s57, s57, 1024")
    p.I(f"s_mul_i32 s58, s4, {32*1152}"); p.I("s_add_u32 s58, s58, s57")
    p.I(f"s_mul_i32 s59, s4, {32*4608}"); p.I("s_lshl_b32 s60, s57, 1"); p.I("s_add_u32 s59, s59, s60")
    srd(p, 68, P_AX, 2048*1152); srd(p, 72, P_DSK, 1152); srd(p, 92, P_OUT, 2048*4608)
    p.I("buffer_load_dwordx2 v[4:5], v14, s[68:71], s58 offen")
    p.I("buffer_load_dwordx2 v[6:7], v13, s[72:75], s57 offen")
    p.I("s_lshl_b32 s60, s3, 13"); p.I("v_add_u32 v8, s60, v2")
    p.I("s_lshl_b32 s60, s3, 10"); p.I("v_add_u32 v9, s60, v2")
    for i in range(9):
        p.I(f"s_waitcnt vmcnt({2 + 3*(8-i)})")
        f = FR + 12*i
        p.I(mfma(ACC, f+4, f, ACC if i else None)); p.I(mfma(ACC+16, f+8, f, ACC+16 if i else None))
    for i in range(8): p.I(f"ds_write_b128 v8, {vr(ACC+4*i,4)} offset:{1024*i}")
    p.I("s_waitcnt lgkmcnt(0)")
    p.I("s_barrier")
    for i in range(8): p.I(f"ds_read_b128 {vr(FR+4*i,4)}, v9 offset:{8192*i}")
    p.I("s_waitcnt vmcnt(0)")
    for i in range(2):
        p.I(f"v_and_b32 v10, 0xffff, v{6+i}"); p.I(f"v_and_b32 v11, 0xffff0000, v{6+i}")
        p.I(f"v_dot2_f32_bf16 v{ACC+2*i}, v{4+i}, v10, 0"); p.I(f"v_dot2_f32_bf16 v{ACC+2*i+1}, v{4+i}, v11, 0")
    for i in range(8):
        p.I(f"s_waitcnt lgkmcnt({7-i})")
        for k in range(2): p.I(f"v_pk_add_f32 {vr(ACC+2*k,2)}, {vr(ACC+2*k,2)}, {vr(FR+4*i+2*k,2)}")
    p.I(f"buffer_store_dwordx4 {vr(ACC,4)}, v15, s[92:95], s59 offen")
    if TS != 1 and not TE: ts(p, 7, True)
    ts_flush(p, "k2s")

def gen_k2(name):
    p = Prog()
    p.L(name)
    p.I("s_cmp_ge_u32 s2, 256")
    p.I(f"s_cbranch_scc1 {name}_end")
    load_ptrs(p)
    ts(p, 0)
    if TS != 1: ts(p, 6, True)
    p.I("v_lshrrev_b32 v1, 6, v0")
    p.I("v_and_b32 v0, 63, v0")
    p.I("v_readfirstlane_b32 s3, v1")
    p.I("v_and_b32 v14, 31, v0")
    p.I("v_lshrrev_b32 v15, 5, v0")
    p.I(f"v_lshrrev_b32 v{V_Q0}, 2, v14")
    p.I(f"v_mul_u32_u24 v{V_Q0}, 1152, v{V_Q0}")
    p.I("v_and_b32 v1, 3, v0")
    p.I(f"v_mad_u32_u24 v{V_Q0}, v1, 36, v{V_Q0}")
    p.I(f"v_lshlrev_b32 v1, 28, v15")
    p.I(f"v_add3_u32 v{V_QA}, v{V_Q0}, v1, 32")
    p.I(f"v_xor_b32 v{V_QB}, 0x10000000, v{V_QA}")
    p.I(f"v_lshl_add_u32 v{V_Q0}, v15, 4, v{V_Q0}")
    p.I(f"v_lshlrev_b32 v{V_KV}, 4, v0")
    p.I("v_cmp_lt_u32 vcc, 20, v14")
    p.I(f"v_mov_b32 v1, 0x10000000")
    p.I(f"v_cndmask_b32 v{V_VA}, v{V_KV}, v1, vcc")
    p.I(f"v_mov_b32 v{V_H}, 0")
    p.I("s_and_b32 s7, s2, 3"); p.I("s_mul_i32 s5, s7, 9"); p.I("s_add_u32 s5, s5, 1"); p.I("s_lshr_b32 s5, s5, 1")
    p.I("s_and_b32 s7, s7, 1"); p.I("s_lshl_b32 s7, s7, 5"); p.I("s_add_u32 s7, s7, 8")
    p.I("s_cmp_eq_u32 s3, 0"); p.I("s_cselect_b32 s7, s7, s3")
    p.I("s_add_u32 s5, s5, s7"); p.I("s_sub_u32 s5, s5, 4")
    p.I("s_cmp_lt_u32 s7, 4"); p.I("s_cselect_b32 s5, 99, s5")
    p.I("s_lshr_b32 s7, s3, 2"); p.I(f"s_mul_i32 s9, s7, {36*1024}")
    p.I("s_lshr_b32 s10, s2, 2"); p.I(f"s_mul_i32 s11, s10, {72*1024}"); p.I("s_add_u32 s11, s11, s9"); p.I(f"s_add_u32 s11, s11, {WS_H2-WS_H}")
    p.I(f"v_add_u32 v{V_HF}, s11, v{V_KV}")
    p.I("s_lshl_b32 s10, s10, 7"); p.I(f"s_add_u32 s10, s10, {WS_FL-WS_H}")
    p.I(f"v_min_u32 v{V_FL}, 17, v0"); p.I(f"v_lshl_add_u32 v{V_FL}, v{V_FL}, 2, s10")
    p.I("s_and_b32 s10, s2, 3"); p.I("s_lshl_b32 s10, s10, 2"); p.I("s_and_b32 s11, s3, 3"); p.I("s_add_u32 s10, s10, s11")
    p.I(f"s_mul_i32 s10, s10, {72*1024}"); p.I("s_add_u32 s10, s10, s9"); p.I(f"s_add_u32 s10, s10, {WS_CF-WS_H}")
    p.I("s_lshl_b32 s7, s7, 8"); p.I(f"v_xor_b32 v{V_CF}, s7, v{V_KV}"); p.I(f"v_add_u32 v{V_CF}, s10, v{V_CF}")
    p.I(f"s_mul_i32 s8, s2, {8*1152}")
    kv_bases(p, 3)
    p.I(f"s_mul_i32 s9, s3, {7*SLOT}"); p.I(f"s_add_u32 s9, s9, {SLOT}")
    p.I(f"v_add_u32 v{V_O16}, s9, v{V_KV}")
    p.I(f"v_lshlrev_b32 v1, 3, v0")
    p.I("s_add_u32 s9, s9, 2048")
    p.I(f"v_add_u32 v{V_O8}, s9, v1")
    p.I("s_add_u32 s10, s3, 2"); p.I("s_and_b32 s10, s10, 7"); p.I(f"s_mul_i32 s10, s10, {7*SLOT}")
    p.I("s_add_u32 s12, s3, 1"); p.I("s_and_b32 s12, s12, 7"); p.I(f"s_mul_i32 s12, s12, {7*SLOT}")
    p.I("s_sub_u32 s12, s12, s10")
    p.I(f"s_add_u32 s10, s10, {SLOT}")
    p.I(f"v_add_u32 v{V_I16}, s10, v{V_KV}")
    p.I("s_add_u32 s10, s10, 2048")
    p.I(f"v_add_u32 v{V_I8}, s10, v1")
    p.I(f"v_mul_u32_u24 v1, {SLOT}, v0")
    p.I(f"v_add_u32 v1, s9, v1")
    p.I(f"v_mov_b32 v{V_ONE}, 0")
    p.I("s_mov_b64 exec, 0x7f")
    p.I(f"ds_write_b32 v1, v{V_ONE} offset:512")
    p.I("s_lshl_b32 s9, s3, 2"); p.I("v_mov_b32 v1, s9")
    p.I(f"ds_write_b32 v1, v{V_ONE}")
    p.I("s_mov_b64 exec, -1")
    p.I(f"v_mov_b32 v{V_ONE}, 1")
    p.I("s_waitcnt lgkmcnt(0)")
    p.I("s_barrier")
    srd(p, SQ, P_WS, 2048*1152, WS_Q); srd(p, SKV, P_WS, WS_H-WS_K0, WS_K0); srd(p, SH, P_WS, WS_END-WS_H, WS_H); srd(p, SO, P_WS, 2048*1152, WS_O)
    if TS == 2: ts(p, 1)
    p.I("s_cmp_ge_u32 s5, 18"); p.I("s_cbranch_scc1 k2_nofx1")
    if PRI: p.I("s_setprio 3")
    fixup_loads(p)
    p.L("k2_nofx1")
    ld_kx(p)
    p.I("s_mul_i32 s9, s3, 144"); p.I("s_add_u32 s9, s9, s8")
    q_loads(p, QB0, 9)
    ld_k0(p, 0); ld_k0(p, 1); ld_v(p, 0); ld_k0(p, 2); ld_v(p, 1)
    NKV = 12
    if TS == 2: ts(p, 2)
    for qb in (QB0, QB1):
        for z in (5, 7): p.I(f"v_mov_b32 v{qb+z}, 0")
    for r in range(32): p.I(f"v_mov_b32 v{O0+r}, 0")
    p.I("s_mov_b32 s4, 0")
    p.I("s_add_u32 s69, s3, 1")
    vm = VM()
    p.I("s_cmp_ge_u32 s5, 18"); p.I("s_cbranch_scc1 k2_nofx2")
    fixup_compute(p, NKV)
    p.I("s_and_b32 s9, s69, 7"); p.I("s_mul_i32 s9, s9, 144"); p.I("s_add_u32 s9, s9, s8")
    ts(p, 1 if TS == 1 else 3)
    p.I(f"s_waitcnt vmcnt({NKV-6+20+4})")
    p.I(x8(0, S0, QB0)); p.I(x16(0, S0, QB0))
    pre = [("k", 1), ("v", 0), ("v", 0), ("k", 2), ("v", 1), ("v", 1)]
    vm.q = list(pre)
    for j in range(3, 8):
        if j == 3+FXB: vm.iss("st", 4)
        vm.q += [("k", j), ("v", j-1), ("v", j-1)]
    vm.q += [("v", 7)]*2 + ["q"]*3
    emit_round(p, 0, vm, fx=True)
    if PRI: p.I("s_setprio 0")
    p.I("s_branch k2_r1")
    p.L("k2_nofx2")
    ts(p, 1 if TS == 1 else 3)
    p.I("s_and_b32 s9, s69, 7"); p.I("s_mul_i32 s9, s9, 144"); p.I("s_add_u32 s9, s9, s8")
    p.I(f"s_waitcnt vmcnt({NKV-6})")
    p.I(x8(0, S0, QB0)); p.I(x16(0, S0, QB0))
    vm.q = list(pre)
    emit_round(p, 0, vm)
    vm.q = []
    p.L("k2_r1")
    if TS: ts(p, 2 if TS == 1 else 5)
    emit_round(p, 1, vm)
    if TS == 1: ts(p, 3)
    emit_round(p, 2, vm)
    if TS == 1: ts(p, 4)
    p.L("k2_loop")
    l0 = len(p.lines)
    emit_round(p, 3, vm); emit_round(p, 4, vm)
    p2 = Prog(); emit_round(p2, 5, vm, tg="r3"); emit_round(p2, 6, vm, tg="r4")
    assert p2.lines == p.lines[l0:], "loop body not steady"
    p.I("s_add_u32 s4, s4, 1")
    p.I("s_cmp_lt_u32 s4, 2")
    p.I("s_cbranch_scc1 k2_loop")
    if TS == 1: ts(p, 5)
    emit_round(p, 7, vm)
    p.I(pv(7, 1, S1, O1))
    p.I("s_add_u32 s8, s2, 192"); p.I("s_and_b32 s8, s8, 255"); p.I(f"s_mov_b32 s100, {WL}")
    if WE >= 0: w_part(p, 8)
    elif not WL: w_loads(p, "k3_w1")
    if "S" not in XP:
        p.L("k2_xpoll")
        p.I("s_waitcnt lgkmcnt(0)")
        p.I(f"v_readfirstlane_b32 s9, v{V_FL}")
        p.I("s_cmp_lg_u32 s9, 0"); p.I("s_cbranch_scc1 k2_xok")
        p.I("s_sleep 2")
        p.I(f"ds_read_b32 v{V_FL}, v{V_T}")
        p.I("s_branch k2_xpoll")
        p.L("k2_xok")
        p.I(f"ds_read_b128 {vr(RG+8,4)}, v{V_HF}"); p.I(f"ds_read_b128 {vr(RG+12,4)}, v{V_HF} offset:1024")
    p.I("s_add_u32 s10, s3, 7"); p.I("s_and_b32 s10, s10, 7")
    p.I("s_lshr_b32 s9, s2, 2"); p.I("s_mul_i32 s9, s9, 36864"); p.I("s_and_b32 s11, s2, 3"); p.I("s_lshl_b32 s11, s11, 7"); p.I("s_add_u32 s9, s9, s11")
    p.I("s_lshl_b32 s11, s10, 9"); p.I("s_add_u32 s11, s11, s9"); p.I("s_add_u32 s11, s11, 32768")
    p.I("s_lshl_b32 s10, s10, 12"); p.I("s_add_u32 s9, s9, s10")
    p.I(f"v_bfe_u32 v{V_Q0}, v0, 2, 3"); p.I(f"v_lshlrev_b32 v{V_Q0}, 4, v{V_Q0}")
    p.I("v_and_b32 v1, 3, v0"); p.I(f"v_lshrrev_b32 v{V_QB}, 5, v0")
    p.I(f"v_lshl_add_u32 v{V_QA}, v1, 2, v{V_Q0}"); p.I(f"v_lshl_add_u32 v{V_QA}, v{V_QB}, 28, v{V_QA}")
    p.I(f"v_lshl_add_u32 v{V_Q0}, v1, 10, v{V_Q0}"); p.I(f"v_lshl_add_u32 v{V_Q0}, v{V_QB}, 9, v{V_Q0}")
    for k in range(5): p.I(f"v_pk_add_f32 {vr(O1+2*k,2)}, {vr(O1+2*k,2)}, {vr(O0+2*k,2)}")
    p.I(f"v_mov_b32 v14, v{O1+8}"); p.I(f"v_mov_b32 v15, v{O1+8}")
    p.I("v_permlane32_swap_b32 v14, v15")
    LO, HI = f2u(2.0**-60), f2u(2.0**60)
    p.I(f"v_subrev_u32 v14, {LO}, v15")
    p.I(f"v_cmp_lt_u32 vcc, {HI-LO}, v14")
    if "S" not in XP:
        p.I("s_waitcnt lgkmcnt(0)")
        for i in range(4): p.I(f"v_pk_add_f32 {vr(ACC+2*i,2)}, {vr(ACC+2*i,2)}, {vr(RG+8+2*i,2)}")
        for g in range(2): p.I(f"buffer_store_dwordx4 {vr(ACC+4*g,4)}, v{V_CF}, s[{SOUT}:{SOUT+3}], s70 offen offset:{32*g}")
    p.I("s_cbranch_vccnz k2_slow")
    p.L("k2_fin")
    p.I("v_rcp_f32 v14, v15")
    p.I("s_nop 0")
    for k in range(5): p.I(f"v_pk_mul_f32 {vr(O1+2*k,2)}, {vr(O1+2*k,2)}, v[14:15] op_sel_hi:[1,0]")
    for k in range(5): p.I(f"v_cvt_pk_bf16_f32 v{O1+k}, v{O1+2*k}, v{O1+2*k+1}")
    p.I(f"buffer_store_dwordx4 {vr(O1,4)}, v{V_Q0}, s[{SO}:{SO+3}], s9 offen sc1")
    p.I(f"buffer_store_dword v{O1+4}, v{V_QA}, s[{SO}:{SO+3}], s11 offen sc1")
    tail(p)
    p.L(f"{name}_end")
    p.I("s_endpgm")
    p.L("k2_slow")
    p.I("v_mov_b32 v14, 0xff800000")
    for ps in range(2):
        p.I("s_mov_b32 s4, 0")
        p.L(f"k2_sp{ps}")
        kv_bases(p, 4)
        ld_kx(p)
        for j in range(8):
            ld_k0(p, j)
            if ps: ld_v(p, j)
        p.I("s_waitcnt vmcnt(0)")
        for j in range(8):
            p.I(x8(j, S0, QB1, S1 if ps else None)); p.I(x16(j, S0, QB1))
            if ps == 0:
                for k in range(8): p.I(f"v_max3_f32 v14, v14, v{S0+2*k}, v{S0+2*k+1}")
            else:
                for r in range(16): p.I(ex(S0+r))
                for k in range(8): p.I(cv(S0, k))
                p.I(pv(j, 0, S0, O1)); p.I(pv(j, 1, S0, O1))
        p.I("s_add_u32 s4, s4, 1"); p.I("s_cmp_lt_u32 s4, 8"); p.I(f"s_cbranch_scc1 k2_sp{ps}")
        if ps == 0:
            p.I("v_mov_b32 v15, v14")
            p.I("v_permlane32_swap_b32 v14, v15")
            p.I("v_max_f32 v14, v14, v15")
            for r in range(16):
                p.I(f"v_sub_f32 v{S1+r}, 0, v14"); p.I(f"v_mov_b32 v{O1+r}, 0")
    p.I(f"v_mov_b32 v14, v{O1+8}"); p.I(f"v_mov_b32 v15, v{O1+8}")
    p.I("v_permlane32_swap_b32 v14, v15")
    p.I("s_mov_b32 s100, 1")
    p.I("s_branch k2_fin")
    return (p, 256, EXB + 1024) if "S" in XP else (p, 256, EXB + 16384)
```
